```python
import torch

def _softmax(x, axis=-1):
    return torch.softmax(x, dim=axis)
def _gelu(x):
    return torch.nn.functional.gelu(x, approximate="tanh")
def _silu(x):
    return torch.nn.functional.silu(x)
def _sigmoid(x):
    return torch.sigmoid(x)
def _layernorm(x, axis=-1, eps=1e-5):
    m = x.mean(dim=axis, keepdim=True)
    v = x.var(dim=axis, keepdim=True, unbiased=False)
    return (x - m) / torch.sqrt(v + eps)
def _scatter_add(tgt, idx, src, axis=0):
    return tgt.clone().index_add_(axis, idx, src)
def _segment_sum(src, seg, n):
    out = torch.zeros((n,) + src.shape[1:], dtype=src.dtype)
    return out.index_add_(0, seg, src)
def _pad(x, pw):
    flat = tuple(v for pair in reversed(pw) for v in pair)
    return torch.nn.functional.pad(x, flat)

kernel_name = 'standalone__self_sup_conv_stem_hubert__speech'

def setup_inputs():

    _w = (lambda a: (lambda t: t.to(torch.bfloat16) if t.is_floating_point() else t)(torch.as_tensor(a)))
    B, T, D, K = 2, 1000, 512, 15
    scale = (1.0 / (K * D)) ** 0.5
    return {
        "x": _w((lambda *s: torch.randn(*s, dtype=torch.bfloat16) * 0.05)(B, T, D)),
        "w": _w((lambda *s: torch.randn(*s, dtype=torch.bfloat16) * 0.05)(K, D, D) * scale),
        "b": _w((lambda *s: torch.randn(*s, dtype=torch.bfloat16) * 0.05)(D) * 0.1),
        "gamma": _w(torch.ones((D,), dtype=float)),
        "beta": _w(torch.zeros((D,), dtype=float)),
    }

def reference(x, w, b, gamma, beta):
    B, T, D = x.shape
    K = w.shape[0]
    s = 2
    L = (T - K) // s + 1
    y = torch.einsum('blc,cd->bld', x[:, 0 : s * L : s, :], w[0])
    for i in range(1, K):
        y = y + torch.einsum('blc,cd->bld', x[:, i : i + s * L : s, :], w[i])
    y = y + b[None, None, :]
    mu = y.mean(1, keepdims=True)
    var = ((y - mu) ** 2).mean(1, keepdims=True)
    yn = (y - mu) / torch.sqrt(var + 1e-5)
    yn = yn * gamma[None, None, :] + beta[None, None, :]
    return _gelu(yn)
```

```python
import sys, argparse

NAME = "standalone__self_sup_conv_stem_hubert__speech"

XARR = 17 * 1056
WRING = 4 * XARR
P = 5
NSTG = 4
STAGE = P * 4096
RED = WRING + NSTG * STAGE
LDS_BYTES = RED + 512
TAPS = [0, 2, 4, 6, 8, 10, 12, 14, 1, 3, 5, 7, 9, 11, 13]
INBOX_GROUP = 16 * 16 * 1024
FLAGS = 16 * INBOX_GROUP

class A:
    def __init__(self):
        self.l = []
    def __call__(self, s):
        for x in s.strip("\n").split("\n"):
            self.l.append(x.strip() if not x.strip().endswith(":") else x.strip())
    def text(self):
        out = []
        for x in self.l:
            if x.endswith(":") or x.startswith(".") or x.startswith(";"):
                out.append(x)
            else:
                out.append("    " + x)
        return "\n".join(out) + "\n"

S_X, S_W, S_WS = 12, 16, 20
S_BT, S_NG, S_MT, S_KS, S_MEM, S_GRP, S_WAVE, S_Q = 26, 27, 28, 29, 30, 31, 32, 33
S_XO, S_XQ, S_XM, S_WO, S_WM = 34, 35, 36, 37, 38
S_T0, S_T1, S_T2, S_T3 = 40, 41, 42, 43
S_SG, S_K, S_XB = 44, 45, 46
V_LANE, V_OFFX, V_OFFW = 1, 2, 3
V_XL, V_WL, V_XC, V_XN, V_W = 4, 5, 6, 7, 8
V_T0, V_T1, V_T2, V_T3 = 10, 11, 12, 13
ACC = 16
XE = 48
XO = 84
WB = 120

def vr(b, n=4):
    return f"v[{b}:{b+n-1}]"

def decode_ids(a):
    a(f"""
    s_and_b32 s24, s2, 7
    s_lshr_b32 s25, s2, 3
    s_and_b32 s{S_BT}, s24, 1
    s_and_b32 s{S_NG}, s24, 6
    s_lshr_b32 s{S_T0}, s25, 4
    s_add_u32 s{S_NG}, s{S_NG}, s{S_T0}
    s_lshr_b32 s{S_MT}, s25, 2
    s_and_b32 s{S_MT}, s{S_MT}, 3
    s_and_b32 s{S_KS}, s25, 3
    s_and_b32 s{S_MEM}, s25, 15
    s_lshl_b32 s{S_GRP}, s{S_BT}, 3
    s_add_u32 s{S_GRP}, s{S_GRP}, s{S_NG}
    v_lshrrev_b32 v{V_T0}, 6, v0
    v_and_b32 v{V_LANE}, 63, v0
    v_readfirstlane_b32 s{S_WAVE}, v{V_T0}
    """)

def srd(a, base, ptr, nbytes):
    a(f"""
    s_mov_b32 s{base}, s{ptr}
    s_and_b32 s{base+1}, s{ptr+1}, 0xffff
    s_mov_b32 s{base+2}, {nbytes}
    s_mov_b32 s{base+3}, 0x20000
    """)

def dma_x(a, half, par, i):
    arr = (2 * half + par) * XARR
    if i < 4:
        a(f"s_add_u32 m0, s{S_XM}, {arr + i * 4 * 1056}")
        a(f"s_add_u32 s{S_T0}, s{S_XQ}, {i * 65536 + par * 1024 + half * 128}")
    else:
        a(f"s_mov_b32 m0, {arr + 16 * 1056}")
        a(f"s_add_u32 s{S_T0}, s{S_XO}, {16 * 16384 + par * 1024 + half * 128}")
    a(f"buffer_load_dwordx4 v{V_OFFX}, s[{S_X}:{S_X+3}], s{S_T0} offen lds")

def dma_w(a, n):
    k, nl = divmod(n, 15)
    tap = TAPS[nl]
    slot = ((n // P) % NSTG) * STAGE + (n % P) * 4096
    a(f"s_add_u32 m0, s{S_WM}, {slot}")
    a(f"s_add_u32 s{S_T0}, s{S_WO}, {(tap * 512 + k * 32) * 1024}")
    a(f"buffer_load_dwordx4 v{V_OFFW}, s[{S_W}:{S_W+3}], s{S_T0} offen lds")

def x_imm(par, m):
    return par * XARR + (m >> 3) * 1056 + (m & 7) * 128

def gemm_prologue(a, endlabel):
    a(f"""
    s_cmp_ge_u32 s2, 256
    s_cbranch_scc1 {endlabel}
    s_load_dwordx4 s[4:7], s[0:1], 0
    s_load_dwordx2 s[8:9], s[0:1], 56
    """)
    decode_ids(a)
    a(f"""
    v_lshrrev_b32 v{V_T0}, 3, v{V_LANE}          ; lane>>3
    v_and_b32 v{V_T1}, 7, v{V_LANE}              ; lane&7
    v_lshlrev_b32 v{V_OFFX}, 11, v{V_T0}
    v_lshl_add_u32 v{V_OFFX}, v{V_T1}, 4, v{V_OFFX}
    s_and_b32 s{S_Q}, s{S_WAVE}, 3
    ; x offsets
    s_mul_i32 s{S_XO}, s{S_BT}, 1024000
    s_lshl_b32 s{S_T0}, s{S_MT}, 18
    s_add_u32 s{S_XO}, s{S_XO}, s{S_T0}
    s_lshl_b32 s{S_T0}, s{S_KS}, 8
    s_add_u32 s{S_XO}, s{S_XO}, s{S_T0}
    s_lshl_b32 s{S_T0}, s{S_Q}, 14
    s_add_u32 s{S_XQ}, s{S_XO}, s{S_T0}
    s_mul_i32 s{S_XM}, s{S_Q}, 1056
    ; w offsets
    s_lshl_b32 s{S_WO}, s{S_KS}, 17
    s_lshl_b32 s{S_T0}, s{S_Q}, 13
    s_add_u32 s{S_WO}, s{S_WO}, s{S_T0}
    s_lshl_b32 s{S_T0}, s{S_NG}, 7
    s_add_u32 s{S_WO}, s{S_WO}, s{S_T0}
    s_lshl_b32 s{S_WM}, s{S_Q}, 10
    s_add_u32 s{S_WM}, s{S_WM}, {WRING}
    v_bfe_u32 v{V_T2}, v{V_LANE}, 4, 1
    s_and_b32 s{S_T1}, s{S_Q}, 1
    s_lshl_b32 s{S_T1}, s{S_T1}, 1
    v_or_b32 v{V_T2}, s{S_T1}, v{V_T2}
    v_lshrrev_b32 v{V_T3}, 1, v{V_T1}
    v_xor_b32 v{V_T2}, v{V_T3}, v{V_T2}
    v_lshlrev_b32 v{V_OFFW}, 10, v{V_T0}
    v_lshl_add_u32 v{V_OFFW}, v{V_T2}, 5, v{V_OFFW}
    v_and_b32 v{V_T3}, 1, v{V_LANE}
    v_lshl_add_u32 v{V_OFFW}, v{V_T3}, 4, v{V_OFFW}
    s_waitcnt lgkmcnt(0)
    """)
    srd(a, S_X, 4, 2048000)
    srd(a, S_W, 6, 7864320)
    srd(a, S_WS, 8, 268435456)

def loader(a, cfg):
    def xops(half, par, part=None):
        ops = [("x", half, par, i) for i in range(4)] + [("x16", half, par)]
        if part == 0: return ops[:2]
        if part == 1: return ops[2:]
        return ops
    def st(s):
        return [("w", n) for n in range(s * P, (s + 1) * P)] if s < 12 else []
    phases = [
        st(0) + xops(0, 1) + st(1) + st(2),
        st(3) + xops(1, 0, 0),
        st(4) + xops(1, 0, 1),
        st(5) + xops(1, 1, 0),
        st(6) + xops(1, 1, 1),
    ]
    for m in range(4, 12):
        phases.append(st(m + 3))
    flat = []
    marks = []
    for ph in phases:
        flat += ph
        marks.append(len(flat))
    def last_required(m):
        req = -1
        for idx, op in enumerate(flat):
            if op[0] == "w" and op[1] // P <= m: req = idx
            if op[0] in ("x", "x16"):
                half, par = op[1], op[2]
                need = {(0, 1): 1, (1, 0): 5, (1, 1): 7}[(half, par)]
                if need <= m: req = max(req, idx)
        return req
    pos = 0
    for m, ph in enumerate(phases):
        for op in ph:
            if op[0] == "w":
                dma_w(a, op[1])
            elif op[0] == "x":
                dma_x(a, op[1], op[2], op[3])
            else:
                arr = 2 * op[1] + op[2]
                lab = f"L_skipx{arr}"
                a(f"s_cmp_eq_u32 s{S_Q}, {arr}")
                a(f"s_cbranch_scc0 {lab}")
                dma_x(a, op[1], op[2], 4)
                a(f"{lab}:")
        pos = marks[m]
        req = last_required(m)
        assert req < pos, (m, req, pos)
        n_after = sum(1 for op in flat[req + 1:pos] if op[0] != "x16")
        if m < 12:
            a(f"s_waitcnt vmcnt({n_after})")
        a(f"s_barrier")
    assert len(phases) == 13, len(phases)

def compute(a, cfg):
    for i in range(4):
        dma_x(a, 0, 0, i)
    a(f"s_cmp_eq_u32 s{S_Q}, 0")
    a(f"s_cbranch_scc0 L_skipx0")
    dma_x(a, 0, 0, 4)
    a("L_skipx0:")
    a(f"""
    v_and_b32 v{V_T0}, 15, v{V_LANE}             ; i / j
    v_lshrrev_b32 v{V_T1}, 4, v{V_LANE}          ; g
    v_mul_u32_u24 v{V_XL}, 1056, v{V_T0}
    v_lshl_add_u32 v{V_XL}, v{V_T1}, 4, v{V_XL}
    v_lshrrev_b32 v{V_T2}, 2, v{V_T0}
    v_lshl_add_u32 v{V_T2}, v{V_T1}, 3, v{V_T2}
    v_lshlrev_b32 v{V_WL}, 7, v{V_T2}
    v_bfe_u32 v{V_T2}, v{V_T0}, 3, 1
    v_and_b32 v{V_T3}, 1, v{V_T1}
    v_lshl_or_b32 v{V_T2}, v{V_T3}, 1, v{V_T2}
    v_xor_b32 v{V_T2}, s{S_Q}, v{V_T2}
    v_lshl_add_u32 v{V_WL}, v{V_T2}, 5, v{V_WL}
    v_and_b32 v{V_T3}, 3, v{V_T0}
    v_lshl_add_u32 v{V_WL}, v{V_T3}, 3, v{V_WL}
    v_add_u32 v{V_WL}, {WRING}, v{V_WL}
    v_mov_b32 v{V_XC}, v{V_XL}
    v_add_u32 v{V_XN}, 64, v{V_XL}
    v_mov_b32 v{V_W}, v{V_WL}
    s_mov_b32 s{S_SG}, 0
    s_mov_b32 s{S_K}, 0
    """)
    for r in range(32):
        a(f"v_mov_b32 v{ACC + r}, 0")
    a("s_waitcnt vmcnt(0)")
    a("s_barrier")
    a(f"ds_read_b64_tr_b16 {vr(WB,2)}, v{V_W}")
    a(f"ds_read_b64_tr_b16 {vr(WB+2,2)}, v{V_W} offset:512")
    for m in range(8):
        a(f"ds_read_b128 {vr(XE + 4*m)}, v{V_XC} offset:{x_imm(0, m)}")
    a("L_kloop:")
    extras = {4: [(1, 0), (1, 1), (1, 2)], 5: [(1, 3), (1, 4), (1, 5)], 6: [(1, 6), (1, 7)],
              10: [(0, 0), (0, 1), (0, 2)], 11: [(0, 3), (0, 4), (0, 5)], 12: [(0, 6), (0, 7)]}
    for n in range(15):
        par = 0 if n < 8 else 1
        p = n if n < 8 else n - 8
        bank = XE if par == 0 else XO
        wbuf = WB + 4 * (n % 3)
        wnext = WB + 4 * ((n + 1) % 3)
        prev_extras = len(extras.get(n - 1, []))
        fill = []
        pre = []
        if n in (4, 9, 14):
            pre = [f"s_add_u32 s{S_SG}, s{S_SG}, {STAGE}",
                   f"s_cmp_eq_u32 s{S_SG}, {NSTG*STAGE}",
                   f"s_cselect_b32 s{S_SG}, 0, s{S_SG}",
                   f"v_add_u32 v{V_W}, s{S_SG}, v{V_WL}"]
        reads = []
        last_p = 6 if par == 0 else 5
        if p <= last_p:
            m = p + 8
            reads.append(f"ds_read_b128 {vr(bank + 4*(m % 9))}, v{V_XC} offset:{x_imm(par, m)}")
        toff = ((n + 1) % P) * 4096
        reads.append(f"ds_read_b64_tr_b16 {vr(wnext,2)}, v{V_W} offset:{toff}")
        reads.append(f"ds_read_b64_tr_b16 {vr(wnext+2,2)}, v{V_W} offset:{toff + 512}")
        for (epar, m) in extras.get(n, []):
            if epar == 1:
                reads.append(f"ds_read_b128 {vr(XO + 4*m)}, v{V_XC} offset:{x_imm(1, m)}")
            else:
                reads.append(f"ds_read_b128 {vr(XE + 4*m)}, v{V_XN} offset:{x_imm(0, m)}")
        post = []
        if n == 14:
            post = [f"s_add_u32 s{S_K}, s{S_K}, 1",
                    f"v_mov_b32 v{V_XC}, v{V_XN}",
                    f"s_add_u32 s{S_T1}, s{S_K}, 1",
                    f"s_lshr_b32 s{S_T2}, s{S_T1}, 1",
                    f"s_mul_i32 s{S_T2}, s{S_T2}, {2*XARR}",
                    f"s_and_b32 s{S_T1}, s{S_T1}, 1",
                    f"s_lshl_b32 s{S_T1}, s{S_T1}, 6",
                    f"s_add_u32 s{S_T1}, s{S_T1}, s{S_T2}",
                    f"v_add_u32 v{V_XN}, s{S_T1}, v{V_XL}",
                    f"s_cmp_lt_u32 s{S_K}, 4"]
        for x in pre: a(x)
        a(f"s_waitcnt lgkmcnt({prev_extras})")
        ri = 0
        for t in range(8):
            m = p + t
            a(f"v_mfma_f32_16x16x32_bf16 {vr(ACC + 4*t)}, {vr(wbuf)}, {vr(bank + 4*(m % 9))}, {vr(ACC + 4*t)}")
            if t == 0 and n in (4, 9, 14):
                a("s_barrier")
            if t < 7 and ri < len(reads):
                a(reads[ri]); ri += 1
            if n == 14 and t >= 3:
                chunk = post[(t - 3) * 2:(t - 3) * 2 + 2]
                for x in chunk: a(x)
        assert ri == len(reads)
    a("s_cbranch_scc1 L_kloop")

def store_partials(a, sc):
    a("s_nop 7")
    a("s_nop 1")
    T = XE
    for s in range(4):
        for e in range(2):
            t = 2 * s + e
            a(f"v_cvt_pk_bf16_f32 v{T + 4*s + 2*e}, v{ACC + 4*t}, v{ACC + 4*t + 1}")
            a(f"v_cvt_pk_bf16_f32 v{T + 4*s + 2*e + 1}, v{ACC + 4*t + 2}, v{ACC + 4*t + 3}")
    a(f"""
    v_lshrrev_b32 v{V_T1}, 4, v{V_LANE}
    v_and_b32 v{V_T0}, 15, v{V_LANE}
    v_lshlrev_b32 v{V_T1}, 14, v{V_T1}
    v_lshl_add_u32 v{V_T1}, v{V_T0}, 4, v{V_T1}
    s_lshl_b32 s{S_T0}, s{S_Q}, 16
    v_add_u32 v{V_T1}, s{S_T0}, v{V_T1}
    s_lshl_b32 s{S_T0}, s{S_GRP}, 18
    s_lshl_b32 s{S_T1}, s{S_MEM}, 10
    s_add_u32 s{S_T0}, s{S_T0}, s{S_T1}
    """)
    for s in range(4):
        a(f"buffer_store_dwordx4 {vr(T + 4*s)}, v{V_T1}, s[{S_WS}:{S_WS+3}], s{S_T0} offen offset:{s*256}{sc}")

S_OUT = 48
S_B, S_G, S_BE = 52, 56, 60
F_Y = 16
F_IN = 20
F_T = 28
F_L = 14

def final_params(a):
    a(f"""
    s_load_dwordx4 s[64:67], s[0:1], 16
    s_load_dwordx4 s[68:71], s[0:1], 32
    s_lshl_b32 s72, s{S_NG}, 7
    s_lshl_b32 s73, s{S_MEM}, 3
    s_add_u32 s72, s72, s73
    s_waitcnt lgkmcnt(0)
    s_load_dwordx2 s[74:75], s[64:65], s72
    s_load_dwordx2 s[76:77], s[66:67], s72
    s_load_dwordx2 s[78:79], s[68:69], s72
    """)
    srd(a, S_OUT, 70, 2 * 493 * 512 * 2)
    a("s_waitcnt lgkmcnt(0)")
    for (dst, src) in ((S_B, 74), (S_G, 76), (S_BE, 78)):
        a(f"s_lshl_b32 s{dst}, s{src}, 16")
        a(f"s_and_b32 s{dst+1}, s{src}, 0xffff0000")
        a(f"s_lshl_b32 s{dst+2}, s{src+1}, 16")
        a(f"s_and_b32 s{dst+3}, s{src+1}, 0xffff0000")

def wave_reduce4(a, r):
    for ctrl in ("row_shr:1", "row_shr:2", "row_shr:4", "row_shr:8"):
        for c in range(4):
            a(f"v_add_f32_dpp v{r+c}, v{r+c}, v{r+c} {ctrl} row_mask:0xf bank_mask:0xf bound_ctrl:1")
    for ctrl, mask in (("row_bcast:15", "0xa"), ("row_bcast:31", "0xc")):
        for c in range(4):
            a(f"v_add_f32_dpp v{r+c}, v{r+c}, v{r+c} {ctrl} row_mask:{mask} bank_mask:0xf")

def block_reduce4(a, r, ldsoff, tmpaddr):
    wave_reduce4(a, r)
    a(f"""
    s_lshl_b32 s{S_T0}, s{S_WAVE}, 4
    s_add_u32 s{S_T0}, s{S_T0}, {ldsoff}
    v_mov_b32 v{tmpaddr}, s{S_T0}
    s_mov_b64 s[82:83], exec
    s_mov_b32 exec_lo, 0
    s_mov_b32 exec_hi, 0x80000000
    ds_write_b128 v{tmpaddr}, {vr(r)}
    s_mov_b64 exec, s[82:83]
    v_and_b32 v{tmpaddr}, 7, v{V_LANE}
    v_lshlrev_b32 v{tmpaddr}, 4, v{tmpaddr}
    v_add_u32 v{tmpaddr}, {ldsoff}, v{tmpaddr}
    s_waitcnt lgkmcnt(0)
    s_barrier
    ds_read_b128 {vr(r)}, v{tmpaddr}
    s_waitcnt lgkmcnt(0)
    """)
    for ctrl in ("quad_perm:[1,0,3,2]", "quad_perm:[2,3,0,1]", "row_half_mirror"):
        for c in range(4):
            a(f"v_add_f32_dpp v{r+c}, v{r+c}, v{r+c} {ctrl} row_mask:0xf bank_mask:0xf")

def final_phase(a, sc):
    a(f"""
    v_lshlrev_b32 v{F_T}, 3, v{V_LANE}
    s_lshl_b32 s{S_T0}, s{S_GRP}, 18
    s_lshl_b32 s{S_T1}, s{S_MEM}, 14
    s_add_u32 s{S_T0}, s{S_T0}, s{S_T1}
    s_lshr_b32 s{S_T1}, s{S_WAVE}, 1
    s_lshl_b32 s{S_T2}, s{S_T1}, 12
    s_add_u32 s{S_T0}, s{S_T0}, s{S_T2}
    s_and_b32 s{S_T2}, s{S_WAVE}, 1
    s_lshl_b32 s{S_T3}, s{S_T2}, 9
    s_add_u32 s{S_T0}, s{S_T0}, s{S_T3}
    """)
    for ks in range(4):
        a(f"buffer_load_dwordx2 {vr(F_IN + 2*ks, 2)}, v{F_T}, s[{S_WS}:{S_WS+3}], s{S_T0} offen offset:{ks*1024}{sc}")
    a(f"""
    s_lshl_b32 s{S_T1}, s{S_T1}, 7
    s_lshl_b32 s{S_T2}, s{S_T2}, 2
    s_add_u32 s{S_T1}, s{S_T1}, s{S_T2}
    v_bfe_u32 v{F_L}, v{V_LANE}, 1, 4
    v_lshlrev_b32 v{F_L}, 3, v{F_L}
    v_lshrrev_b32 v{F_T+1}, 5, v{V_LANE}
    v_lshl_add_u32 v{F_L}, v{F_T+1}, 1, v{F_L}
    v_and_b32 v{F_T+1}, 1, v{V_LANE}
    v_add3_u32 v{F_L}, v{F_L}, v{F_T+1}, s{S_T1}
    s_movk_i32 s84, 493
    v_cmp_gt_u32 s[80:81], s84, v{F_L}
    s_waitcnt vmcnt(0)
    """)
    for d in range(2):
        lo, hi = F_Y + 2*d, F_Y + 2*d + 1
        for ks in range(4):
            src = F_IN + 2*ks + d
            if ks == 0:
                a(f"v_lshlrev_b32 v{lo}, 16, v{src}")
                a(f"v_and_b32 v{hi}, 0xffff0000, v{src}")
            else:
                a(f"v_lshlrev_b32 v{F_T+2}, 16, v{src}")
                a(f"v_and_b32 v{F_T+3}, 0xffff0000, v{src}")
                a(f"v_add_f32 v{lo}, v{lo}, v{F_T+2}")
                a(f"v_add_f32 v{hi}, v{hi}, v{F_T+3}")
    for c in range(4):
        a(f"v_add_f32 v{F_Y+c}, s{S_B+c}, v{F_Y+c}")
    R = F_T + 4
    for c in range(4):
        a(f"v_cndmask_b32 v{R+c}, 0, v{F_Y+c}, s[80:81]")
    block_reduce4(a, R, RED, F_T)
    a(f"s_mov_b32 s{S_T0}, 0x3b04eedd")
    for c in range(4):
        a(f"v_fma_f32 v{F_Y+c}, -v{R+c}, s{S_T0}, v{F_Y+c}")
    for c in range(4):
        a(f"v_mul_f32 v{R+c}, v{F_Y+c}, v{F_Y+c}")
    for c in range(4):
        a(f"v_cndmask_b32 v{R+c}, 0, v{R+c}, s[80:81]")
    block_reduce4(a, R, RED + 128, F_T)
    a(f"s_mov_b32 s{S_T0}, 0x3b04eedd")
    a(f"v_mov_b32 v{F_T}, 0x3727c5ac")
    for c in range(4):
        a(f"v_fma_f32 v{R+c}, v{R+c}, s{S_T0}, v{F_T}")
    for c in range(4):
        a(f"v_rsq_f32 v{R+c}, v{R+c}")
    a("s_nop 0")
    for c in range(4):
        a(f"v_mul_f32 v{R+c}, s{S_G+c}, v{R+c}")
    for c in range(4):
        a(f"v_mov_b32 v{F_T}, s{S_BE+c}")
        a(f"v_fma_f32 v{F_Y+c}, v{F_Y+c}, v{R+c}, v{F_T}")
    a(f"s_mov_b32 s{S_T0}, 0x3dd2d3e8")
    a(f"v_mov_b32 v{F_T}, 0x40135761")
    for c in range(4):
        a(f"v_mul_f32 v{R+c}, v{F_Y+c}, v{F_Y+c}")
    for c in range(4):
        a(f"v_fma_f32 v{R+c}, v{R+c}, s{S_T0}, v{F_T}")
    for c in range(4):
        a(f"v_mul_f32 v{R+c}, v{F_Y+c}, v{R+c}")
    for c in range(4):
        a(f"v_exp_f32 v{R+c}, -v{R+c}")
    a("s_nop 0")
    for c in range(4):
        a(f"v_add_f32 v{R+c}, 1.0, v{R+c}")
    for c in range(4):
        a(f"v_rcp_f32 v{R+c}, v{R+c}")
    a("s_nop 0")
    for c in range(4):
        a(f"v_mul_f32 v{F_Y+c}, v{F_Y+c}, v{R+c}")
    a(f"v_cvt_pk_bf16_f32 v{R}, v{F_Y}, v{F_Y+1}")
    a(f"v_cvt_pk_bf16_f32 v{R+1}, v{F_Y+2}, v{F_Y+3}")
    a(f"""
    v_lshlrev_b32 v{F_T}, 10, v{F_L}
    s_mul_i32 s{S_T0}, s{S_BT}, {493*1024}
    s_add_u32 s{S_T0}, s{S_T0}, s72
    s_and_saveexec_b64 s[82:83], s[80:81]
    buffer_store_dwordx2 {vr(R,2)}, v{F_T}, s[{S_OUT}:{S_OUT+3}], s{S_T0} offen
    """)

def kd(name, vgpr, sgpr=96):
    return f"""
.amdhsa_kernel {name}
  .amdhsa_next_free_vgpr {vgpr}
  .amdhsa_next_free_sgpr {sgpr}
  .amdhsa_accum_offset {(vgpr + 3)//4*4}
  .amdhsa_group_segment_fixed_size 0
  .amdhsa_kernarg_size 64
  .amdhsa_user_sgpr_count 2
  .amdhsa_user_sgpr_kernarg_segment_ptr 1
  .amdhsa_system_sgpr_workgroup_id_x 1
.end_amdhsa_kernel
"""

HEADER = """; Kernarg layout for this problem (64 bytes, ptrs only, base s[0:1]):
"""

def gen_two_kernels(cfg):
    a = A()
    k1, k2 = "gemm_kernel", "final_kernel"
    out = HEADER
    out += f"; @launch kernel={k1} grid=(256,1,1) block=(512,1,1) lds={LDS_BYTES}\n"
    out += f"; @launch kernel={k2} grid=(256,1,1) block=(512,1,1) lds={LDS_BYTES}\n"
    a('.amdgcn_target "amdgcn-amd-amdhsa--gfx950"')
    a(".text")
    for k in (k1,):
        a(f".globl {k}\n.p2align 8\n.type {k},@function\n{k}:")
    gemm_prologue(a, "L_end1")
    a(f"s_cmp_ge_u32 s{S_WAVE}, 4")
    a("s_cbranch_scc1 L_loader")
    compute(a, cfg)
    store_partials(a, "")
    a("s_endpgm")
    a("L_loader:")
    loader(a, cfg)
    a("L_end1:")
    a("s_endpgm")
    a(f".globl {k2}\n.p2align 8\n.type {k2},@function\n{k2}:")
    a("s_cmp_ge_u32 s2, 256")
    a("s_cbranch_scc1 L_end2")
    a("s_load_dwordx2 s[8:9], s[0:1], 56")
    decode_ids(a)
    final_params(a)
    srd(a, S_WS, 8, 268435456)
    final_phase(a, "")
    a("L_end2:")
    a("s_endpgm")
    out += a.text()
    out += '.section .rodata,"a"\n.p2align 6\n'
    out += kd(k1, 136) + ".p2align 6\n" + kd(k2, 64)
    return out

if __name__ == "__main__":
    ap = argparse.ArgumentParser()
    ap.add_argument("-o", default="/dev/stdout")
    ap.add_argument("--mode", default="two")
    args = ap.parse_args()
    cfg = {}
    txt = gen_two_kernels(cfg)
    open(args.o, "w").write(txt)
```

```python
import sys, argparse, struct

NAME = "standalone__self_sup_conv_stem_hubert__speech"
KNAME = NAME + "_kernel"

XARR = 17 * 1056
WRING = 4 * XARR
P = 5
NSTG = 4
STAGE = P * 4096
RED = WRING + NSTG * STAGE
MODEW = RED + 256
LDS_BYTES = RED + 512
TAPS = [0, 2, 4, 6, 8, 10, 12, 14, 1, 3, 5, 7, 9, 11, 13]
INBOX_GROUP = 16 * 16 * 1024
FLAGS = 16 * INBOX_GROUP
EPOCH = FLAGS + 16 * 256
ARRIVE = EPOCH + 16 * 128
STAMPS = 8 << 20
POLL_MAX = 200000

def f2h(x): return hex(struct.unpack('<I', struct.pack('<f', x))[0])

class A:
    def __init__(self): self.l = []
    def __call__(self, s):
        for x in s.strip("\n").split("\n"):
            x = x.strip()
            if x: self.l.append(x)
    def text(self):
        out = []
        for x in self.l:
            if x.endswith(":") or x.startswith(".") or x.startswith(";"): out.append(x)
            else: out.append("    " + x)
        return "\n".join(out) + "\n"

S_RAW = 4
S_X, S_W, S_WS, S_OUT = 12, 16, 20, 48
S_BT, S_NG, S_MT, S_KS, S_MEM, S_GRP, S_WAVE, S_Q = 26, 27, 28, 29, 30, 31, 32, 33
S_XO, S_XQ, S_XM, S_WO, S_WM = 34, 35, 36, 37, 38
S_COL2 = 39
S_T0, S_T1, S_T2, S_T3 = 40, 41, 42, 43
S_SG, S_K, S_MODE, S_XCC = 44, 45, 46, 47
S_E1 = 52
S_KA = 64
S_VALID = 80
S_EX = 82
V_LANE, V_OFFX, V_OFFW = 1, 2, 3
V_XL, V_WL, V_XC, V_XN, V_W, V_MODE = 4, 5, 6, 7, 8, 9
V_T0, V_T1, V_T2, V_T3 = 10, 11, 12, 13
ACC = 16
XE = 48
XO = 84
WB = 120

def stamp(a, cfg, idx, clk=False):
    if not cfg.get("stamps"): return
    a(f"{'s_memtime' if clk else 's_memrealtime'} s[84:85]")
    a("s_waitcnt lgkmcnt(0)")
    a(f"s_mov_b32 s{86+idx}, s84")
def stamp_flush(a, cfg):
    if not cfg.get("stamps"): return
    a("s_mov_b64 exec, -1")
    a(f"s_lshl_b32 s84, s2, 3")
    a(f"s_add_u32 s84, s84, s{S_WAVE}")
    a(f"s_lshl_b32 s84, s84, 6")
    a(f"s_add_u32 s84, s84, {STAMPS}")
    a(f"v_mov_b32 v0, 0")
    for i in range(16): a(f"v_mov_b32 v{100+i}, s{86+i}")
    for i in range(4):
        a(f"buffer_store_dwordx4 v[{100+4*i}:{103+4*i}], v0, s[{S_WS}:{S_WS+3}], s84 offen offset:{16*i}")

def vr(b, n=4): return f"v[{b}:{b+n-1}]"

def srd(a, base, ptr, nbytes):
    a(f"s_mov_b32 s{base}, s{ptr}")
    a(f"s_and_b32 s{base+1}, s{ptr+1}, 0xffff")
    if isinstance(nbytes, int): a(f"s_mov_b32 s{base+2}, {nbytes}")
    else: a(nbytes)
    a(f"s_mov_b32 s{base+3}, 0x20000")

def dma_x(a, half, par, i):
    arr = (2 * half + par) * XARR
    if i < 4:
        a(f"s_add_u32 m0, s{S_XM}, {arr + i * 4 * 1056}")
        a(f"s_add_u32 s{S_T0}, s{S_XQ}, {i * 65536 + par * 1024 + half * 128}")
    else:
        a(f"s_mov_b32 m0, {arr + 16 * 1056}")
        a(f"s_add_u32 s{S_T0}, s{S_XO}, {16 * 16384 + par * 1024 + half * 128}")
    a(f"buffer_load_dwordx4 v{V_OFFX}, s[{S_X}:{S_X+3}], s{S_T0} offen lds")

def dma_x16(a, half, par):
    arr = 2 * half + par
    lab = f"L_skipx{arr}"
    a(f"s_cmp_eq_u32 s{S_Q}, {arr}")
    a(f"s_cbranch_scc0 {lab}")
    dma_x(a, half, par, 4)
    a(f"{lab}:")

def dma_w(a, n):
    k, nl = divmod(n, 15)
    tap = TAPS[nl]
    slot = ((n // P) % NSTG) * STAGE + (n % P) * 4096
    a(f"s_add_u32 m0, s{S_WM}, {slot}")
    a(f"s_add_u32 s{S_T0}, s{S_WO}, {(tap * 512 + k * 32) * 1024}")
    a(f"buffer_load_dwordx4 v{V_OFFW}, s[{S_W}:{S_W+3}], s{S_T0} offen lds")

def x_imm(par, m): return par * XARR + (m >> 3) * 1056 + (m & 7) * 128

def prologue(a, cfg):
    a(f"""
    s_cmp_ge_u32 s2, 256
    s_cbranch_scc1 L_end
    """)
    stamp(a, cfg, 0)
    a(f"s_load_dwordx16 s[{S_KA}:{S_KA+15}], s[0:1], 0")
    if cfg.get("map", 1) == 1:
        a(f"""
        s_and_b32 s24, s2, 7
        s_lshr_b32 s25, s2, 3
        s_and_b32 s{S_BT}, s24, 1
        s_and_b32 s{S_NG}, s24, 6
        s_lshr_b32 s{S_T0}, s25, 4
        s_add_u32 s{S_NG}, s{S_NG}, s{S_T0}
        """)
    elif cfg.get("map") == 0:
        a(f"""
        s_and_b32 s{S_NG}, s2, 7
        s_lshr_b32 s25, s2, 3
        s_lshr_b32 s{S_BT}, s25, 4
        """)
    else:
        a(f"""
        s_lshr_b32 s24, s2, 4
        s_and_b32 s25, s2, 15
        s_and_b32 s{S_BT}, s24, 1
        s_lshr_b32 s{S_NG}, s24, 1
        """)
    a(f"""
    s_lshr_b32 s{S_MT}, s25, 2
    s_and_b32 s{S_MT}, s{S_MT}, 3
    s_and_b32 s{S_KS}, s25, 3
    s_and_b32 s{S_MEM}, s25, 15
    s_lshl_b32 s{S_GRP}, s{S_BT}, 3
    s_add_u32 s{S_GRP}, s{S_GRP}, s{S_NG}
    v_lshrrev_b32 v{V_T0}, 6, v0
    v_and_b32 v{V_LANE}, 63, v0
    v_readfirstlane_b32 s{S_WAVE}, v{V_T0}
    v_lshrrev_b32 v{V_T0}, 3, v{V_LANE}          ; lane>>3
    v_and_b32 v{V_T1}, 7, v{V_LANE}              ; lane&7
    v_lshlrev_b32 v{V_OFFX}, 11, v{V_T0}
    v_lshl_add_u32 v{V_OFFX}, v{V_T1}, 4, v{V_OFFX}
    s_and_b32 s{S_Q}, s{S_WAVE}, 3
    s_mul_i32 s{S_XO}, s{S_BT}, 1024000
    s_add_u32 s{S_T2}, s{S_XO}, 1024000
    s_lshl_b32 s{S_T0}, s{S_MT}, 18
    s_add_u32 s{S_XO}, s{S_XO}, s{S_T0}
    s_lshl_b32 s{S_T0}, s{S_KS}, 8
    s_add_u32 s{S_XO}, s{S_XO}, s{S_T0}
    s_lshl_b32 s{S_T0}, s{S_Q}, 14
    s_add_u32 s{S_XQ}, s{S_XO}, s{S_T0}
    s_mul_i32 s{S_XM}, s{S_Q}, 1056
    s_lshl_b32 s{S_WO}, s{S_KS}, 17
    s_lshl_b32 s{S_T0}, s{S_Q}, 13
    s_add_u32 s{S_WO}, s{S_WO}, s{S_T0}
    s_lshl_b32 s{S_T0}, s{S_NG}, 7
    s_add_u32 s{S_WO}, s{S_WO}, s{S_T0}
    s_lshl_b32 s{S_WM}, s{S_Q}, 10
    s_add_u32 s{S_WM}, s{S_WM}, {WRING}
    s_lshl_b32 s{S_T1}, s{S_MEM}, 3
    s_add_u32 s{S_COL2}, s{S_T0}, s{S_T1}
    v_bfe_u32 v{V_T2}, v{V_LANE}, 4, 1
    s_and_b32 s{S_T1}, s{S_Q}, 1
    s_lshl_b32 s{S_T1}, s{S_T1}, 1
    v_or_b32 v{V_T2}, s{S_T1}, v{V_T2}
    v_lshrrev_b32 v{V_T3}, 1, v{V_T1}
    v_xor_b32 v{V_T2}, v{V_T3}, v{V_T2}
    v_lshlrev_b32 v{V_OFFW}, 10, v{V_T0}
    v_lshl_add_u32 v{V_OFFW}, v{V_T2}, 5, v{V_OFFW}
    v_and_b32 v{V_T3}, 1, v{V_LANE}
    v_lshl_add_u32 v{V_OFFW}, v{V_T3}, 4, v{V_OFFW}
    s_waitcnt lgkmcnt(0)
    """)
    srd(a, S_X, S_KA + 0, f"s_mov_b32 s{S_X+2}, s{S_T2}")
    srd(a, S_W, S_KA + 2, 7864320)
    stamp(a, cfg, 1)

def late_params(a):
    srd(a, S_WS, S_KA + 14, 268435456)
    srd(a, S_OUT, S_KA + 10, 2 * 493 * 512 * 2)
    a(f"s_load_dwordx2 s[{S_RAW}:{S_RAW+1}], s[{S_KA+4}:{S_KA+5}], s{S_COL2}")
    a(f"s_load_dwordx2 s[{S_RAW+2}:{S_RAW+3}], s[{S_KA+6}:{S_KA+7}], s{S_COL2}")
    a(f"s_load_dwordx2 s[{S_RAW+4}:{S_RAW+5}], s[{S_KA+8}:{S_KA+9}], s{S_COL2}")
    a(f"s_lshl_b32 s{S_T1}, s{S_GRP}, 7")
    a(f"s_add_u32 s{S_T1}, s{S_T1}, {EPOCH}")
    a(f"s_load_dword s{S_E1}, s[{S_KA+14}:{S_KA+15}], s{S_T1}")

def loader(a, cfg):
    def xop(half, par, i): return ("x", half, par, i) if i < 4 else ("x16", half, par)
    def st(s): return [("w", n) for n in range(s * P, (s + 1) * P)] if s < 12 else []
    phases = [
        [xop(0, 1, i) for i in range(5)] + st(1),
        st(2) + st(3) + [("arrive",)],
        st(4) + [xop(1, 0, 0), xop(1, 0, 1)],
        st(5) + [xop(1, 0, 2), xop(1, 0, 3)],
        [xop(1, 0, 4)] + st(6) + [xop(1, 1, 0)],
        st(7) + [xop(1, 1, 1), xop(1, 1, 2)],
        [xop(1, 1, 3), xop(1, 1, 4)] + st(8) + [("touch",)],
        [("dbgload",)] + st(9),
        st(10),
        st(11),
        [("mode",)],
        [], [],
    ]
    optional = ("x16", "mode", "arrive")
    flat, marks = [], []
    for ph in phases:
        flat += ph; marks.append(len(flat))
    def last_required(m):
        req = -1
        for idx, op in enumerate(flat):
            if op[0] == "w" and op[1] // P <= m: req = idx
            if op[0] in ("x", "x16"):
                need = {(0, 1): 1, (1, 0): 5, (1, 1): 7}[(op[1], op[2])]
                if need <= m: req = max(req, idx)
            if op[0] == "dbgload" and m >= 9: req = max(req, idx)
        return req
    for m, ph in enumerate(phases):
        for op in ph:
            if op[0] == "w": dma_w(a, op[1])
            elif op[0] == "x": dma_x(a, op[1], op[2], op[3])
            elif op[0] == "x16": dma_x16(a, op[1], op[2])
            elif op[0] == "arrive":
                a(f"""
                s_waitcnt lgkmcnt(0)
                s_add_u32 s{S_E1}, s{S_E1}, 1
                s_getreg_b32 s{S_XCC}, hwreg(HW_REG_XCC_ID, 0, 3)
                s_lshl_b32 s53, s{S_E1}, 3
                s_or_b32 s53, s53, s{S_XCC}
                s_lshl_b32 s{S_T2}, s{S_GRP}, 7
                s_add_u32 s54, s{S_T2}, {ARRIVE}
                s_cmp_eq_u32 s{S_Q}, 0
                s_cbranch_scc0 L_noarrive
                s_lshl_b32 s{S_T2}, s{S_MEM}, 2
                s_add_u32 s{S_T2}, s{S_T2}, s54
                v_mov_b32 v{V_T1}, s53
                v_mov_b32 v{V_T2}, 0
                s_mov_b64 exec, 1
                buffer_store_dword v{V_T1}, v{V_T2}, s[{S_WS}:{S_WS+3}], s{S_T2} offen sc1
                s_mov_b64 exec, -1
                L_noarrive:
                """)
            elif op[0] == "touch":
                a(f"""
                v_and_b32 v{V_T1}, 31, v{V_LANE}
                v_lshlrev_b32 v{V_T1}, 7, v{V_T1}
                s_lshl_b32 s{S_T1}, s{S_GRP}, 18
                s_lshl_b32 s{S_T2}, s{S_MEM}, 14
                s_add_u32 s{S_T1}, s{S_T1}, s{S_T2}
                s_lshl_b32 s{S_T2}, s{S_Q}, 12
                s_add_u32 s{S_T1}, s{S_T1}, s{S_T2}
                buffer_load_dword v{V_T0}, v{V_T1}, s[{S_WS}:{S_WS+3}], s{S_T1} offen sc1
                """)
            elif op[0] == "dbgload":
                a(f"""
                v_and_b32 v{V_T2}, 15, v{V_LANE}
                v_lshlrev_b32 v{V_T2}, 2, v{V_T2}
                buffer_load_dword v24, v{V_T2}, s[{S_WS}:{S_WS+3}], s54 offen sc1
                """)
            elif op[0] == "mode":
                a(f"""
                s_mov_b32 s{S_K}, 0
                s_lshr_b32 s{S_T3}, s53, 3
                L_cntpoll:
                v_lshrrev_b32 v25, 3, v24
                v_cmp_eq_u32 vcc, s{S_T3}, v25
                s_nop 4
                s_cmp_eq_u64 vcc, exec
                s_cbranch_scc1 L_cntok
                s_add_u32 s{S_K}, s{S_K}, 1
                s_cmp_ge_u32 s{S_K}, {POLL_MAX}
                s_cbranch_scc1 L_cntok
                s_sleep 2
                buffer_load_dword v24, v{V_T2}, s[{S_WS}:{S_WS+3}], s54 offen sc1
                s_waitcnt vmcnt(0)
                s_branch L_cntpoll
                L_cntok:
                v_cmp_eq_u32 vcc, s53, v24
                s_nop 4
                s_cmp_eq_u64 vcc, exec
                s_cselect_b32 s{S_MODE}, {0 if cfg.get('forceslow') else 1}, 0
                v_mov_b32 v{V_T1}, s{S_MODE}
                v_mov_b32 v{V_T2}, {MODEW}
                s_mov_b64 exec, 1
                ds_write_b32 v{V_T2}, v{V_T1}
                s_mov_b64 exec, -1
                s_waitcnt lgkmcnt(0)
                """)
        pos = marks[m]
        req = last_required(m)
        if m == 0:
            late_params(a)
            stamp(a, cfg, 2)
        else:
            assert req < pos
            n_after = sum(1 for op in flat[req + 1:pos] if op[0] not in optional)
            if m < 12: a(f"s_waitcnt vmcnt({n_after})")
        if m in (1, 3, 6, 9, 11): stamp(a, cfg, {1: 4, 3: 5, 6: 6, 9: 7, 11: 8}[m])
        a("s_barrier")
        if m == 10: final_setup(a, cfg, False)

def compute(a, cfg):
    for i in range(4): dma_x(a, 0, 0, i)
    dma_x16(a, 0, 0)
    for n in range(P): dma_w(a, n)
    late_params(a)
    a(f"""
    v_and_b32 v{V_T0}, 15, v{V_LANE}             ; i / j
    v_lshrrev_b32 v{V_T1}, 4, v{V_LANE}          ; g
    v_mul_u32_u24 v{V_XL}, 1056, v{V_T0}
    v_lshl_add_u32 v{V_XL}, v{V_T1}, 4, v{V_XL}
    v_lshrrev_b32 v{V_T2}, 2, v{V_T0}
    v_lshl_add_u32 v{V_T2}, v{V_T1}, 3, v{V_T2}
    v_lshlrev_b32 v{V_WL}, 7, v{V_T2}
    v_bfe_u32 v{V_T2}, v{V_T0}, 3, 1
    v_and_b32 v{V_T3}, 1, v{V_T1}
    v_lshl_or_b32 v{V_T2}, v{V_T3}, 1, v{V_T2}
    v_xor_b32 v{V_T2}, s{S_Q}, v{V_T2}
    v_lshl_add_u32 v{V_WL}, v{V_T2}, 5, v{V_WL}
    v_and_b32 v{V_T3}, 3, v{V_T0}
    v_lshl_add_u32 v{V_WL}, v{V_T3}, 3, v{V_WL}
    v_add_u32 v{V_WL}, {WRING}, v{V_WL}
    v_mov_b32 v{V_XC}, v{V_XL}
    v_add_u32 v{V_XN}, 64, v{V_XL}
    v_mov_b32 v{V_W}, v{V_WL}
    v_mov_b32 v{V_T3}, {MODEW}
    s_mov_b32 s{S_SG}, 0
    s_mov_b32 s{S_K}, 0
    """)
    for r in range(32): a(f"v_mov_b32 v{ACC + r}, 0")
    store_setup(a)
    stamp(a, cfg, 2)
    a("s_waitcnt vmcnt(0) lgkmcnt(0)")
    stamp(a, cfg, 3)
    a("s_barrier")
    stamp(a, cfg, 4)
    stamp(a, cfg, 8, True)
    a(f"ds_read_b64_tr_b16 {vr(WB,2)}, v{V_W}")
    a(f"ds_read_b64_tr_b16 {vr(WB+2,2)}, v{V_W} offset:512")
    for m in range(8):
        a(f"ds_read_b128 {vr(XE + 4*m)}, v{V_XC} offset:{x_imm(0, m)}")
    a("L_kloop:")
    extras = {4: [(1, 0), (1, 1), (1, 2)], 5: [(1, 3), (1, 4), (1, 5)], 6: [(1, 6), (1, 7)],
              10: [(0, 0), (0, 1), (0, 2)], 11: [(0, 3), (0, 4), (0, 5)], 12: [(0, 6), (0, 7)]}
    for n in range(15):
        par = 0 if n < 8 else 1
        p = n if n < 8 else n - 8
        bank = XE if par == 0 else XO
        wbuf = WB + 4 * (n % 3)
        wnext = WB + 4 * ((n + 1) % 3)
        prev_extras = len(extras.get(n - 1, []))
        pre = []
        if n in (4, 9, 14):
            pre = [f"s_add_u32 s{S_SG}, s{S_SG}, {STAGE}",
                   f"s_cmp_eq_u32 s{S_SG}, {NSTG*STAGE}",
                   f"s_cselect_b32 s{S_SG}, 0, s{S_SG}",
                   f"v_add_u32 v{V_W}, s{S_SG}, v{V_WL}"]
        reads = []
        if n == 14: reads.append(f"ds_read_b32 v{V_MODE}, v{V_T3}")
        last_p = 6 if par == 0 else 5
        if p <= last_p:
            m = p + 8
            reads.append(f"ds_read_b128 {vr(bank + 4*(m % 9))}, v{V_XC} offset:{x_imm(par, m)}")
        toff = ((n + 1) % P) * 4096
        reads.append(f"ds_read_b64_tr_b16 {vr(wnext,2)}, v{V_W} offset:{toff}")
        reads.append(f"ds_read_b64_tr_b16 {vr(wnext+2,2)}, v{V_W} offset:{toff + 512}")
        for (epar, m) in extras.get(n, []):
            if epar == 1: reads.append(f"ds_read_b128 {vr(XO + 4*m)}, v{V_XC} offset:{x_imm(1, m)}")
            else: reads.append(f"ds_read_b128 {vr(XE + 4*m)}, v{V_XN} offset:{x_imm(0, m)}")
        post = []
        if n == 14:
            post = [f"s_add_u32 s{S_K}, s{S_K}, 1",
                    f"v_mov_b32 v{V_XC}, v{V_XN}",
                    f"s_add_u32 s{S_T1}, s{S_K}, 1",
                    f"s_lshr_b32 s{S_T2}, s{S_T1}, 1",
                    f"s_mul_i32 s{S_T2}, s{S_T2}, {2*XARR}",
                    f"s_and_b32 s{S_T1}, s{S_T1}, 1",
                    f"s_lshl_b32 s{S_T1}, s{S_T1}, 6",
                    f"s_add_u32 s{S_T1}, s{S_T1}, s{S_T2}",
                    f"v_add_u32 v{V_XN}, s{S_T1}, v{V_XL}",
                    f"s_cmp_lt_u32 s{S_K}, 4"]
        for x in pre: a(x)
        a(f"s_waitcnt lgkmcnt({prev_extras})")
        ri = 0
        for t in range(8):
            m = p + t
            a(f"v_mfma_f32_16x16x32_bf16 {vr(ACC + 4*t)}, {vr(wbuf)}, {vr(bank + 4*(m % 9))}, {vr(ACC + 4*t)}")
            if t == 0 and n in (4, 9, 14): a("s_barrier")
            if t < 7 and ri < len(reads):
                a(reads[ri]); ri += 1
            if n == 14 and t >= 3:
                for x in post[(t - 3) * 2:(t - 3) * 2 + 2]: a(x)
        assert ri == len(reads)
    a("s_cbranch_scc1 L_kloop")
    stamp(a, cfg, 9, True)
    stamp(a, cfg, 5)

def store_setup(a):
    a(f"""
    v_lshrrev_b32 v15, 4, v{V_LANE}
    v_and_b32 v14, 15, v{V_LANE}
    v_lshlrev_b32 v15, 14, v15
    v_lshl_add_u32 v14, v14, 4, v15
    s_lshl_b32 s{S_T0}, s{S_Q}, 16
    v_add_u32 v14, s{S_T0}, v14
    s_lshl_b32 s{S_T0}, s{S_GRP}, 18
    s_lshl_b32 s{S_T1}, s{S_MEM}, 10
    s_add_u32 s25, s{S_T0}, s{S_T1}
    s_lshl_b32 s{S_T1}, s{S_Q}, 4
    s_add_u32 s{S_T1}, s{S_T1}, s{S_MEM}
    s_lshl_b32 s{S_T1}, s{S_T1}, 2
    s_lshl_b32 s{S_T2}, s{S_GRP}, 8
    s_add_u32 s{S_T1}, s{S_T1}, s{S_T2}
    s_add_u32 s11, s{S_T1}, {FLAGS}              ; flag[group][q*16+member]
    """)

def store_partials(a, cfg):
    T = XE
    a("s_waitcnt lgkmcnt(0)")
    a(f"v_readfirstlane_b32 s{S_MODE}, v{V_MODE}")
    a("s_nop 3")
    a(f"s_cmp_eq_u32 s{S_MODE}, 1")
    a(f"s_cbranch_scc1 L_fast")
    for lab, sc in (("", " sc1"), ("L_fast:", "")):
        if lab: a(lab)
        for s in range(4):
            for e in range(2):
                t = 2 * s + e
                a(f"v_cvt_pk_bf16_f32 v{T + 4*s + 2*e}, v{ACC + 4*t}, v{ACC + 4*t + 1}")
                a(f"v_cvt_pk_bf16_f32 v{T + 4*s + 2*e + 1}, v{ACC + 4*t + 2}, v{ACC + 4*t + 3}")
            a(f"buffer_store_dwordx4 {vr(T + 4*s)}, v14, s[{S_WS}:{S_WS+3}], s25 offen offset:{s*256}{sc}")
        if not lab: a("s_branch L_stored")
    a("L_stored:")
    stamp(a, cfg, 6)
    final_setup(a, cfg, True)
    a(f"v_mov_b32 v{V_T3}, s{S_E1}")
    a("s_waitcnt vmcnt(0)")
    a(f"s_cmp_eq_u32 s{S_MODE}, 1")
    a("s_mov_b64 exec, 1")
    a("s_cbranch_scc1 L_fastflag")
    a(f"buffer_store_dword v{V_T3}, v{FV_ZERO}, s[{S_WS}:{S_WS+3}], s11 offen sc1")
    a("s_branch L_flagged")
    a("L_fastflag:")
    a(f"buffer_store_dword v{V_T3}, v{FV_ZERO}, s[{S_WS}:{S_WS+3}], s11 offen")
    a("L_flagged:")
    a("s_mov_b64 exec, -1")
    stamp(a, cfg, 7)

FV_A, FV_C, FV_BETA, FV_R2 = 64, 68, 72, 76
FV_GAM, FV_PAY, FV_ZERO, FV_OUT, FV_RW, FV_RR, FV_L = 84, 85, 86, 87, 88, 89, 90
F_Y, F_IN, F_T = 16, 20, 28

def final_setup(a, cfg, inc_epoch):
    a("s_waitcnt lgkmcnt(0)")
    if inc_epoch: a(f"s_add_u32 s{S_E1}, s{S_E1}, 1")
    for c in range(4):
        src = S_RAW + (c >> 1)
        a(f"s_lshl_b32 s{S_T0}, s{src}, 16" if c % 2 == 0 else f"s_and_b32 s{S_T0}, s{src}, 0xffff0000")
        srcb = S_RAW + 4 + (c >> 1)
        a(f"s_lshl_b32 s{S_T1}, s{srcb}, 16" if c % 2 == 0 else f"s_and_b32 s{S_T1}, s{srcb}, 0xffff0000")
        a(f"v_mov_b32 v{FV_C+c}, s{S_T0}")
        a(f"v_mov_b32 v{FV_BETA+c}, s{S_T1}")
        a(f"v_mov_b32 v{FV_R2+c}, 0")
    a(f"""
    v_and_b32 v{F_T}, 3, v{V_LANE}               ; c = lane&3
    v_mov_b32 v{F_T+1}, s{S_RAW+2}
    v_mov_b32 v{F_T+2}, s{S_RAW+3}
    v_cmp_gt_u32 vcc, 2, v{F_T}
    v_lshlrev_b32 v{FV_RR}, 5, v{F_T}
    v_add_u32 v{FV_RR}, {RED}, v{FV_RR}
    v_cndmask_b32 v{F_T+1}, v{F_T+2}, v{F_T+1}, vcc
    v_and_b32 v{F_T+2}, 1, v{V_LANE}
    v_lshlrev_b32 v{F_T+2}, 4, v{F_T+2}          ; 0 or 16
    v_sub_u32 v{F_T+2}, 16, v{F_T+2}
    v_lshlrev_b32 v{F_T+1}, v{F_T+2}, v{F_T+1}
    v_and_b32 v{FV_GAM}, 0xffff0000, v{F_T+1}
    v_bfe_u32 v{F_T}, v{V_LANE}, 2, 2            ; i>>2
    v_lshrrev_b32 v{F_T+1}, 4, v{V_LANE}         ; g
    v_cmp_eq_u32 vcc, v{F_T}, v{F_T+1}
    v_and_b32 v{F_T+2}, 1, v{V_LANE}
    v_lshlrev_b32 v{F_T+2}, 4, v{F_T+2}
    v_mov_b32 v{F_T+3}, 0x3f80
    v_lshlrev_b32 v{F_T+3}, v{F_T+2}, v{F_T+3}
    v_cndmask_b32 v{F_T+3}, 0, v{F_T+3}, vcc
    v_bfe_u32 v{F_T}, v{V_LANE}, 1, 1            ; (i>>1)&1
    v_cmp_eq_u32 vcc, 0, v{F_T}
    s_nop 1
    v_cndmask_b32 v{FV_A}, 0, v{F_T+3}, vcc
    v_cndmask_b32 v{FV_A+1}, v{F_T+3}, 0, vcc
    v_mov_b32 v{FV_A+2}, v{FV_A}
    v_mov_b32 v{FV_A+3}, v{FV_A+1}
    v_lshrrev_b32 v{F_T}, 4, v{V_LANE}
    v_and_b32 v{F_T+1}, 1, v{F_T}
    v_lshrrev_b32 v{F_T}, 1, v{F_T}
    v_lshl_or_b32 v{F_T}, v{F_T+1}, 1, v{F_T}
    v_lshlrev_b32 v{F_T}, 5, v{F_T}
    s_lshl_b32 s{S_T0}, s{S_WAVE}, 2
    s_add_u32 s{S_T0}, s{S_T0}, {RED}
    v_add_u32 v{FV_RW}, s{S_T0}, v{F_T}
    v_mov_b32 v{FV_ZERO}, 0
    v_lshlrev_b32 v{FV_PAY}, 3, v{V_LANE}
    s_lshr_b32 s{S_T1}, s{S_WAVE}, 1
    s_lshr_b32 s{S_T2}, s{S_MEM}, 2
    s_lshl_b32 s{S_T2}, s{S_T2}, 6
    s_lshl_b32 s{S_T3}, s{S_T1}, 4
    s_add_u32 s{S_T2}, s{S_T2}, s{S_T3}
    s_lshl_b32 s{S_T3}, s{S_GRP}, 8
    s_add_u32 s{S_T2}, s{S_T2}, s{S_T3}
    s_add_u32 s3, s{S_T2}, {FLAGS}
    s_lshl_b32 s{S_T0}, s{S_GRP}, 18
    s_lshl_b32 s{S_T2}, s{S_MEM}, 14
    s_add_u32 s{S_T0}, s{S_T0}, s{S_T2}
    s_lshl_b32 s{S_T2}, s{S_T1}, 12
    s_add_u32 s{S_T0}, s{S_T0}, s{S_T2}
    s_and_b32 s{S_T2}, s{S_WAVE}, 1
    s_lshl_b32 s{S_T3}, s{S_T2}, 9
    s_add_u32 s10, s{S_T0}, s{S_T3}
    s_lshl_b32 s{S_T1}, s{S_T1}, 7
    s_lshl_b32 s{S_T2}, s{S_T2}, 2
    s_add_u32 s{S_T1}, s{S_T1}, s{S_T2}
    v_bfe_u32 v{FV_L}, v{V_LANE}, 1, 4
    v_lshlrev_b32 v{FV_L}, 3, v{FV_L}
    v_lshrrev_b32 v{F_T+2}, 5, v{V_LANE}
    v_lshl_add_u32 v{FV_L}, v{F_T+2}, 1, v{FV_L}
    v_and_b32 v{F_T+2}, 1, v{V_LANE}
    v_add3_u32 v{FV_L}, v{FV_L}, v{F_T+2}, s{S_T1}
    s_movk_i32 s{S_T3}, 493
    v_cmp_gt_u32 s[{S_VALID}:{S_VALID+1}], s{S_T3}, v{FV_L}
    v_lshlrev_b32 v{FV_OUT}, 10, v{FV_L}
    s_mul_i32 s24, s{S_BT}, {493*1024}
    s_add_u32 s24, s24, s{S_COL2}
    """)

def fold_reduce(a, r, ldsoff):
    a(f"""
    s_nop 1
    v_permlane32_swap_b32 v{r}, v{r+1}
    v_permlane32_swap_b32 v{r+2}, v{r+3}
    v_add_f32 v{r}, v{r}, v{r+1}
    v_add_f32 v{r+2}, v{r+2}, v{r+3}
    s_nop 1
    v_permlane16_swap_b32 v{r}, v{r+2}
    v_add_f32 v{r}, v{r}, v{r+2}
    """)
    for sh in (8, 4, 2, 1):
        a("s_nop 1")
        a(f"v_add_f32_dpp v{r}, v{r}, v{r} row_ror:{sh} row_mask:0xf bank_mask:0xf")
    a(f"""
    s_mov_b32 exec_lo, 0x00010001
    s_mov_b32 exec_hi, 0x00010001
    ds_write_b32 v{FV_RW}, v{r} offset:{ldsoff}
    s_mov_b64 exec, -1
    s_waitcnt lgkmcnt(0)
    s_barrier
    ds_read_b128 {vr(r)}, v{FV_RR} offset:{ldsoff}
    ds_read_b128 {vr(r+4)}, v{FV_RR} offset:{ldsoff + 16}
    s_waitcnt lgkmcnt(0)
    v_pk_add_f32 {vr(r,2)}, {vr(r,2)}, {vr(r+2,2)}
    v_pk_add_f32 {vr(r+4,2)}, {vr(r+4,2)}, {vr(r+6,2)}
    v_pk_add_f32 {vr(r,2)}, {vr(r,2)}, {vr(r+4,2)}
    v_add_f32 v{r}, v{r}, v{r+1}
    """)

def final_phase(a, cfg):
    a("L_final:")
    a(f"""
    s_mov_b32 s{S_K}, 0
    L_flagpoll:
    buffer_load_dwordx4 v[20:23], v{FV_ZERO}, s[{S_WS}:{S_WS+3}], s3 offen sc1
    s_waitcnt vmcnt(0)
    v_xor_b32 v20, s{S_E1}, v20
    v_xor_b32 v21, s{S_E1}, v21
    v_xor_b32 v22, s{S_E1}, v22
    v_xor_b32 v23, s{S_E1}, v23
    v_or3_b32 v20, v20, v21, v22
    v_or_b32 v20, v20, v23
    s_add_u32 s{S_K}, s{S_K}, 1
    v_readfirstlane_b32 s{S_T1}, v20
    s_cmp_eq_u32 s{S_T1}, 0
    s_cbranch_scc1 L_flagok
    s_cmp_ge_u32 s{S_K}, {POLL_MAX}
    s_cbranch_scc1 L_flagok
    s_branch L_flagpoll
    L_flagok:
    """)
    stamp(a, cfg, 10)
    for ks in range(4):
        a(f"buffer_load_dwordx2 {vr(F_IN + 2*ks, 2)}, v{FV_PAY}, s[{S_WS}:{S_WS+3}], s10 offen offset:{ks*1024} sc1")
    a("s_waitcnt vmcnt(2)")
    a(f"v_mfma_f32_16x16x32_bf16 {vr(F_Y)}, {vr(FV_A)}, {vr(F_IN)}, {vr(FV_C)}")
    a("s_waitcnt vmcnt(0)")
    stamp(a, cfg, 11)
    a(f"v_mfma_f32_16x16x32_bf16 {vr(F_Y)}, {vr(FV_A)}, {vr(F_IN+4)}, {vr(F_Y)}")
    R = F_T
    a("s_nop 7")
    for c in range(4): a(f"v_cndmask_b32 v{R+c}, 0, v{F_Y+c}, s[{S_VALID}:{S_VALID+1}]")
    fold_reduce(a, R, 0)
    a(f"v_mul_f32 v{R}, {f2h(1/493)}, v{R}")
    a("s_nop 1")
    for c in range(4):
        a(f"v_subrev_f32_dpp v{F_Y+c}, v{R}, v{F_Y+c} quad_perm:[{c},{c},{c},{c}] row_mask:0xf bank_mask:0xf")
    a(f"s_mov_b64 exec, s[{S_VALID}:{S_VALID+1}]")
    for c in range(4): a(f"v_mul_f32 v{FV_R2+c}, v{F_Y+c}, v{F_Y+c}")
    a("s_mov_b64 exec, -1")
    fold_reduce(a, FV_R2, 128)
    a(f"v_mov_b32 v{R+1}, {f2h(1e-5)}")
    a(f"v_fmac_f32 v{R+1}, {f2h(1/493)}, v{FV_R2}")
    a(f"v_rsq_f32 v{R+1}, v{R+1}")
    a("s_nop 0")
    a(f"v_mul_f32 v{R+1}, v{R+1}, v{FV_GAM}")
    a("s_nop 1")
    for c in range(4):
        a(f"v_fmac_f32_dpp v{FV_BETA+c}, v{R+1}, v{F_Y+c} quad_perm:[{c},{c},{c},{c}] row_mask:0xf bank_mask:0xf")
    X = FV_BETA
    c1 = 2.302208198144325
    a(f"s_mov_b32 s{S_T0}, {f2h(c1*0.044715)}")
    a(f"v_mov_b32 v{R}, {f2h(c1)}")
    Z = R + 2
    for c in range(4): a(f"v_mul_f32 v{Z+c}, v{X+c}, v{X+c}")
    for c in range(4): a(f"v_fma_f32 v{Z+c}, v{Z+c}, s{S_T0}, v{R}")
    for c in range(4): a(f"v_mul_f32 v{Z+c}, v{X+c}, v{Z+c}")
    for c in range(4): a(f"v_exp_f32 v{Z+c}, -v{Z+c}")
    a("s_nop 0")
    for c in range(4): a(f"v_add_f32 v{Z+c}, 1.0, v{Z+c}")
    for c in range(4): a(f"v_rcp_f32 v{Z+c}, v{Z+c}")
    a("s_nop 0")
    for c in range(4): a(f"v_mul_f32 v{X+c}, v{X+c}, v{Z+c}")
    a(f"v_cvt_pk_bf16_f32 v{Z}, v{X}, v{X+1}")
    a(f"v_cvt_pk_bf16_f32 v{Z+1}, v{X+2}, v{X+3}")
    a(f"s_mov_b64 exec, s[{S_VALID}:{S_VALID+1}]")
    a(f"buffer_store_dwordx2 {vr(Z,2)}, v{FV_OUT}, s[{S_OUT}:{S_OUT+3}], s24 offen")
    a(f"""
    s_or_b32 s{S_T0}, s{S_MEM}, s{S_WAVE}
    s_cmp_eq_u32 s{S_T0}, 0
    s_cbranch_scc0 L_noepoch
    s_lshl_b32 s{S_T1}, s{S_GRP}, 7
    s_add_u32 s{S_T1}, s{S_T1}, {EPOCH}
    v_mov_b32 v{Z+2}, s{S_E1}
    s_mov_b64 exec, 1
    buffer_store_dword v{Z+2}, v{FV_ZERO}, s[{S_WS}:{S_WS+3}], s{S_T1} offen
    L_noepoch:
    """)
    stamp(a, cfg, 12)
    if cfg.get("stamps"): a("s_waitcnt vmcnt(0)")
    stamp(a, cfg, 13)
    stamp_flush(a, cfg)

HEADER = open("cdna_kernels/" + NAME + ".s.ref").read().split("; Override")[0]

def gen(cfg):
    a = A()
    out = HEADER
    out += "; Fused kernel: implicit-GEMM conv (split-K 4 over channels) -> in-launch all-to-all of bf16 partials -> GroupNorm over time -> GELU\n"
    out += f"; @launch grid=(256,1,1) block=(512,1,1) lds={LDS_BYTES}\n"
    a('.amdgcn_target "amdgcn-amd-amdhsa--gfx950"')
    a(".text")
    a(f".globl {KNAME}\n.p2align 8\n.type {KNAME},@function\n{KNAME}:")
    prologue(a, cfg)
    a(f"s_cmp_ge_u32 s{S_WAVE}, 4")
    a("s_cbranch_scc1 L_loader")
    compute(a, cfg)
    store_partials(a, cfg)
    a("s_branch L_final")
    a("L_loader:")
    loader(a, cfg)
    stamp(a, cfg, 9)
    final_phase(a, cfg)
    a("L_end:")
    a("s_endpgm")
    out += a.text()
    out += f""".section .rodata,"a"
.p2align 6
.amdhsa_kernel {KNAME}
  .amdhsa_next_free_vgpr 136
  .amdhsa_next_free_sgpr 102
  .amdhsa_accum_offset 136
  .amdhsa_group_segment_fixed_size 0
  .amdhsa_kernarg_size 64
  .amdhsa_user_sgpr_count 2
  .amdhsa_user_sgpr_kernarg_segment_ptr 1
  .amdhsa_system_sgpr_workgroup_id_x 1
.end_amdhsa_kernel
"""
    return out

if __name__ == "__main__":
    ap = argparse.ArgumentParser()
    ap.add_argument("-o", default="/dev/stdout")
    ap.add_argument("--stamps", action="store_true")
    ap.add_argument("--map", type=int, default=1)
    ap.add_argument("--forceslow", action="store_true")
    args = ap.parse_args()
    cfg = {"stamps": args.stamps, "map": args.map, "forceslow": args.forceslow}
    open(args.o, "w").write(gen(cfg))
```

```python
import sys, argparse, struct

NAME = "standalone__self_sup_conv_stem_hubert__speech"
KNAME = NAME + "_kernel"

XARR = 17 * 1056
WRING = 4 * XARR
P = 5
NSTG = 4
STAGE = P * 4096
RED = WRING + NSTG * STAGE
MODEW = RED + 256
LDS_BYTES = RED + 512
TAPS = [0, 2, 4, 6, 8, 10, 12, 14, 1, 3, 5, 7, 9, 11, 13]
INBOX_GROUP = 16 * 16 * 1024
FLAGS = 16 * INBOX_GROUP
EPOCH = FLAGS + 16 * 256
ARRIVE = EPOCH + 16 * 128
STAMPS = 8 << 20
POLL_MAX = 200000

def f2h(x): return hex(struct.unpack('<I', struct.pack('<f', x))[0])

class A:
    def __init__(self): self.l = []
    def __call__(self, s):
        for x in s.strip("\n").split("\n"):
            x = x.strip()
            if x: self.l.append(x)
    def text(self):
        out = []
        for x in self.l:
            if x.endswith(":") or x.startswith(".") or x.startswith(";"): out.append(x)
            else: out.append("    " + x)
        return "\n".join(out) + "\n"

S_RAW = 4
S_X, S_W, S_WS, S_OUT = 12, 16, 20, 48
S_BT, S_NG, S_MT, S_KS, S_MEM, S_GRP, S_WAVE, S_Q = 26, 27, 28, 29, 30, 31, 32, 33
S_XO, S_XQ, S_XM, S_WO, S_WM = 34, 35, 36, 37, 38
S_COL2 = 39
S_T0, S_T1, S_T2, S_T3 = 40, 41, 42, 43
S_SG, S_K, S_MODE, S_XCC = 44, 45, 46, 47
S_E1 = 52
S_KA = 64
S_VALID = 80
S_EX = 82
V_LANE, V_OFFX, V_OFFW = 1, 2, 3
V_XL, V_WL, V_XC, V_XN, V_W, V_MODE = 4, 5, 6, 7, 8, 9
V_T0, V_T1, V_T2, V_T3 = 10, 11, 12, 13
ACC = 16
XE = 48
XO = 84
WB = 120

def stamp(a, cfg, idx, clk=False):
    if not cfg.get("stamps"): return
    a(f"{'s_memtime' if clk else 's_memrealtime'} s[84:85]")
    a("s_waitcnt lgkmcnt(0)")
    a(f"s_mov_b32 s{86+idx}, s84")
def stamp_flush(a, cfg):
    if not cfg.get("stamps"): return
    a("s_mov_b64 exec, -1")
    a(f"s_lshl_b32 s84, s2, 3")
    a(f"s_add_u32 s84, s84, s{S_WAVE}")
    a(f"s_lshl_b32 s84, s84, 6")
    a(f"s_add_u32 s84, s84, {STAMPS}")
    a(f"v_mov_b32 v0, 0")
    for i in range(16): a(f"v_mov_b32 v{100+i}, s{86+i}")
    for i in range(4):
        a(f"buffer_store_dwordx4 v[{100+4*i}:{103+4*i}], v0, s[{S_WS}:{S_WS+3}], s84 offen offset:{16*i}")

def vr(b, n=4): return f"v[{b}:{b+n-1}]"

def srd(a, base, ptr, nbytes):
    a(f"s_mov_b32 s{base}, s{ptr}")
    a(f"s_and_b32 s{base+1}, s{ptr+1}, 0xffff")
    if isinstance(nbytes, int): a(f"s_mov_b32 s{base+2}, {nbytes}")
    else: a(nbytes)
    a(f"s_mov_b32 s{base+3}, 0x20000")

def dma_x(a, half, par, i):
    arr = (2 * half + par) * XARR
    if i < 4:
        a(f"s_add_u32 m0, s{S_XM}, {arr + i * 4 * 1056}")
        a(f"s_add_u32 s{S_T0}, s{S_XQ}, {i * 65536 + par * 1024 + half * 128}")
    else:
        a(f"s_mov_b32 m0, {arr + 16 * 1056}")
        a(f"s_add_u32 s{S_T0}, s{S_XO}, {16 * 16384 + par * 1024 + half * 128}")
    a(f"buffer_load_dwordx4 v{V_OFFX}, s[{S_X}:{S_X+3}], s{S_T0} offen lds")

def dma_x16(a, half, par):
    arr = 2 * half + par
    lab = f"L_skipx{arr}"
    a(f"s_cmp_eq_u32 s{S_Q}, {arr}")
    a(f"s_cbranch_scc0 {lab}")
    dma_x(a, half, par, 4)
    a(f"{lab}:")

def dma_w(a, n):
    k, nl = divmod(n, 15)
    tap = TAPS[nl]
    slot = ((n // P) % NSTG) * STAGE + (n % P) * 4096
    a(f"s_add_u32 m0, s{S_WM}, {slot}")
    a(f"s_add_u32 s{S_T0}, s{S_WO}, {(tap * 512 + k * 32) * 1024}")
    a(f"buffer_load_dwordx4 v{V_OFFW}, s[{S_W}:{S_W+3}], s{S_T0} offen lds")

def x_imm(par, m): return par * XARR + (m >> 3) * 1056 + (m & 7) * 128

def prologue(a, cfg):
    a(f"""
    s_cmp_ge_u32 s2, 256
    s_cbranch_scc1 L_end
    """)
    if not cfg.get("noprefetch"):
        a(f"""
        s_getpc_b64 s[4:5]
        L_pc:
        v_lshrrev_b32 v132, 6, v0
        v_and_b32 v133, 7, v0
        v_lshl_add_u32 v132, v132, 3, v133
        v_lshlrev_b32 v132, 7, v132
        s_sub_u32 s4, s4, L_pc-{KNAME}
        s_subb_u32 s5, s5, 0
        v_min_u32 v132, L_end-{KNAME}, v132
        global_load_dword v133, v132, s[4:5]
        """)
    stamp(a, cfg, 0)
    if cfg.get("pad"):
        a("s_memrealtime s[98:99]")
    a(f"s_load_dwordx16 s[{S_KA}:{S_KA+15}], s[0:1], 0")
    if cfg.get("map", 1) == 1:
        a(f"""
        s_and_b32 s24, s2, 7
        s_lshr_b32 s25, s2, 3
        s_and_b32 s{S_BT}, s24, 1
        s_and_b32 s{S_NG}, s24, 6
        s_lshr_b32 s{S_T0}, s25, 4
        s_add_u32 s{S_NG}, s{S_NG}, s{S_T0}
        """)
    elif cfg.get("map") == 0:
        a(f"""
        s_and_b32 s{S_NG}, s2, 7
        s_lshr_b32 s25, s2, 3
        s_lshr_b32 s{S_BT}, s25, 4
        """)
    else:
        a(f"""
        s_lshr_b32 s24, s2, 4
        s_and_b32 s25, s2, 15
        s_and_b32 s{S_BT}, s24, 1
        s_lshr_b32 s{S_NG}, s24, 1
        """)
    a(f"""
    s_lshr_b32 s{S_MT}, s25, 2
    s_and_b32 s{S_MT}, s{S_MT}, 3
    s_and_b32 s{S_KS}, s25, 3
    s_and_b32 s{S_MEM}, s25, 15
    s_lshl_b32 s{S_GRP}, s{S_BT}, 3
    s_add_u32 s{S_GRP}, s{S_GRP}, s{S_NG}
    v_lshrrev_b32 v{V_T0}, 6, v0
    v_and_b32 v{V_LANE}, 63, v0
    v_readfirstlane_b32 s{S_WAVE}, v{V_T0}
    v_lshrrev_b32 v{V_T0}, 3, v{V_LANE}          ; lane>>3
    v_and_b32 v{V_T1}, 7, v{V_LANE}              ; lane&7
    v_lshlrev_b32 v{V_OFFX}, 11, v{V_T0}
    v_lshl_add_u32 v{V_OFFX}, v{V_T1}, 4, v{V_OFFX}
    s_and_b32 s{S_Q}, s{S_WAVE}, 3
    s_mul_i32 s{S_XO}, s{S_BT}, 1024000
    s_add_u32 s{S_T2}, s{S_XO}, 1024000
    s_lshl_b32 s{S_T0}, s{S_MT}, 18
    s_add_u32 s{S_XO}, s{S_XO}, s{S_T0}
    s_lshl_b32 s{S_T0}, s{S_KS}, 8
    s_add_u32 s{S_XO}, s{S_XO}, s{S_T0}
    s_lshl_b32 s{S_T0}, s{S_Q}, 14
    s_add_u32 s{S_XQ}, s{S_XO}, s{S_T0}
    s_mul_i32 s{S_XM}, s{S_Q}, 1056
    s_lshl_b32 s{S_WO}, s{S_KS}, 17
    s_lshl_b32 s{S_T0}, s{S_Q}, 13
    s_add_u32 s{S_WO}, s{S_WO}, s{S_T0}
    s_lshl_b32 s{S_T0}, s{S_NG}, 7
    s_add_u32 s{S_WO}, s{S_WO}, s{S_T0}
    s_lshl_b32 s{S_WM}, s{S_Q}, 10
    s_add_u32 s{S_WM}, s{S_WM}, {WRING}
    s_lshl_b32 s{S_T1}, s{S_MEM}, 3
    s_add_u32 s{S_COL2}, s{S_T0}, s{S_T1}
    v_bfe_u32 v{V_T2}, v{V_LANE}, 4, 1
    s_and_b32 s{S_T1}, s{S_Q}, 1
    s_lshl_b32 s{S_T1}, s{S_T1}, 1
    v_or_b32 v{V_T2}, s{S_T1}, v{V_T2}
    v_lshrrev_b32 v{V_T3}, 1, v{V_T1}
    v_xor_b32 v{V_T2}, v{V_T3}, v{V_T2}
    v_lshlrev_b32 v{V_OFFW}, 10, v{V_T0}
    v_lshl_add_u32 v{V_OFFW}, v{V_T2}, 5, v{V_OFFW}
    v_and_b32 v{V_T3}, 1, v{V_LANE}
    v_lshl_add_u32 v{V_OFFW}, v{V_T3}, 4, v{V_OFFW}
    s_waitcnt lgkmcnt(0)
    """)
    srd(a, S_X, S_KA + 0, f"s_mov_b32 s{S_X+2}, s{S_T2}")
    srd(a, S_W, S_KA + 2, 7864320)
    stamp(a, cfg, 1)
    a(f"""
    s_lshr_b32 s55, s{S_WAVE}, 2                 ; role
    s_mul_i32 s56, s55, {XARR}
    s_add_u32 s56, s56, s{S_XM}
    s_lshl_b32 s57, s55, 10
    s_add_u32 s57, s57, s{S_XQ}
    """)
    for i in range(4):
        a(f"s_add_u32 m0, s56, {i * 4 * 1056}")
        a(f"s_add_u32 s{S_T0}, s57, {i * 65536}")
        a(f"buffer_load_dwordx4 v{V_OFFX}, s[{S_X}:{S_X+3}], s{S_T0} offen lds")
    a(f"""
    s_mul_i32 s58, s55, {10 * 524288}
    s_add_u32 s58, s58, s{S_WO}
    s_mul_i32 s59, s55, {5 * 524288}
    s_sub_u32 s59, s{S_WO}, s59
    s_mul_i32 s60, s55, {STAGE}
    s_add_u32 s60, s60, s{S_WM}
    s_cmp_eq_u32 s{S_Q}, s55
    s_cbranch_scc0 L_skipx01
    s_mul_i32 s{S_T1}, s55, {XARR}
    s_add_u32 m0, s{S_T1}, {16 * 1056}
    s_lshl_b32 s{S_T1}, s55, 10
    s_add_u32 s{S_T1}, s{S_T1}, s{S_XO}
    s_add_u32 s{S_T0}, s{S_T1}, {16 * 16384}
    buffer_load_dwordx4 v{V_OFFX}, s[{S_X}:{S_X+3}], s{S_T0} offen lds
    L_skipx01:
    """)
    for j in range(5):
        a(f"s_add_u32 m0, s60, {j * 4096}")
        a(f"s_add_u32 s{S_T0}, s{58 if j < 3 else 59}, {TAPS[j] * 524288}")
        a(f"buffer_load_dwordx4 v{V_OFFW}, s[{S_W}:{S_W+3}], s{S_T0} offen lds")

def late_params(a):
    srd(a, S_WS, S_KA + 14, 268435456)
    srd(a, S_OUT, S_KA + 10, 2 * 493 * 512 * 2)
    a(f"s_load_dwordx2 s[{S_RAW}:{S_RAW+1}], s[{S_KA+4}:{S_KA+5}], s{S_COL2}")
    a(f"s_load_dwordx2 s[{S_RAW+2}:{S_RAW+3}], s[{S_KA+6}:{S_KA+7}], s{S_COL2}")
    a(f"s_load_dwordx2 s[{S_RAW+4}:{S_RAW+5}], s[{S_KA+8}:{S_KA+9}], s{S_COL2}")
    a(f"s_lshl_b32 s{S_T1}, s{S_GRP}, 7")
    a(f"s_add_u32 s{S_T1}, s{S_T1}, {EPOCH}")
    a(f"s_load_dword s{S_E1}, s[{S_KA+14}:{S_KA+15}], s{S_T1}")

def loader(a, cfg):
    def xop(half, par, i): return ("x", half, par, i) if i < 4 else ("x16", half, par)
    def st(s): return [("w", n) for n in range(s * P, (s + 1) * P)] if s < 12 else []
    phases = [
        [("done", xop(0, 1, i)) for i in range(5)] + [("done", op) for op in st(1)],
        st(2) + st(3) + [("arrive",)],
        st(4) + [xop(1, 0, 0), xop(1, 0, 1)],
        st(5) + [xop(1, 0, 2), xop(1, 0, 3)],
        [xop(1, 0, 4)] + st(6) + [xop(1, 1, 0)],
        st(7) + [xop(1, 1, 1), xop(1, 1, 2)],
        [xop(1, 1, 3), xop(1, 1, 4)] + st(8) + [("touch",), ("nop_vm",)],
        [("dbgload",)] + st(9),
        st(10),
        st(11),
        [("mode",)],
        [], [],
    ]
    optional = ("x16", "mode", "arrive")
    flat, marks = [], []
    for ph in phases:
        flat += [op[1] if op[0] == "done" else op for op in ph]; marks.append(len(flat))
    def last_required(m):
        req = -1
        for idx, op in enumerate(flat):
            if op[0] == "w" and op[1] // P <= m: req = idx
            if op[0] in ("x", "x16"):
                need = {(0, 1): 1, (1, 0): 5, (1, 1): 7}[(op[1], op[2])]
                if need <= m: req = max(req, idx)
            if op[0] == "dbgload" and m >= 9: req = max(req, idx)
        return req
    for m, ph in enumerate(phases):
        for op in ph:
            if op[0] in ("done", "nop_vm"): continue
            if op[0] == "w": dma_w(a, op[1])
            elif op[0] == "x": dma_x(a, op[1], op[2], op[3])
            elif op[0] == "x16": dma_x16(a, op[1], op[2])
            elif op[0] == "arrive":
                a(f"""
                s_waitcnt lgkmcnt(0)
                s_add_u32 s{S_E1}, s{S_E1}, 1
                s_getreg_b32 s{S_XCC}, hwreg(HW_REG_XCC_ID, 0, 3)
                s_lshl_b32 s53, s{S_E1}, 3
                s_or_b32 s53, s53, s{S_XCC}
                s_lshl_b32 s{S_T2}, s{S_GRP}, 7
                s_add_u32 s54, s{S_T2}, {ARRIVE}
                s_cmp_eq_u32 s{S_Q}, 0
                s_cbranch_scc0 L_noarrive
                s_lshl_b32 s{S_T2}, s{S_MEM}, 2
                s_add_u32 s{S_T2}, s{S_T2}, s54
                v_mov_b32 v{V_T1}, s53
                v_mov_b32 v{V_T2}, 0
                s_mov_b64 exec, 1
                buffer_store_dword v{V_T1}, v{V_T2}, s[{S_WS}:{S_WS+3}], s{S_T2} offen sc1
                s_mov_b64 exec, -1
                L_noarrive:
                """)
            elif op[0] == "touch":
                a(f"""
                v_and_b32 v{V_T1}, 31, v{V_LANE}
                v_lshlrev_b32 v{V_T1}, 7, v{V_T1}
                s_lshl_b32 s{S_T1}, s{S_GRP}, 18
                s_lshl_b32 s{S_T2}, s{S_MEM}, 14
                s_add_u32 s{S_T1}, s{S_T1}, s{S_T2}
                s_lshl_b32 s{S_T2}, s{S_Q}, 12
                s_add_u32 s{S_T1}, s{S_T1}, s{S_T2}
                buffer_load_dword v{V_T0}, v{V_T1}, s[{S_WS}:{S_WS+3}], s{S_T1} offen sc1
                """)
                if not cfg.get("noouttouch"):
                    a(f"""
                    s_mul_i32 s{S_T1}, s{S_BT}, {493*1024}
                    s_add_u32 s{S_T1}, s{S_T1}, s{S_COL2}
                    v_mov_b32 v14, 0
                    buffer_load_dword v15, v14, s[{S_OUT}:{S_OUT+3}], s{S_T1} offen
                    """)
            elif op[0] == "dbgload":
                a(f"""
                v_and_b32 v{V_T2}, 15, v{V_LANE}
                v_lshlrev_b32 v{V_T2}, 2, v{V_T2}
                buffer_load_dword v24, v{V_T2}, s[{S_WS}:{S_WS+3}], s54 offen sc1
                """)
            elif op[0] == "mode":
                a(f"""
                s_mov_b32 s{S_K}, 0
                s_lshr_b32 s{S_T3}, s53, 3
                L_cntpoll:
                v_lshrrev_b32 v25, 3, v24
                v_cmp_eq_u32 vcc, s{S_T3}, v25
                s_nop 4
                s_cmp_eq_u64 vcc, exec
                s_cbranch_scc1 L_cntok
                s_add_u32 s{S_K}, s{S_K}, 1
                s_cmp_ge_u32 s{S_K}, {POLL_MAX}
                s_cbranch_scc1 L_cntok
                s_sleep 2
                buffer_load_dword v24, v{V_T2}, s[{S_WS}:{S_WS+3}], s54 offen sc1
                s_waitcnt vmcnt(0)
                s_branch L_cntpoll
                L_cntok:
                v_cmp_eq_u32 vcc, s53, v24
                s_nop 4
                s_cmp_eq_u64 vcc, exec
                s_cselect_b32 s{S_MODE}, {0 if cfg.get('forceslow') else 1}, 0
                v_mov_b32 v{V_T1}, s{S_MODE}
                v_mov_b32 v{V_T2}, {MODEW}
                s_mov_b64 exec, 1
                ds_write_b32 v{V_T2}, v{V_T1}
                s_mov_b64 exec, -1
                s_waitcnt lgkmcnt(0)
                """)
        pos = marks[m]
        req = last_required(m)
        if m == 0:
            late_params(a)
            stamp(a, cfg, 2)
        else:
            assert req < pos
            n_after = sum(1 for op in flat[req + 1:pos] if op[0] not in optional)
            if m < 12: a(f"s_waitcnt vmcnt({n_after})")
        if m in (1, 3, 6, 9, 11): stamp(a, cfg, {1: 4, 3: 5, 6: 6, 9: 7, 11: 8}[m])
        a("s_barrier")

def compute(a, cfg):
    late_params(a)
    a(f"""
    v_and_b32 v{V_T0}, 15, v{V_LANE}             ; i / j
    v_lshrrev_b32 v{V_T1}, 4, v{V_LANE}          ; g
    v_mul_u32_u24 v{V_XL}, 1056, v{V_T0}
    v_lshl_add_u32 v{V_XL}, v{V_T1}, 4, v{V_XL}
    v_lshrrev_b32 v{V_T2}, 2, v{V_T0}
    v_lshl_add_u32 v{V_T2}, v{V_T1}, 3, v{V_T2}
    v_lshlrev_b32 v{V_WL}, 7, v{V_T2}
    v_bfe_u32 v{V_T2}, v{V_T0}, 3, 1
    v_and_b32 v{V_T3}, 1, v{V_T1}
    v_lshl_or_b32 v{V_T2}, v{V_T3}, 1, v{V_T2}
    v_xor_b32 v{V_T2}, s{S_Q}, v{V_T2}
    v_lshl_add_u32 v{V_WL}, v{V_T2}, 5, v{V_WL}
    v_and_b32 v{V_T3}, 3, v{V_T0}
    v_lshl_add_u32 v{V_WL}, v{V_T3}, 3, v{V_WL}
    v_add_u32 v{V_WL}, {WRING}, v{V_WL}
    v_mov_b32 v{V_XC}, v{V_XL}
    v_add_u32 v{V_XN}, 64, v{V_XL}
    v_mov_b32 v{V_W}, v{V_WL}
    v_mov_b32 v{V_T3}, {MODEW}
    s_mov_b32 s{S_SG}, 0
    s_mov_b32 s{S_K}, 0
    """)
    for r in range(32): a(f"v_mov_b32 v{ACC + r}, 0")
    store_setup(a)
    stamp(a, cfg, 2)
    a("s_waitcnt vmcnt(0) lgkmcnt(0)")
    stamp(a, cfg, 3)
    a("s_barrier")
    stamp(a, cfg, 4)
    stamp(a, cfg, 8, True)
    a(f"ds_read_b64_tr_b16 {vr(WB,2)}, v{V_W}")
    a(f"ds_read_b64_tr_b16 {vr(WB+2,2)}, v{V_W} offset:512")
    for m in range(8):
        a(f"ds_read_b128 {vr(XE + 4*m)}, v{V_XC} offset:{x_imm(0, m)}")
    a("L_kloop:")
    extras = {4: [(1, 0), (1, 1), (1, 2)], 5: [(1, 3), (1, 4), (1, 5)], 6: [(1, 6), (1, 7)],
              10: [(0, 0), (0, 1), (0, 2)], 11: [(0, 3), (0, 4), (0, 5)], 12: [(0, 6), (0, 7)]}
    for n in range(15):
        par = 0 if n < 8 else 1
        p = n if n < 8 else n - 8
        bank = XE if par == 0 else XO
        wbuf = WB + 4 * (n % 3)
        wnext = WB + 4 * ((n + 1) % 3)
        prev_extras = len(extras.get(n - 1, []))
        pre = []
        if n in (4, 9, 14):
            pre = [f"s_add_u32 s{S_SG}, s{S_SG}, {STAGE}",
                   f"s_cmp_eq_u32 s{S_SG}, {NSTG*STAGE}",
                   f"s_cselect_b32 s{S_SG}, 0, s{S_SG}",
                   f"v_add_u32 v{V_W}, s{S_SG}, v{V_WL}"]
        reads = []
        if n == 14: reads.append(f"ds_read_b32 v{V_MODE}, v{V_T3}")
        last_p = 6 if par == 0 else 5
        if p <= last_p:
            m = p + 8
            reads.append(f"ds_read_b128 {vr(bank + 4*(m % 9))}, v{V_XC} offset:{x_imm(par, m)}")
        toff = ((n + 1) % P) * 4096
        reads.append(f"ds_read_b64_tr_b16 {vr(wnext,2)}, v{V_W} offset:{toff}")
        reads.append(f"ds_read_b64_tr_b16 {vr(wnext+2,2)}, v{V_W} offset:{toff + 512}")
        for (epar, m) in extras.get(n, []):
            if epar == 1: reads.append(f"ds_read_b128 {vr(XO + 4*m)}, v{V_XC} offset:{x_imm(1, m)}")
            else: reads.append(f"ds_read_b128 {vr(XE + 4*m)}, v{V_XN} offset:{x_imm(0, m)}")
        post = []
        if n == 14:
            post = [f"s_add_u32 s{S_K}, s{S_K}, 1",
                    f"v_mov_b32 v{V_XC}, v{V_XN}",
                    f"s_add_u32 s{S_T1}, s{S_K}, 1",
                    f"s_lshr_b32 s{S_T2}, s{S_T1}, 1",
                    f"s_mul_i32 s{S_T2}, s{S_T2}, {2*XARR}",
                    f"s_and_b32 s{S_T1}, s{S_T1}, 1",
                    f"s_lshl_b32 s{S_T1}, s{S_T1}, 6",
                    f"s_add_u32 s{S_T1}, s{S_T1}, s{S_T2}",
                    f"v_add_u32 v{V_XN}, s{S_T1}, v{V_XL}",
                    f"s_cmp_lt_u32 s{S_K}, 4"]
        for x in pre: a(x)
        a(f"s_waitcnt lgkmcnt({prev_extras})")
        ri = 0
        for t in range(8):
            m = p + t
            a(f"v_mfma_f32_16x16x32_bf16 {vr(ACC + 4*t)}, {vr(wbuf)}, {vr(bank + 4*(m % 9))}, {vr(ACC + 4*t)}")
            if t == 0 and n in (4, 9, 14): a("s_barrier")
            if t < 7 and ri < len(reads):
                a(reads[ri]); ri += 1
            if n == 14 and t >= 3:
                for x in post[(t - 3) * 2:(t - 3) * 2 + 2]: a(x)
        assert ri == len(reads)
    a("s_cbranch_scc1 L_kloop")
    stamp(a, cfg, 9, True)
    stamp(a, cfg, 5)

def store_setup(a):
    a(f"""
    v_lshrrev_b32 v15, 4, v{V_LANE}
    v_and_b32 v14, 15, v{V_LANE}
    v_lshlrev_b32 v15, 14, v15
    v_lshl_add_u32 v14, v14, 4, v15
    s_lshl_b32 s{S_T0}, s{S_Q}, 16
    v_add_u32 v14, s{S_T0}, v14
    s_lshl_b32 s{S_T0}, s{S_GRP}, 18
    s_lshl_b32 s{S_T1}, s{S_MEM}, 10
    s_add_u32 s25, s{S_T0}, s{S_T1}
    s_lshl_b32 s{S_T1}, s{S_Q}, 4
    s_add_u32 s{S_T1}, s{S_T1}, s{S_MEM}
    s_lshl_b32 s{S_T1}, s{S_T1}, 2
    s_lshl_b32 s{S_T2}, s{S_GRP}, 8
    s_add_u32 s{S_T1}, s{S_T1}, s{S_T2}
    s_add_u32 s11, s{S_T1}, {FLAGS}              ; flag[group][q*16+member]
    """)

def store_partials(a, cfg):
    T = XE
    a("s_waitcnt lgkmcnt(0)")
    a(f"v_readfirstlane_b32 s{S_MODE}, v{V_MODE}")
    a("s_nop 3")
    a(f"s_cmp_eq_u32 s{S_MODE}, 1")
    a(f"s_cbranch_scc1 L_fast")
    for lab, sc in (("", " sc1"), ("L_fast:", "")):
        if lab: a(lab)
        for s in range(4):
            for e in range(2):
                t = 2 * s + e
                a(f"v_cvt_pk_bf16_f32 v{T + 4*s + 2*e}, v{ACC + 4*t}, v{ACC + 4*t + 1}")
                a(f"v_cvt_pk_bf16_f32 v{T + 4*s + 2*e + 1}, v{ACC + 4*t + 2}, v{ACC + 4*t + 3}")
            a(f"buffer_store_dwordx4 {vr(T + 4*s)}, v14, s[{S_WS}:{S_WS+3}], s25 offen offset:{s*256}{sc}")
        if not lab: a("s_branch L_stored")
    a("L_stored:")
    stamp(a, cfg, 6)
    a(f"s_waitcnt lgkmcnt(0)")
    a(f"s_add_u32 s{S_E1}, s{S_E1}, 1")
    a("L_setup:")
    final_setup(a, cfg, False)
    a(f"s_cmp_ge_u32 s{S_WAVE}, 4")
    a("s_cbranch_scc1 L_final")
    a(f"v_mov_b32 v{V_T3}, s{S_E1}")
    a("s_waitcnt vmcnt(0)")
    a(f"s_cmp_eq_u32 s{S_MODE}, 1")
    a("s_mov_b64 exec, 1")
    a("s_cbranch_scc1 L_fastflag")
    a(f"buffer_store_dword v{V_T3}, v{FV_ZERO}, s[{S_WS}:{S_WS+3}], s11 offen sc1")
    a("s_branch L_flagged")
    a("L_fastflag:")
    a(f"buffer_store_dword v{V_T3}, v{FV_ZERO}, s[{S_WS}:{S_WS+3}], s11 offen")
    a("L_flagged:")
    a("s_mov_b64 exec, -1")
    stamp(a, cfg, 7)

FV_A, FV_C, FV_BETA, FV_R2 = 64, 68, 72, 76
FV_GAM, FV_PAY, FV_ZERO, FV_OUT, FV_RW, FV_RR, FV_L = 84, 85, 86, 87, 88, 89, 90
F_Y, F_IN, F_T = 16, 20, 28

def final_setup(a, cfg, inc_epoch):
    a("s_waitcnt lgkmcnt(0)")
    if inc_epoch: a(f"s_add_u32 s{S_E1}, s{S_E1}, 1")
    for c in range(4):
        src = S_RAW + (c >> 1)
        a(f"s_lshl_b32 s{S_T0}, s{src}, 16" if c % 2 == 0 else f"s_and_b32 s{S_T0}, s{src}, 0xffff0000")
        srcb = S_RAW + 4 + (c >> 1)
        a(f"s_lshl_b32 s{S_T1}, s{srcb}, 16" if c % 2 == 0 else f"s_and_b32 s{S_T1}, s{srcb}, 0xffff0000")
        a(f"v_mov_b32 v{FV_C+c}, s{S_T0}")
        a(f"v_mov_b32 v{FV_BETA+c}, s{S_T1}")
        a(f"v_mov_b32 v{FV_R2+c}, 0")
    a(f"""
    v_and_b32 v{F_T}, 3, v{V_LANE}               ; c = lane&3
    v_mov_b32 v{F_T+1}, s{S_RAW+2}
    v_mov_b32 v{F_T+2}, s{S_RAW+3}
    v_cmp_gt_u32 vcc, 2, v{F_T}
    v_lshlrev_b32 v{FV_RR}, 5, v{F_T}
    v_add_u32 v{FV_RR}, {RED}, v{FV_RR}
    v_cndmask_b32 v{F_T+1}, v{F_T+2}, v{F_T+1}, vcc
    v_and_b32 v{F_T+2}, 1, v{V_LANE}
    v_lshlrev_b32 v{F_T+2}, 4, v{F_T+2}          ; 0 or 16
    v_sub_u32 v{F_T+2}, 16, v{F_T+2}
    v_lshlrev_b32 v{F_T+1}, v{F_T+2}, v{F_T+1}
    v_and_b32 v{FV_GAM}, 0xffff0000, v{F_T+1}
    v_bfe_u32 v{F_T}, v{V_LANE}, 2, 2            ; i>>2
    v_lshrrev_b32 v{F_T+1}, 4, v{V_LANE}         ; g
    v_cmp_eq_u32 vcc, v{F_T}, v{F_T+1}
    v_and_b32 v{F_T+2}, 1, v{V_LANE}
    v_lshlrev_b32 v{F_T+2}, 4, v{F_T+2}
    v_mov_b32 v{F_T+3}, 0x3f80
    v_lshlrev_b32 v{F_T+3}, v{F_T+2}, v{F_T+3}
    v_cndmask_b32 v{F_T+3}, 0, v{F_T+3}, vcc
    v_bfe_u32 v{F_T}, v{V_LANE}, 1, 1            ; (i>>1)&1
    v_cmp_eq_u32 vcc, 0, v{F_T}
    s_nop 1
    v_cndmask_b32 v{FV_A}, 0, v{F_T+3}, vcc
    v_cndmask_b32 v{FV_A+1}, v{F_T+3}, 0, vcc
    v_mov_b32 v{FV_A+2}, v{FV_A}
    v_mov_b32 v{FV_A+3}, v{FV_A+1}
    v_lshrrev_b32 v{F_T}, 4, v{V_LANE}
    v_and_b32 v{F_T+1}, 1, v{F_T}
    v_lshrrev_b32 v{F_T}, 1, v{F_T}
    v_lshl_or_b32 v{F_T}, v{F_T+1}, 1, v{F_T}
    v_lshlrev_b32 v{F_T}, 5, v{F_T}
    s_lshl_b32 s{S_T0}, s{S_WAVE}, 2
    s_add_u32 s{S_T0}, s{S_T0}, {RED}
    v_add_u32 v{FV_RW}, s{S_T0}, v{F_T}
    v_mov_b32 v{FV_ZERO}, 0
    v_lshlrev_b32 v{FV_PAY}, 3, v{V_LANE}
    s_lshr_b32 s{S_T1}, s{S_WAVE}, 1
    s_lshr_b32 s{S_T2}, s{S_MEM}, 2
    s_lshl_b32 s{S_T2}, s{S_T2}, 6
    s_lshl_b32 s{S_T3}, s{S_T1}, 4
    s_add_u32 s{S_T2}, s{S_T2}, s{S_T3}
    s_lshl_b32 s{S_T3}, s{S_GRP}, 8
    s_add_u32 s{S_T2}, s{S_T2}, s{S_T3}
    s_add_u32 s3, s{S_T2}, {FLAGS}
    s_lshl_b32 s{S_T0}, s{S_GRP}, 18
    s_lshl_b32 s{S_T2}, s{S_MEM}, 14
    s_add_u32 s{S_T0}, s{S_T0}, s{S_T2}
    s_lshl_b32 s{S_T2}, s{S_T1}, 12
    s_add_u32 s{S_T0}, s{S_T0}, s{S_T2}
    s_and_b32 s{S_T2}, s{S_WAVE}, 1
    s_lshl_b32 s{S_T3}, s{S_T2}, 9
    s_add_u32 s10, s{S_T0}, s{S_T3}
    s_lshl_b32 s{S_T1}, s{S_T1}, 7
    s_lshl_b32 s{S_T2}, s{S_T2}, 2
    s_add_u32 s{S_T1}, s{S_T1}, s{S_T2}
    v_bfe_u32 v{FV_L}, v{V_LANE}, 1, 4
    v_lshlrev_b32 v{FV_L}, 3, v{FV_L}
    v_lshrrev_b32 v{F_T+2}, 5, v{V_LANE}
    v_lshl_add_u32 v{FV_L}, v{F_T+2}, 1, v{FV_L}
    v_and_b32 v{F_T+2}, 1, v{V_LANE}
    v_add3_u32 v{FV_L}, v{FV_L}, v{F_T+2}, s{S_T1}
    s_movk_i32 s{S_T3}, 493
    v_cmp_gt_u32 s[{S_VALID}:{S_VALID+1}], s{S_T3}, v{FV_L}
    v_lshlrev_b32 v{FV_OUT}, 10, v{FV_L}
    s_mul_i32 s24, s{S_BT}, {493*1024}
    s_add_u32 s24, s24, s{S_COL2}
    """)

def fold_reduce(a, r, ldsoff):
    a(f"""
    s_nop 1
    v_permlane32_swap_b32 v{r}, v{r+1}
    v_permlane32_swap_b32 v{r+2}, v{r+3}
    v_add_f32 v{r}, v{r}, v{r+1}
    v_add_f32 v{r+2}, v{r+2}, v{r+3}
    s_nop 1
    v_permlane16_swap_b32 v{r}, v{r+2}
    v_add_f32 v{r}, v{r}, v{r+2}
    """)
    for sh in (8, 4, 2, 1):
        a("s_nop 1")
        a(f"v_add_f32_dpp v{r}, v{r}, v{r} row_ror:{sh} row_mask:0xf bank_mask:0xf")
    a(f"""
    s_mov_b32 exec_lo, 0x00010001
    s_mov_b32 exec_hi, 0x00010001
    ds_write_b32 v{FV_RW}, v{r} offset:{ldsoff}
    s_mov_b64 exec, -1
    s_waitcnt lgkmcnt(0)
    s_barrier
    ds_read_b128 {vr(r)}, v{FV_RR} offset:{ldsoff}
    ds_read_b128 {vr(r+4)}, v{FV_RR} offset:{ldsoff + 16}
    s_waitcnt lgkmcnt(0)
    v_pk_add_f32 {vr(r,2)}, {vr(r,2)}, {vr(r+2,2)}
    v_pk_add_f32 {vr(r+4,2)}, {vr(r+4,2)}, {vr(r+6,2)}
    v_pk_add_f32 {vr(r,2)}, {vr(r,2)}, {vr(r+4,2)}
    v_add_f32 v{r}, v{r}, v{r+1}
    """)

def final_phase(a, cfg):
    a("L_final:")
    a(f"""
    s_mov_b32 s{S_K}, 0
    L_flagpoll:
    buffer_load_dwordx4 v[20:23], v{FV_ZERO}, s[{S_WS}:{S_WS+3}], s3 offen sc1
    s_waitcnt vmcnt(0)
    v_xor_b32 v20, s{S_E1}, v20
    v_xor_b32 v21, s{S_E1}, v21
    v_xor_b32 v22, s{S_E1}, v22
    v_xor_b32 v23, s{S_E1}, v23
    v_or3_b32 v20, v20, v21, v22
    v_or_b32 v20, v20, v23
    s_add_u32 s{S_K}, s{S_K}, 1
    v_readfirstlane_b32 s{S_T1}, v20
    s_cmp_eq_u32 s{S_T1}, 0
    s_cbranch_scc1 L_flagok
    s_cmp_ge_u32 s{S_K}, {POLL_MAX}
    s_cbranch_scc1 L_flagok
    s_branch L_flagpoll
    L_flagok:
    """)
    stamp(a, cfg, 10)
    for ks in range(4):
        a(f"buffer_load_dwordx2 {vr(F_IN + 2*ks, 2)}, v{FV_PAY}, s[{S_WS}:{S_WS+3}], s10 offen offset:{ks*1024} sc1")
    a("s_waitcnt vmcnt(2)")
    a(f"v_mfma_f32_16x16x32_bf16 {vr(F_Y)}, {vr(FV_A)}, {vr(F_IN)}, {vr(FV_C)}")
    a("s_waitcnt vmcnt(0)")
    stamp(a, cfg, 11)
    a(f"v_mfma_f32_16x16x32_bf16 {vr(F_Y)}, {vr(FV_A)}, {vr(F_IN+4)}, {vr(F_Y)}")
    R = F_T
    a("s_nop 7")
    for c in range(4): a(f"v_cndmask_b32 v{R+c}, 0, v{F_Y+c}, s[{S_VALID}:{S_VALID+1}]")
    fold_reduce(a, R, 0)
    a(f"v_mul_f32 v{R}, {f2h(1/493)}, v{R}")
    a("s_nop 1")
    for c in range(4):
        a(f"v_subrev_f32_dpp v{F_Y+c}, v{R}, v{F_Y+c} quad_perm:[{c},{c},{c},{c}] row_mask:0xf bank_mask:0xf")
    a(f"s_mov_b64 exec, s[{S_VALID}:{S_VALID+1}]")
    for c in range(4): a(f"v_mul_f32 v{FV_R2+c}, v{F_Y+c}, v{F_Y+c}")
    a("s_mov_b64 exec, -1")
    fold_reduce(a, FV_R2, 128)
    a(f"v_mov_b32 v{R+1}, {f2h(1e-5)}")
    a(f"v_fmac_f32 v{R+1}, {f2h(1/493)}, v{FV_R2}")
    a(f"v_rsq_f32 v{R+1}, v{R+1}")
    a("s_nop 0")
    a(f"v_mul_f32 v{R+1}, v{R+1}, v{FV_GAM}")
    a("s_nop 1")
    for c in range(4):
        a(f"v_fmac_f32_dpp v{FV_BETA+c}, v{R+1}, v{F_Y+c} quad_perm:[{c},{c},{c},{c}] row_mask:0xf bank_mask:0xf")
    X = FV_BETA
    c1 = 2.302208198144325
    a(f"s_mov_b32 s{S_T0}, {f2h(c1*0.044715)}")
    a(f"v_mov_b32 v{R}, {f2h(c1)}")
    Z = R + 2
    for c in range(4): a(f"v_mul_f32 v{Z+c}, v{X+c}, v{X+c}")
    for c in range(4): a(f"v_fma_f32 v{Z+c}, v{Z+c}, s{S_T0}, v{R}")
    for c in range(4): a(f"v_mul_f32 v{Z+c}, v{X+c}, v{Z+c}")
    for c in range(4): a(f"v_exp_f32 v{Z+c}, -v{Z+c}")
    a("s_nop 0")
    for c in range(4): a(f"v_add_f32 v{Z+c}, 1.0, v{Z+c}")
    for c in range(4): a(f"v_rcp_f32 v{Z+c}, v{Z+c}")
    a("s_nop 0")
    for c in range(4): a(f"v_mul_f32 v{X+c}, v{X+c}, v{Z+c}")
    a(f"v_cvt_pk_bf16_f32 v{Z}, v{X}, v{X+1}")
    a(f"v_cvt_pk_bf16_f32 v{Z+1}, v{X+2}, v{X+3}")
    a(f"s_mov_b64 exec, s[{S_VALID}:{S_VALID+1}]")
    a(f"buffer_store_dwordx2 {vr(Z,2)}, v{FV_OUT}, s[{S_OUT}:{S_OUT+3}], s24 offen")
    a(f"""
    s_or_b32 s{S_T0}, s{S_MEM}, s{S_WAVE}
    s_cmp_eq_u32 s{S_T0}, 0
    s_cbranch_scc0 L_noepoch
    s_lshl_b32 s{S_T1}, s{S_GRP}, 7
    s_add_u32 s{S_T1}, s{S_T1}, {EPOCH}
    v_mov_b32 v{Z+2}, s{S_E1}
    s_mov_b64 exec, 1
    buffer_store_dword v{Z+2}, v{FV_ZERO}, s[{S_WS}:{S_WS+3}], s{S_T1} offen
    L_noepoch:
    """)
    stamp(a, cfg, 12)
    if cfg.get("stamps"): a("s_waitcnt vmcnt(0)")
    stamp(a, cfg, 13)
    stamp_flush(a, cfg)

HEADER = open("cdna_kernels/" + NAME + ".s.ref").read().split("; Override")[0]

def gen(cfg):
    a = A()
    out = HEADER
    out += "; Fused kernel: implicit-GEMM conv (split-K 4 over channels) -> in-launch all-to-all of bf16 partials -> GroupNorm over time -> GELU\n"
    out += f"; @launch grid=(256,1,1) block=(512,1,1) lds={LDS_BYTES}\n"
    a('.amdgcn_target "amdgcn-amd-amdhsa--gfx950"')
    a(".text")
    a(f".globl {KNAME}\n.p2align 8\n.type {KNAME},@function\n{KNAME}:")
    prologue(a, cfg)
    a(f"s_cmp_ge_u32 s{S_WAVE}, 4")
    a("s_cbranch_scc1 L_loader")
    compute(a, cfg)
    store_partials(a, cfg)
    final_phase(a, cfg)
    if cfg.get("pad"):
        a(f"""
        s_waitcnt vmcnt(0) lgkmcnt(0)
        L_pad:
        s_memrealtime s[96:97]
        s_waitcnt lgkmcnt(0)
        s_sub_u32 s96, s96, s98
        s_cmp_lt_u32 s96, {cfg['pad']}
        s_cbranch_scc1 L_pad
        """)
    a("s_endpgm")
    a("L_loader:")
    loader(a, cfg)
    stamp(a, cfg, 9)
    a("s_branch L_setup")
    a("L_end:")
    a("s_endpgm")
    out += a.text()
    out += f""".section .rodata,"a"
.p2align 6
.amdhsa_kernel {KNAME}
  .amdhsa_next_free_vgpr 136
  .amdhsa_next_free_sgpr 102
  .amdhsa_accum_offset 136
  .amdhsa_group_segment_fixed_size 0
  .amdhsa_kernarg_size 64
  .amdhsa_user_sgpr_count 2
  .amdhsa_user_sgpr_kernarg_segment_ptr 1
  .amdhsa_system_sgpr_workgroup_id_x 1
.end_amdhsa_kernel
"""
    return out

if __name__ == "__main__":
    ap = argparse.ArgumentParser()
    ap.add_argument("-o", default="/dev/stdout")
    ap.add_argument("--stamps", action="store_true")
    ap.add_argument("--map", type=int, default=1)
    ap.add_argument("--forceslow", action="store_true")
    ap.add_argument("--pad", type=int, default=0)
    ap.add_argument("--noprefetch", action="store_true")
    args = ap.parse_args()
    cfg = {"stamps": args.stamps, "map": args.map, "forceslow": args.forceslow, "pad": args.pad, "noprefetch": args.noprefetch}
    open(args.o, "w").write(gen(cfg))
```

```python
import sys, argparse, struct

NAME = "standalone__self_sup_conv_stem_hubert__speech"
KNAME = NAME + "_kernel"

XARR = 17 * 1056
WRING = 4 * XARR
P = 5
NSTG = 4
STAGE = P * 4096
RED = WRING + NSTG * STAGE
MODEW = RED + 256
CNTW = RED + 260
LDS_BYTES = RED + 512
TAPS = [0, 2, 4, 6, 8, 10, 12, 14, 1, 3, 5, 7, 9, 11, 13]
INBOX_GROUP = 16 * 16 * 1024
FLAGS = 16 * INBOX_GROUP
EPOCH = FLAGS + 16 * 256
ARRIVE = EPOCH + 16 * 128
STAMPS = 8 << 20
POLL_MAX = 200000

def f2h(x): return hex(struct.unpack('<I', struct.pack('<f', x))[0])

class A:
    def __init__(self): self.l = []
    def __call__(self, s):
        for x in s.strip("\n").split("\n"):
            x = x.strip()
            if x: self.l.append(x)
    def text(self):
        out = []
        for x in self.l:
            if x.endswith(":") or x.startswith(".") or x.startswith(";"): out.append(x)
            else: out.append("    " + x)
        return "\n".join(out) + "\n"

S_RAW = 4
S_X, S_W, S_WS, S_OUT = 12, 16, 20, 48
S_BT, S_NG, S_MT, S_KS, S_MEM, S_GRP, S_WAVE, S_Q = 26, 27, 28, 29, 30, 31, 32, 33
S_XO, S_XQ, S_XM, S_WO, S_WM = 34, 35, 36, 37, 38
S_COL2 = 39
S_T0, S_T1, S_T2, S_T3 = 40, 41, 42, 43
S_SG, S_K, S_MODE, S_XCC = 44, 45, 46, 47
S_E1 = 52
S_KA = 64
S_VALID = 80
S_EX = 82
V_LANE, V_OFFX, V_OFFW = 1, 2, 3
V_XL, V_WL, V_XC, V_XN, V_W, V_MODE = 4, 5, 6, 7, 8, 9
V_T0, V_T1, V_T2, V_T3 = 10, 11, 12, 13
ACC = 16
XE = 48
XO = 84
WB = 120

def stamp(a, cfg, idx, clk=False):
    if not cfg.get("stamps"): return
    if cfg.get("stamps") == 2 and idx >= 10: return
    a(f"{'s_memtime' if clk else 's_memrealtime'} s[84:85]")
    a("s_waitcnt lgkmcnt(0)")
    a(f"s_mov_b32 s{86+idx}, s84")
def stamp_flush(a, cfg):
    if not cfg.get("stamps"): return
    a("s_mov_b64 exec, -1")
    a(f"s_lshl_b32 s84, s2, 3")
    a(f"s_add_u32 s84, s84, s{S_WAVE}")
    a(f"s_lshl_b32 s84, s84, 6")
    a(f"s_add_u32 s84, s84, {STAMPS}")
    a(f"v_mov_b32 v0, 0")
    for i in range(16): a(f"v_mov_b32 v{100+i}, s{86+i}")
    for i in range(4):
        a(f"buffer_store_dwordx4 v[{100+4*i}:{103+4*i}], v0, s[{S_WS}:{S_WS+3}], s84 offen offset:{16*i}")

def vr(b, n=4): return f"v[{b}:{b+n-1}]"

def srd(a, base, ptr, nbytes):
    a(f"s_mov_b32 s{base}, s{ptr}")
    a(f"s_and_b32 s{base+1}, s{ptr+1}, 0xffff")
    if isinstance(nbytes, int): a(f"s_mov_b32 s{base+2}, {nbytes}")
    else: a(nbytes)
    a(f"s_mov_b32 s{base+3}, 0x20000")

def dma_x(a, half, par, i):
    arr = (2 * half + par) * XARR
    if i < 4:
        a(f"s_add_u32 m0, s{S_XM}, {arr + i * 4 * 1056}")
        a(f"s_add_u32 s{S_T0}, s{S_XQ}, {i * 65536 + par * 1024 + half * 128}")
    else:
        a(f"s_mov_b32 m0, {arr + 16 * 1056}")
        a(f"s_add_u32 s{S_T0}, s{S_XO}, {16 * 16384 + par * 1024 + half * 128}")
    a(f"buffer_load_dwordx4 v{V_OFFX}, s[{S_X}:{S_X+3}], s{S_T0} offen lds")

def dma_x16(a, half, par):
    arr = 2 * half + par
    lab = f"L_skipx{arr}"
    a(f"s_cmp_eq_u32 s{S_Q}, {arr}")
    a(f"s_cbranch_scc0 {lab}")
    dma_x(a, half, par, 4)
    a(f"{lab}:")

def dma_w(a, n):
    k, nl = divmod(n, 15)
    tap = TAPS[nl]
    slot = ((n // P) % NSTG) * STAGE + (n % P) * 4096
    a(f"s_add_u32 m0, s{S_WM}, {slot}")
    a(f"s_add_u32 s{S_T0}, s{S_WO}, {(tap * 512 + k * 32) * 1024}")
    a(f"buffer_load_dwordx4 v{V_OFFW}, s[{S_W}:{S_W+3}], s{S_T0} offen lds")

def x_imm(par, m): return par * XARR + (m >> 3) * 1056 + (m & 7) * 128

def prologue(a, cfg):
    a(f"""
    s_cmp_ge_u32 s2, 256
    s_cbranch_scc1 L_end
    """)
    if not cfg.get("noprefetch"):
        a(f"""
        s_getpc_b64 s[4:5]
        L_pc:
        v_lshrrev_b32 v132, 6, v0
        v_and_b32 v133, 7, v0
        v_lshl_add_u32 v132, v132, 3, v133
        v_lshlrev_b32 v132, 7, v132
        s_sub_u32 s4, s4, L_pc-{KNAME}
        s_subb_u32 s5, s5, 0
        v_min_u32 v132, L_end-{KNAME}, v132
        global_load_dword v133, v132, s[4:5]
        """)
    stamp(a, cfg, 0)
    if cfg.get("pad"):
        a("s_memrealtime s[98:99]")
    a(f"s_load_dwordx16 s[{S_KA}:{S_KA+15}], s[0:1], 0")
    if cfg.get("ldssync", 1):
        a(f"""
        v_mov_b32 v{V_T0}, {CNTW}
        v_mov_b32 v{V_T1}, 0
        ds_write_b32 v{V_T0}, v{V_T1}
        """)
    if cfg.get("map", 1) == 1:
        a(f"""
        s_and_b32 s24, s2, 7
        s_lshr_b32 s25, s2, 3
        s_and_b32 s{S_BT}, s24, 1
        s_and_b32 s{S_NG}, s24, 6
        s_lshr_b32 s{S_T0}, s25, 4
        s_add_u32 s{S_NG}, s{S_NG}, s{S_T0}
        """)
    elif cfg.get("map") == 0:
        a(f"""
        s_and_b32 s{S_NG}, s2, 7
        s_lshr_b32 s25, s2, 3
        s_lshr_b32 s{S_BT}, s25, 4
        """)
    else:
        a(f"""
        s_lshr_b32 s24, s2, 4
        s_and_b32 s25, s2, 15
        s_and_b32 s{S_BT}, s24, 1
        s_lshr_b32 s{S_NG}, s24, 1
        """)
    a(f"""
    s_lshr_b32 s{S_MT}, s25, 2
    s_and_b32 s{S_MT}, s{S_MT}, 3
    s_and_b32 s{S_KS}, s25, 3
    s_and_b32 s{S_MEM}, s25, 15
    s_lshl_b32 s{S_GRP}, s{S_BT}, 3
    s_add_u32 s{S_GRP}, s{S_GRP}, s{S_NG}
    v_lshrrev_b32 v{V_T0}, 6, v0
    v_and_b32 v{V_LANE}, 63, v0
    v_readfirstlane_b32 s{S_WAVE}, v{V_T0}
    v_lshrrev_b32 v{V_T0}, 3, v{V_LANE}          ; lane>>3
    v_and_b32 v{V_T1}, 7, v{V_LANE}              ; lane&7
    v_lshlrev_b32 v{V_OFFX}, 11, v{V_T0}
    v_lshl_add_u32 v{V_OFFX}, v{V_T1}, 4, v{V_OFFX}
    s_and_b32 s{S_Q}, s{S_WAVE}, 3
    s_mul_i32 s{S_XO}, s{S_BT}, 1024000
    s_add_u32 s{S_T2}, s{S_XO}, 1024000
    s_lshl_b32 s{S_T0}, s{S_MT}, 18
    s_add_u32 s{S_XO}, s{S_XO}, s{S_T0}
    s_lshl_b32 s{S_T0}, s{S_KS}, 8
    s_add_u32 s{S_XO}, s{S_XO}, s{S_T0}
    s_lshl_b32 s{S_T0}, s{S_Q}, 14
    s_add_u32 s{S_XQ}, s{S_XO}, s{S_T0}
    s_mul_i32 s{S_XM}, s{S_Q}, 1056
    s_lshl_b32 s{S_WO}, s{S_KS}, 17
    s_lshl_b32 s{S_T0}, s{S_Q}, 13
    s_add_u32 s{S_WO}, s{S_WO}, s{S_T0}
    s_lshl_b32 s{S_T0}, s{S_NG}, 7
    s_add_u32 s{S_WO}, s{S_WO}, s{S_T0}
    s_lshl_b32 s{S_WM}, s{S_Q}, 10
    s_add_u32 s{S_WM}, s{S_WM}, {WRING}
    s_lshl_b32 s{S_T1}, s{S_MEM}, 3
    s_add_u32 s{S_COL2}, s{S_T0}, s{S_T1}
    v_bfe_u32 v{V_T2}, v{V_LANE}, 4, 1
    s_and_b32 s{S_T1}, s{S_Q}, 1
    s_lshl_b32 s{S_T1}, s{S_T1}, 1
    v_or_b32 v{V_T2}, s{S_T1}, v{V_T2}
    v_lshrrev_b32 v{V_T3}, 1, v{V_T1}
    v_xor_b32 v{V_T2}, v{V_T3}, v{V_T2}
    v_lshlrev_b32 v{V_OFFW}, 10, v{V_T0}
    v_lshl_add_u32 v{V_OFFW}, v{V_T2}, 5, v{V_OFFW}
    v_and_b32 v{V_T3}, 1, v{V_LANE}
    v_lshl_add_u32 v{V_OFFW}, v{V_T3}, 4, v{V_OFFW}
    s_waitcnt lgkmcnt(0)
    """)
    if cfg.get("ldssync", 1): a("s_barrier")
    srd(a, S_X, S_KA + 0, f"s_mov_b32 s{S_X+2}, s{S_T2}")
    srd(a, S_W, S_KA + 2, 7864320)
    stamp(a, cfg, 1)
    a(f"""
    s_lshr_b32 s55, s{S_WAVE}, 2                 ; role
    s_mul_i32 s56, s55, {XARR}
    s_add_u32 s56, s56, s{S_XM}
    s_lshl_b32 s57, s55, 10
    s_add_u32 s57, s57, s{S_XQ}
    """)
    for i in range(4):
        a(f"s_add_u32 m0, s56, {i * 4 * 1056}")
        a(f"s_add_u32 s{S_T0}, s57, {i * 65536}")
        a(f"buffer_load_dwordx4 v{V_OFFX}, s[{S_X}:{S_X+3}], s{S_T0} offen lds")
    a(f"""
    s_mul_i32 s58, s55, {10 * 524288}
    s_add_u32 s58, s58, s{S_WO}
    s_mul_i32 s59, s55, {5 * 524288}
    s_sub_u32 s59, s{S_WO}, s59
    s_mul_i32 s60, s55, {STAGE}
    s_add_u32 s60, s60, s{S_WM}
    s_cmp_eq_u32 s{S_Q}, s55
    s_cbranch_scc0 L_skipx01
    s_mul_i32 s{S_T1}, s55, {XARR}
    s_add_u32 m0, s{S_T1}, {16 * 1056}
    s_lshl_b32 s{S_T1}, s55, 10
    s_add_u32 s{S_T1}, s{S_T1}, s{S_XO}
    s_add_u32 s{S_T0}, s{S_T1}, {16 * 16384}
    buffer_load_dwordx4 v{V_OFFX}, s[{S_X}:{S_X+3}], s{S_T0} offen lds
    L_skipx01:
    """)
    for j in range(5):
        a(f"s_add_u32 m0, s60, {j * 4096}")
        a(f"s_add_u32 s{S_T0}, s{58 if j < 3 else 59}, {TAPS[j] * 524288}")
        a(f"buffer_load_dwordx4 v{V_OFFW}, s[{S_W}:{S_W+3}], s{S_T0} offen lds")

def late_params(a):
    srd(a, S_WS, S_KA + 14, 268435456)
    srd(a, S_OUT, S_KA + 10, 2 * 493 * 512 * 2)
    a(f"s_load_dwordx2 s[{S_RAW}:{S_RAW+1}], s[{S_KA+4}:{S_KA+5}], s{S_COL2}")
    a(f"s_load_dwordx2 s[{S_RAW+2}:{S_RAW+3}], s[{S_KA+6}:{S_KA+7}], s{S_COL2}")
    a(f"s_load_dwordx2 s[{S_RAW+4}:{S_RAW+5}], s[{S_KA+8}:{S_KA+9}], s{S_COL2}")
    a(f"s_lshl_b32 s{S_T1}, s{S_GRP}, 7")
    a(f"s_add_u32 s{S_T1}, s{S_T1}, {EPOCH}")
    a(f"s_load_dword s{S_E1}, s[{S_KA+14}:{S_KA+15}], s{S_T1}")

def loader(a, cfg):
    def xop(half, par, i): return ("x", half, par, i) if i < 4 else ("x16", half, par)
    def st(s): return [("w", n) for n in range(s * P, (s + 1) * P)] if s < 12 else []
    PFD = cfg.get("pfd", 6)
    def pf(s): return [("pf", s)] if (PFD and 4 <= s <= 11) else []
    xpf = [("xpf",)] if cfg.get("xpf") else []
    base = [
        [("done", xop(0, 1, i)) for i in range(5)] + [("done", op) for op in st(1)] + st(2) + st(3),
        [("arrive",)],
        st(4) + [xop(1, 0, 0), xop(1, 0, 1)],
        st(5) + [xop(1, 0, 2), xop(1, 0, 3)],
        [xop(1, 0, 4)] + st(6) + [xop(1, 1, 0)],
        st(7) + [xop(1, 1, 1), xop(1, 1, 2)],
        [xop(1, 1, 3), xop(1, 1, 4)] + st(8) + [("touch",), ("nop_vm",)],
        [("dbgload",)] + st(9),
        st(10),
        st(11),
        [("mode",)],
        [], [],
    ]
    phases = []
    for m, ph in enumerate(base):
        extra = []
        if m == 0:
            if PFD: extra = [("pfsetup",)]
            for s_ in range(4, PFD): extra += pf(s_)
            extra += xpf
        elif PFD:
            extra = pf(m - 1 + PFD)
        if m == 1: ph = extra + ph
        else: ph = ph + extra
        phases.append(ph)
    optional = ("x16", "mode", "arrive", "pfsetup")
    flat, marks = [], []
    for ph in phases:
        flat += [op[1] if op[0] == "done" else op for op in ph]; marks.append(len(flat))
    def last_required(m):
        req = -1
        for idx, op in enumerate(flat):
            if op[0] == "w" and op[1] // P <= m: req = idx
            if op[0] in ("x", "x16"):
                need = {(0, 1): 1, (1, 0): 5, (1, 1): 7}[(op[1], op[2])]
                if need <= m: req = max(req, idx)
            if op[0] == "dbgload" and m >= 9: req = max(req, idx)
        return req
    for m, ph in enumerate(phases):
        for op in ph:
            if op[0] in ("done", "nop_vm"): continue
            if op[0] == "w": dma_w(a, op[1])
            elif op[0] == "x": dma_x(a, op[1], op[2], op[3])
            elif op[0] == "x16": dma_x16(a, op[1], op[2])
            elif op[0] == "arrive":
                a(f"""
                s_waitcnt lgkmcnt(0)
                s_add_u32 s{S_E1}, s{S_E1}, 1
                s_getreg_b32 s{S_XCC}, hwreg(HW_REG_XCC_ID, 0, 3)
                s_lshl_b32 s53, s{S_E1}, 3
                s_or_b32 s53, s53, s{S_XCC}
                s_lshl_b32 s{S_T2}, s{S_GRP}, 7
                s_add_u32 s54, s{S_T2}, {ARRIVE}
                s_cmp_eq_u32 s{S_Q}, 0
                s_cbranch_scc0 L_noarrive
                s_lshl_b32 s{S_T2}, s{S_MEM}, 2
                s_add_u32 s{S_T2}, s{S_T2}, s54
                v_mov_b32 v{V_T1}, s53
                v_mov_b32 v{V_T2}, 0
                s_mov_b64 exec, 1
                buffer_store_dword v{V_T1}, v{V_T2}, s[{S_WS}:{S_WS+3}], s{S_T2} offen sc1
                s_mov_b64 exec, -1
                L_noarrive:
                """)
            elif op[0] == "pfsetup":
                a(f"""
                s_mul_i32 s{S_T1}, s{S_MT}, 40
                s_mul_i32 s{S_T2}, s{S_Q}, 10
                s_add_u32 s{S_T1}, s{S_T1}, s{S_T2}
                v_min_u32 v14, 9, v{V_LANE}
                v_add_u32 v14, s{S_T1}, v14
                v_lshrrev_b32 v15, 5, v14                    ; j
                v_and_b32 v14, 31, v14
                v_lshlrev_b32 v14, 10, v14                   ; row*1024
                s_lshl_b32 s61, s{S_KS}, 17
                s_lshl_b32 s{S_T2}, s{S_NG}, 7
                s_add_u32 s61, s61, s{S_T2}
                """)
                for c in range(3):
                    a(f"""
                    v_add_u32 v16, {5*c}, v15                ; nl
                    v_lshlrev_b32 v17, 1, v16
                    v_cmp_gt_u32 vcc, 8, v16
                    v_subrev_u32 v18, 15, v17
                    s_nop 0
                    v_cndmask_b32 v17, v18, v17, vcc         ; tap
                    v_lshl_or_b32 v{20+c}, v17, 19, v14
                    """)
            elif op[0] == "pf":
                s_ = op[1]
                a(f"s_add_u32 s{S_T1}, s61, {(s_ // 3) * 32768}")
                a(f"buffer_load_dword v19, v{20 + s_ % 3}, s[{S_W}:{S_W+3}], s{S_T1} offen")
            elif op[0] == "xpf":
                a(f"""
                s_lshr_b32 s{S_T2}, s2, 7
                s_mul_i32 s{S_T2}, s{S_T2}, 136
                s_mul_i32 s{S_T3}, s{S_Q}, 34
                s_add_u32 s{S_T2}, s{S_T2}, s{S_T3}
                s_lshl_b32 s{S_T2}, s{S_T2}, 10
                s_add_u32 s{S_T2}, s{S_T2}, s{S_XO}
                s_add_u32 s{S_T2}, s{S_T2}, 128
                v_min_u32 v15, 33, v{V_LANE}
                v_lshlrev_b32 v15, 10, v15
                buffer_load_dword v19, v15, s[{S_X}:{S_X+3}], s{S_T2} offen
                """)
            elif op[0] == "touch":
                a(f"""
                v_and_b32 v{V_T1}, 31, v{V_LANE}
                v_lshlrev_b32 v{V_T1}, 7, v{V_T1}
                s_lshl_b32 s{S_T1}, s{S_GRP}, 18
                s_lshl_b32 s{S_T2}, s{S_MEM}, 14
                s_add_u32 s{S_T1}, s{S_T1}, s{S_T2}
                s_lshl_b32 s{S_T2}, s{S_Q}, 12
                s_add_u32 s{S_T1}, s{S_T1}, s{S_T2}
                buffer_load_dword v{V_T0}, v{V_T1}, s[{S_WS}:{S_WS+3}], s{S_T1} offen sc1
                """)
                if not cfg.get("noouttouch"):
                    a(f"""
                    s_mul_i32 s{S_T1}, s{S_BT}, {493*1024}
                    s_add_u32 s{S_T1}, s{S_T1}, s{S_COL2}
                    v_mov_b32 v14, 0
                    buffer_load_dword v15, v14, s[{S_OUT}:{S_OUT+3}], s{S_T1} offen
                    """)
            elif op[0] == "dbgload":
                a(f"""
                v_and_b32 v{V_T2}, 15, v{V_LANE}
                v_lshlrev_b32 v{V_T2}, 2, v{V_T2}
                buffer_load_dword v24, v{V_T2}, s[{S_WS}:{S_WS+3}], s54 offen sc1
                """)
            elif op[0] == "mode":
                a(f"""
                s_mov_b32 s{S_K}, 0
                s_lshr_b32 s{S_T3}, s53, 3
                L_cntpoll:
                v_lshrrev_b32 v25, 3, v24
                v_cmp_eq_u32 vcc, s{S_T3}, v25
                s_nop 4
                s_cmp_eq_u64 vcc, exec
                s_cbranch_scc1 L_cntok
                s_add_u32 s{S_K}, s{S_K}, 1
                s_cmp_ge_u32 s{S_K}, {POLL_MAX}
                s_cbranch_scc1 L_cntok
                s_sleep 2
                buffer_load_dword v24, v{V_T2}, s[{S_WS}:{S_WS+3}], s54 offen sc1
                s_waitcnt vmcnt(0)
                s_branch L_cntpoll
                L_cntok:
                v_cmp_eq_u32 vcc, s53, v24
                s_nop 4
                s_cmp_eq_u64 vcc, exec
                s_cselect_b32 s{S_MODE}, {0 if cfg.get('forceslow') else 1}, 0
                v_mov_b32 v{V_T1}, s{S_MODE}
                v_mov_b32 v{V_T2}, {MODEW}
                s_mov_b64 exec, 1
                ds_write_b32 v{V_T2}, v{V_T1}
                s_mov_b64 exec, -1
                s_waitcnt lgkmcnt(0)
                """)
        pos = marks[m]
        req = last_required(m)
        if m == 0:
            late_params(a)
            stamp(a, cfg, 2)
        else:
            assert req < pos
            n_after = sum(1 for op in flat[req + 1:pos] if op[0] not in optional)
            if m < 12: a(f"s_waitcnt vmcnt({n_after})")
        if m in (1, 3, 6, 9, 11): stamp(a, cfg, {1: 4, 3: 5, 6: 6, 9: 7, 11: 8}[m])
        if not (m == 0 and cfg.get("ldssync", 1)): a("s_barrier")

def compute(a, cfg):
    late_params(a)
    a(f"""
    v_and_b32 v{V_T0}, 15, v{V_LANE}             ; i / j
    v_lshrrev_b32 v{V_T1}, 4, v{V_LANE}          ; g
    v_mul_u32_u24 v{V_XL}, 1056, v{V_T0}
    v_lshl_add_u32 v{V_XL}, v{V_T1}, 4, v{V_XL}
    v_lshrrev_b32 v{V_T2}, 2, v{V_T0}
    v_lshl_add_u32 v{V_T2}, v{V_T1}, 3, v{V_T2}
    v_lshlrev_b32 v{V_WL}, 7, v{V_T2}
    v_bfe_u32 v{V_T2}, v{V_T0}, 3, 1
    v_and_b32 v{V_T3}, 1, v{V_T1}
    v_lshl_or_b32 v{V_T2}, v{V_T3}, 1, v{V_T2}
    v_xor_b32 v{V_T2}, s{S_Q}, v{V_T2}
    v_lshl_add_u32 v{V_WL}, v{V_T2}, 5, v{V_WL}
    v_and_b32 v{V_T3}, 3, v{V_T0}
    v_lshl_add_u32 v{V_WL}, v{V_T3}, 3, v{V_WL}
    v_add_u32 v{V_WL}, {WRING}, v{V_WL}
    v_mov_b32 v{V_XC}, v{V_XL}
    v_add_u32 v{V_XN}, 64, v{V_XL}
    v_mov_b32 v{V_W}, v{V_WL}
    v_mov_b32 v{V_T3}, {MODEW}
    s_mov_b32 s{S_SG}, 0
    s_mov_b32 s{S_K}, 0
    """)
    for r in range(32): a(f"v_mov_b32 v{ACC + r}, 0")
    store_setup(a)
    stamp(a, cfg, 2)
    a("s_waitcnt vmcnt(0) lgkmcnt(0)")
    stamp(a, cfg, 3)
    if cfg.get("ldssync", 1):
        a(f"""
        v_mov_b32 v{V_T0}, {CNTW}
        v_mov_b32 v{V_T1}, 1
        s_mov_b64 exec, 1
        ds_add_u32 v{V_T0}, v{V_T1}
        s_mov_b64 exec, -1
        L_b0spin:
        ds_read_b32 v{V_T1}, v{V_T0}
        s_waitcnt lgkmcnt(0)
        v_readfirstlane_b32 s{S_T0}, v{V_T1}
        s_cmp_ge_u32 s{S_T0}, 4
        s_cbranch_scc0 L_b0spin
        """)
    else:
        a("s_barrier")
    stamp(a, cfg, 4)
    stamp(a, cfg, 8, True)
    a(f"ds_read_b64_tr_b16 {vr(WB,2)}, v{V_W}")
    a(f"ds_read_b64_tr_b16 {vr(WB+2,2)}, v{V_W} offset:512")
    for m in range(8):
        a(f"ds_read_b128 {vr(XE + 4*m)}, v{V_XC} offset:{x_imm(0, m)}")
    a("L_kloop:")
    extras = {4: [(1, 0), (1, 1), (1, 2)], 5: [(1, 3), (1, 4), (1, 5)], 6: [(1, 6), (1, 7)],
              10: [(0, 0), (0, 1), (0, 2)], 11: [(0, 3), (0, 4), (0, 5)], 12: [(0, 6), (0, 7)]}
    for n in range(15):
        par = 0 if n < 8 else 1
        p = n if n < 8 else n - 8
        bank = XE if par == 0 else XO
        wbuf = WB + 4 * (n % 3)
        wnext = WB + 4 * ((n + 1) % 3)
        prev_extras = len(extras.get(n - 1, []))
        pre = []
        if n in (4, 9, 14):
            pre = [f"s_add_u32 s{S_SG}, s{S_SG}, {STAGE}",
                   f"s_cmp_eq_u32 s{S_SG}, {NSTG*STAGE}",
                   f"s_cselect_b32 s{S_SG}, 0, s{S_SG}",
                   f"v_add_u32 v{V_W}, s{S_SG}, v{V_WL}"]
        reads = []
        if n == 14: reads.append(f"ds_read_b32 v{V_MODE}, v{V_T3}")
        last_p = 6 if par == 0 else 5
        if p <= last_p:
            m = p + 8
            reads.append(f"ds_read_b128 {vr(bank + 4*(m % 9))}, v{V_XC} offset:{x_imm(par, m)}")
        toff = ((n + 1) % P) * 4096
        reads.append(f"ds_read_b64_tr_b16 {vr(wnext,2)}, v{V_W} offset:{toff}")
        reads.append(f"ds_read_b64_tr_b16 {vr(wnext+2,2)}, v{V_W} offset:{toff + 512}")
        for (epar, m) in extras.get(n, []):
            if epar == 1: reads.append(f"ds_read_b128 {vr(XO + 4*m)}, v{V_XC} offset:{x_imm(1, m)}")
            else: reads.append(f"ds_read_b128 {vr(XE + 4*m)}, v{V_XN} offset:{x_imm(0, m)}")
        post = []
        if n == 14:
            post = [f"s_add_u32 s{S_K}, s{S_K}, 1",
                    f"v_mov_b32 v{V_XC}, v{V_XN}",
                    f"s_add_u32 s{S_T1}, s{S_K}, 1",
                    f"s_lshr_b32 s{S_T2}, s{S_T1}, 1",
                    f"s_mul_i32 s{S_T2}, s{S_T2}, {2*XARR}",
                    f"s_and_b32 s{S_T1}, s{S_T1}, 1",
                    f"s_lshl_b32 s{S_T1}, s{S_T1}, 6",
                    f"s_add_u32 s{S_T1}, s{S_T1}, s{S_T2}",
                    f"v_add_u32 v{V_XN}, s{S_T1}, v{V_XL}",
                    f"s_cmp_lt_u32 s{S_K}, 4"]
        for x in pre: a(x)
        a(f"s_waitcnt lgkmcnt({prev_extras})")
        ri = 0
        for t in range(8):
            m = p + t
            a(f"v_mfma_f32_16x16x32_bf16 {vr(ACC + 4*t)}, {vr(wbuf)}, {vr(bank + 4*(m % 9))}, {vr(ACC + 4*t)}")
            if t == 0 and n in (4, 9, 14): a("s_barrier")
            if t < 7 and ri < len(reads):
                a(reads[ri]); ri += 1
            if n == 14 and t >= 3:
                for x in post[(t - 3) * 2:(t - 3) * 2 + 2]: a(x)
        assert ri == len(reads)
    if cfg.get("stamps") == 2:
        a(f"""
        s_cselect_b32 s100, 1, 0
        s_memtime s[84:85]
        s_waitcnt lgkmcnt(0)
        s_cmp_eq_u32 s{S_K}, 1
        s_cselect_b32 s96, s84, s96
        s_cmp_eq_u32 s{S_K}, 2
        s_cselect_b32 s97, s84, s97
        s_cmp_eq_u32 s{S_K}, 3
        s_cselect_b32 s98, s84, s98
        s_cmp_eq_u32 s100, 1
        """)
    a("s_cbranch_scc1 L_kloop")
    stamp(a, cfg, 9, True)
    stamp(a, cfg, 5)

def store_setup(a):
    a(f"""
    v_lshrrev_b32 v15, 4, v{V_LANE}
    v_and_b32 v14, 15, v{V_LANE}
    v_lshlrev_b32 v15, 14, v15
    v_lshl_add_u32 v14, v14, 4, v15
    s_lshl_b32 s{S_T0}, s{S_Q}, 16
    v_add_u32 v14, s{S_T0}, v14
    s_lshl_b32 s{S_T0}, s{S_GRP}, 18
    s_lshl_b32 s{S_T1}, s{S_MEM}, 10
    s_add_u32 s25, s{S_T0}, s{S_T1}
    s_lshl_b32 s{S_T1}, s{S_Q}, 4
    s_add_u32 s{S_T1}, s{S_T1}, s{S_MEM}
    s_lshl_b32 s{S_T1}, s{S_T1}, 2
    s_lshl_b32 s{S_T2}, s{S_GRP}, 8
    s_add_u32 s{S_T1}, s{S_T1}, s{S_T2}
    s_add_u32 s11, s{S_T1}, {FLAGS}              ; flag[group][q*16+member]
    """)

def store_partials(a, cfg):
    T = XE
    a("s_waitcnt lgkmcnt(0)")
    a(f"v_readfirstlane_b32 s{S_MODE}, v{V_MODE}")
    a("s_nop 3")
    a(f"s_cmp_eq_u32 s{S_MODE}, 1")
    a(f"s_cbranch_scc1 L_fast")
    for lab, sc in (("", " sc1"), ("L_fast:", "")):
        if lab: a(lab)
        for s in range(4):
            for e in range(2):
                t = 2 * s + e
                a(f"v_cvt_pk_bf16_f32 v{T + 4*s + 2*e}, v{ACC + 4*t}, v{ACC + 4*t + 1}")
                a(f"v_cvt_pk_bf16_f32 v{T + 4*s + 2*e + 1}, v{ACC + 4*t + 2}, v{ACC + 4*t + 3}")
            a(f"buffer_store_dwordx4 {vr(T + 4*s)}, v14, s[{S_WS}:{S_WS+3}], s25 offen offset:{s*256}{sc}")
        if not lab: a("s_branch L_stored")
    a("L_stored:")
    stamp(a, cfg, 6)
    a(f"s_waitcnt lgkmcnt(0)")
    a(f"s_add_u32 s{S_E1}, s{S_E1}, 1")
    a("L_setup:")
    final_setup(a, cfg, False)
    a(f"s_cmp_ge_u32 s{S_WAVE}, 4")
    a("s_cbranch_scc1 L_final")
    a(f"v_mov_b32 v{V_T3}, s{S_E1}")
    a("s_waitcnt vmcnt(0)")
    a(f"s_cmp_eq_u32 s{S_MODE}, 1")
    a("s_mov_b64 exec, 1")
    a("s_cbranch_scc1 L_fastflag")
    a(f"buffer_store_dword v{V_T3}, v{FV_ZERO}, s[{S_WS}:{S_WS+3}], s11 offen sc1")
    a("s_branch L_flagged")
    a("L_fastflag:")
    a(f"buffer_store_dword v{V_T3}, v{FV_ZERO}, s[{S_WS}:{S_WS+3}], s11 offen")
    a("L_flagged:")
    a("s_mov_b64 exec, -1")
    stamp(a, cfg, 7)

FV_A, FV_C, FV_BETA, FV_R2 = 64, 68, 72, 76
FV_GAM, FV_PAY, FV_ZERO, FV_OUT, FV_RW, FV_RR, FV_L = 84, 85, 86, 87, 88, 89, 90
F_Y, F_IN, F_T = 16, 20, 28

def final_setup(a, cfg, inc_epoch):
    a("s_waitcnt lgkmcnt(0)")
    if inc_epoch: a(f"s_add_u32 s{S_E1}, s{S_E1}, 1")
    for c in range(4):
        src = S_RAW + (c >> 1)
        a(f"s_lshl_b32 s{S_T0}, s{src}, 16" if c % 2 == 0 else f"s_and_b32 s{S_T0}, s{src}, 0xffff0000")
        srcb = S_RAW + 4 + (c >> 1)
        a(f"s_lshl_b32 s{S_T1}, s{srcb}, 16" if c % 2 == 0 else f"s_and_b32 s{S_T1}, s{srcb}, 0xffff0000")
        a(f"v_mov_b32 v{FV_C+c}, s{S_T0}")
        a(f"v_mov_b32 v{FV_BETA+c}, s{S_T1}")
        a(f"v_mov_b32 v{FV_R2+c}, 0")
    a(f"""
    v_and_b32 v{F_T}, 3, v{V_LANE}               ; c = lane&3
    v_mov_b32 v{F_T+1}, s{S_RAW+2}
    v_mov_b32 v{F_T+2}, s{S_RAW+3}
    v_cmp_gt_u32 vcc, 2, v{F_T}
    v_lshlrev_b32 v{FV_RR}, 5, v{F_T}
    v_add_u32 v{FV_RR}, {RED}, v{FV_RR}
    v_cndmask_b32 v{F_T+1}, v{F_T+2}, v{F_T+1}, vcc
    v_and_b32 v{F_T+2}, 1, v{V_LANE}
    v_lshlrev_b32 v{F_T+2}, 4, v{F_T+2}          ; 0 or 16
    v_sub_u32 v{F_T+2}, 16, v{F_T+2}
    v_lshlrev_b32 v{F_T+1}, v{F_T+2}, v{F_T+1}
    v_and_b32 v{FV_GAM}, 0xffff0000, v{F_T+1}
    v_bfe_u32 v{F_T}, v{V_LANE}, 2, 2            ; i>>2
    v_lshrrev_b32 v{F_T+1}, 4, v{V_LANE}         ; g
    v_cmp_eq_u32 vcc, v{F_T}, v{F_T+1}
    v_and_b32 v{F_T+2}, 1, v{V_LANE}
    v_lshlrev_b32 v{F_T+2}, 4, v{F_T+2}
    v_mov_b32 v{F_T+3}, 0x3f80
    v_lshlrev_b32 v{F_T+3}, v{F_T+2}, v{F_T+3}
    v_cndmask_b32 v{F_T+3}, 0, v{F_T+3}, vcc
    v_bfe_u32 v{F_T}, v{V_LANE}, 1, 1            ; (i>>1)&1
    v_cmp_eq_u32 vcc, 0, v{F_T}
    s_nop 1
    v_cndmask_b32 v{FV_A}, 0, v{F_T+3}, vcc
    v_cndmask_b32 v{FV_A+1}, v{F_T+3}, 0, vcc
    v_mov_b32 v{FV_A+2}, v{FV_A}
    v_mov_b32 v{FV_A+3}, v{FV_A+1}
    v_lshrrev_b32 v{F_T}, 4, v{V_LANE}
    v_and_b32 v{F_T+1}, 1, v{F_T}
    v_lshrrev_b32 v{F_T}, 1, v{F_T}
    v_lshl_or_b32 v{F_T}, v{F_T+1}, 1, v{F_T}
    v_lshlrev_b32 v{F_T}, 5, v{F_T}
    s_lshl_b32 s{S_T0}, s{S_WAVE}, 2
    s_add_u32 s{S_T0}, s{S_T0}, {RED}
    v_add_u32 v{FV_RW}, s{S_T0}, v{F_T}
    v_mov_b32 v{FV_ZERO}, 0
    v_lshlrev_b32 v{FV_PAY}, 3, v{V_LANE}
    s_lshr_b32 s{S_T1}, s{S_WAVE}, 1
    s_lshr_b32 s{S_T2}, s{S_MEM}, 2
    s_lshl_b32 s{S_T2}, s{S_T2}, 6
    s_lshl_b32 s{S_T3}, s{S_T1}, 4
    s_add_u32 s{S_T2}, s{S_T2}, s{S_T3}
    s_lshl_b32 s{S_T3}, s{S_GRP}, 8
    s_add_u32 s{S_T2}, s{S_T2}, s{S_T3}
    s_add_u32 s3, s{S_T2}, {FLAGS}
    s_lshl_b32 s{S_T0}, s{S_GRP}, 18
    s_lshl_b32 s{S_T2}, s{S_MEM}, 14
    s_add_u32 s{S_T0}, s{S_T0}, s{S_T2}
    s_lshl_b32 s{S_T2}, s{S_T1}, 12
    s_add_u32 s{S_T0}, s{S_T0}, s{S_T2}
    s_and_b32 s{S_T2}, s{S_WAVE}, 1
    s_lshl_b32 s{S_T3}, s{S_T2}, 9
    s_add_u32 s10, s{S_T0}, s{S_T3}
    s_lshl_b32 s{S_T1}, s{S_T1}, 7
    s_lshl_b32 s{S_T2}, s{S_T2}, 2
    s_add_u32 s{S_T1}, s{S_T1}, s{S_T2}
    v_bfe_u32 v{FV_L}, v{V_LANE}, 1, 4
    v_lshlrev_b32 v{FV_L}, 3, v{FV_L}
    v_lshrrev_b32 v{F_T+2}, 5, v{V_LANE}
    v_lshl_add_u32 v{FV_L}, v{F_T+2}, 1, v{FV_L}
    v_and_b32 v{F_T+2}, 1, v{V_LANE}
    v_add3_u32 v{FV_L}, v{FV_L}, v{F_T+2}, s{S_T1}
    s_movk_i32 s{S_T3}, 493
    v_cmp_gt_u32 s[{S_VALID}:{S_VALID+1}], s{S_T3}, v{FV_L}
    v_lshlrev_b32 v{FV_OUT}, 10, v{FV_L}
    s_mul_i32 s24, s{S_BT}, {493*1024}
    s_add_u32 s24, s24, s{S_COL2}
    """)

def fold_reduce(a, r, ldsoff):
    a(f"""
    s_nop 1
    v_permlane32_swap_b32 v{r}, v{r+1}
    v_permlane32_swap_b32 v{r+2}, v{r+3}
    v_add_f32 v{r}, v{r}, v{r+1}
    v_add_f32 v{r+2}, v{r+2}, v{r+3}
    s_nop 1
    v_permlane16_swap_b32 v{r}, v{r+2}
    v_add_f32 v{r}, v{r}, v{r+2}
    """)
    for sh in (8, 4, 2, 1):
        a("s_nop 1")
        a(f"v_add_f32_dpp v{r}, v{r}, v{r} row_ror:{sh} row_mask:0xf bank_mask:0xf")
    a(f"""
    s_mov_b32 exec_lo, 0x00010001
    s_mov_b32 exec_hi, 0x00010001
    ds_write_b32 v{FV_RW}, v{r} offset:{ldsoff}
    s_mov_b64 exec, -1
    s_waitcnt lgkmcnt(0)
    s_barrier
    ds_read_b128 {vr(r)}, v{FV_RR} offset:{ldsoff}
    ds_read_b128 {vr(r+4)}, v{FV_RR} offset:{ldsoff + 16}
    s_waitcnt lgkmcnt(0)
    v_pk_add_f32 {vr(r,2)}, {vr(r,2)}, {vr(r+2,2)}
    v_pk_add_f32 {vr(r+4,2)}, {vr(r+4,2)}, {vr(r+6,2)}
    v_pk_add_f32 {vr(r,2)}, {vr(r,2)}, {vr(r+4,2)}
    v_add_f32 v{r}, v{r}, v{r+1}
    """)

def final_phase(a, cfg):
    a("L_final:")
    a(f"""
    s_mov_b32 s{S_K}, 0
    L_flagpoll:
    buffer_load_dwordx4 v[20:23], v{FV_ZERO}, s[{S_WS}:{S_WS+3}], s3 offen sc1
    s_waitcnt vmcnt(0)
    v_xor_b32 v20, s{S_E1}, v20
    v_xor_b32 v21, s{S_E1}, v21
    v_xor_b32 v22, s{S_E1}, v22
    v_xor_b32 v23, s{S_E1}, v23
    v_or3_b32 v20, v20, v21, v22
    v_or_b32 v20, v20, v23
    s_add_u32 s{S_K}, s{S_K}, 1
    v_readfirstlane_b32 s{S_T1}, v20
    s_cmp_eq_u32 s{S_T1}, 0
    s_cbranch_scc1 L_flagok
    s_cmp_ge_u32 s{S_K}, {POLL_MAX}
    s_cbranch_scc1 L_flagok
    s_branch L_flagpoll
    L_flagok:
    """)
    stamp(a, cfg, 10)
    for ks in range(4):
        a(f"buffer_load_dwordx2 {vr(F_IN + 2*ks, 2)}, v{FV_PAY}, s[{S_WS}:{S_WS+3}], s10 offen offset:{ks*1024} sc1")
    a("s_waitcnt vmcnt(2)")
    a(f"v_mfma_f32_16x16x32_bf16 {vr(F_Y)}, {vr(FV_A)}, {vr(F_IN)}, {vr(FV_C)}")
    a("s_waitcnt vmcnt(0)")
    stamp(a, cfg, 11)
    a(f"v_mfma_f32_16x16x32_bf16 {vr(F_Y)}, {vr(FV_A)}, {vr(F_IN+4)}, {vr(F_Y)}")
    R = F_T
    a("s_nop 7")
    for c in range(4): a(f"v_cndmask_b32 v{R+c}, 0, v{F_Y+c}, s[{S_VALID}:{S_VALID+1}]")
    fold_reduce(a, R, 0)
    a(f"v_mul_f32 v{R}, {f2h(1/493)}, v{R}")
    a("s_nop 1")
    for c in range(4):
        a(f"v_subrev_f32_dpp v{F_Y+c}, v{R}, v{F_Y+c} quad_perm:[{c},{c},{c},{c}] row_mask:0xf bank_mask:0xf")
    a(f"s_mov_b64 exec, s[{S_VALID}:{S_VALID+1}]")
    for c in range(4): a(f"v_mul_f32 v{FV_R2+c}, v{F_Y+c}, v{F_Y+c}")
    a("s_mov_b64 exec, -1")
    fold_reduce(a, FV_R2, 128)
    a(f"v_mov_b32 v{R+1}, {f2h(1e-5)}")
    a(f"v_fmac_f32 v{R+1}, {f2h(1/493)}, v{FV_R2}")
    a(f"v_rsq_f32 v{R+1}, v{R+1}")
    a("s_nop 0")
    a(f"v_mul_f32 v{R+1}, v{R+1}, v{FV_GAM}")
    a("s_nop 1")
    for c in range(4):
        a(f"v_fmac_f32_dpp v{FV_BETA+c}, v{R+1}, v{F_Y+c} quad_perm:[{c},{c},{c},{c}] row_mask:0xf bank_mask:0xf")
    X = FV_BETA
    c1 = 2.302208198144325
    a(f"s_mov_b32 s{S_T0}, {f2h(c1*0.044715)}")
    a(f"v_mov_b32 v{R}, {f2h(c1)}")
    Z = R + 2
    for c in range(4): a(f"v_mul_f32 v{Z+c}, v{X+c}, v{X+c}")
    for c in range(4): a(f"v_fma_f32 v{Z+c}, v{Z+c}, s{S_T0}, v{R}")
    for c in range(4): a(f"v_mul_f32 v{Z+c}, v{X+c}, v{Z+c}")
    for c in range(4): a(f"v_exp_f32 v{Z+c}, -v{Z+c}")
    a("s_nop 0")
    for c in range(4): a(f"v_add_f32 v{Z+c}, 1.0, v{Z+c}")
    for c in range(4): a(f"v_rcp_f32 v{Z+c}, v{Z+c}")
    a("s_nop 0")
    for c in range(4): a(f"v_mul_f32 v{X+c}, v{X+c}, v{Z+c}")
    a(f"v_cvt_pk_bf16_f32 v{Z}, v{X}, v{X+1}")
    a(f"v_cvt_pk_bf16_f32 v{Z+1}, v{X+2}, v{X+3}")
    a(f"s_mov_b64 exec, s[{S_VALID}:{S_VALID+1}]")
    a(f"buffer_store_dwordx2 {vr(Z,2)}, v{FV_OUT}, s[{S_OUT}:{S_OUT+3}], s24 offen")
    a(f"""
    s_or_b32 s{S_T0}, s{S_MEM}, s{S_WAVE}
    s_cmp_eq_u32 s{S_T0}, 0
    s_cbranch_scc0 L_noepoch
    s_lshl_b32 s{S_T1}, s{S_GRP}, 7
    s_add_u32 s{S_T1}, s{S_T1}, {EPOCH}
    v_mov_b32 v{Z+2}, s{S_E1}
    s_mov_b64 exec, 1
    buffer_store_dword v{Z+2}, v{FV_ZERO}, s[{S_WS}:{S_WS+3}], s{S_T1} offen
    L_noepoch:
    """)
    stamp(a, cfg, 12)
    if cfg.get("stamps"): a("s_waitcnt vmcnt(0)")
    stamp(a, cfg, 13)
    stamp_flush(a, cfg)

HEADER = open("cdna_kernels/" + NAME + ".s.ref").read().split("; Override")[0]

def gen(cfg):
    a = A()
    out = HEADER
    out += "; Fused kernel: implicit-GEMM conv (split-K 4 over channels) -> in-launch all-to-all of bf16 partials -> GroupNorm over time -> GELU\n"
    out += f"; @launch grid=(256,1,1) block=(512,1,1) lds={LDS_BYTES}\n"
    a('.amdgcn_target "amdgcn-amd-amdhsa--gfx950"')
    a(".text")
    a(f".globl {KNAME}\n.p2align 8\n.type {KNAME},@function\n{KNAME}:")
    prologue(a, cfg)
    a(f"s_cmp_ge_u32 s{S_WAVE}, 4")
    a("s_cbranch_scc1 L_loader")
    compute(a, cfg)
    store_partials(a, cfg)
    final_phase(a, cfg)
    if cfg.get("pad"):
        a(f"""
        s_waitcnt vmcnt(0) lgkmcnt(0)
        L_pad:
        s_memrealtime s[96:97]
        s_waitcnt lgkmcnt(0)
        s_sub_u32 s96, s96, s98
        s_cmp_lt_u32 s96, {cfg['pad']}
        s_cbranch_scc1 L_pad
        """)
    a("s_endpgm")
    a("L_loader:")
    loader(a, cfg)
    stamp(a, cfg, 9)
    a("s_branch L_setup")
    a("L_end:")
    a("s_endpgm")
    out += a.text()
    out += f""".section .rodata,"a"
.p2align 6
.amdhsa_kernel {KNAME}
  .amdhsa_next_free_vgpr 136
  .amdhsa_next_free_sgpr 102
  .amdhsa_accum_offset 136
  .amdhsa_group_segment_fixed_size 0
  .amdhsa_kernarg_size 64
  .amdhsa_user_sgpr_count 2
  .amdhsa_user_sgpr_kernarg_segment_ptr 1
  .amdhsa_system_sgpr_workgroup_id_x 1
.end_amdhsa_kernel
"""
    return out

if __name__ == "__main__":
    ap = argparse.ArgumentParser()
    ap.add_argument("-o", default="/dev/stdout")
    ap.add_argument("--stamps", type=int, nargs="?", const=1, default=0)
    ap.add_argument("--map", type=int, default=1)
    ap.add_argument("--forceslow", action="store_true")
    ap.add_argument("--pad", type=int, default=0)
    ap.add_argument("--noprefetch", action="store_true")
    ap.add_argument("--pfd", type=int, default=0)
    ap.add_argument("--ldssync", type=int, default=1)
    ap.add_argument("--xpf", action="store_true")
    args = ap.parse_args()
    cfg = {"stamps": args.stamps, "map": args.map, "forceslow": args.forceslow, "pad": args.pad, "noprefetch": args.noprefetch, "pfd": args.pfd, "ldssync": args.ldssync, "xpf": args.xpf}
    open(args.o, "w").write(gen(cfg))
```

```python
import sys, argparse, struct

NAME = "standalone__self_sup_conv_stem_hubert__speech"
KNAME = NAME + "_kernel"

XARR = 17 * 1056
WRING = 4 * XARR
P = 5
NSTG = 4
STAGE = P * 4096
RED = WRING + NSTG * STAGE
MODEW = RED + 256
CNTW = RED + 260
LDS_BYTES = RED + 512
TAPS = [0, 2, 4, 6, 8, 10, 12, 14, 1, 3, 5, 7, 9, 11, 13]
INBOX_GROUP = 16 * 16 * 1024
FLAGS = 16 * INBOX_GROUP
EPOCH = FLAGS + 16 * 256
ARRIVE = EPOCH + 16 * 128
STAMPS = 8 << 20
POLL_MAX = 200000

def f2h(x): return hex(struct.unpack('<I', struct.pack('<f', x))[0])

class A:
    def __init__(self): self.l = []
    def __call__(self, s):
        for x in s.strip("\n").split("\n"):
            x = x.strip()
            if x: self.l.append(x)
    def text(self):
        out = []
        for x in self.l:
            if x.endswith(":") or x.startswith(".") or x.startswith(";"): out.append(x)
            else: out.append("    " + x)
        return "\n".join(out) + "\n"

S_RAW = 4
S_X, S_W, S_WS, S_OUT = 12, 16, 20, 48
S_BT, S_NG, S_MT, S_KS, S_MEM, S_GRP, S_WAVE, S_Q = 26, 27, 28, 29, 30, 31, 32, 33
S_XO, S_XQ, S_XM, S_WO, S_WM = 34, 35, 36, 37, 38
S_COL2 = 39
S_T0, S_T1, S_T2, S_T3 = 40, 41, 42, 43
S_SG, S_K, S_MODE, S_XCC = 44, 45, 46, 47
S_E1 = 52
S_KA = 64
S_VALID = 80
S_EX = 82
V_LANE, V_OFFX, V_OFFW = 1, 2, 3
V_XL, V_WL, V_XC, V_XN, V_W, V_MODE = 4, 5, 6, 7, 8, 9
V_T0, V_T1, V_T2, V_T3 = 10, 11, 12, 13
ACC = 16
XE = 48
XO = 84
WB = 120

def stamp(a, cfg, idx, clk=False):
    if not cfg.get("stamps"): return
    if cfg.get("stamps") == 2 and idx >= 10: return
    a(f"{'s_memtime' if clk else 's_memrealtime'} s[84:85]")
    a("s_waitcnt lgkmcnt(0)")
    a(f"s_mov_b32 s{86+idx}, s84")
def stamp_flush(a, cfg):
    if not cfg.get("stamps") or cfg.get("probe"): return
    a("s_mov_b64 exec, -1")
    a(f"s_lshl_b32 s84, s2, 3")
    a(f"s_add_u32 s84, s84, s{S_WAVE}")
    a(f"s_lshl_b32 s84, s84, 6")
    a(f"s_add_u32 s84, s84, {STAMPS}")
    a(f"v_mov_b32 v0, 0")
    for i in range(16): a(f"v_mov_b32 v{100+i}, s{86+i}")
    for i in range(4):
        a(f"buffer_store_dwordx4 v[{100+4*i}:{103+4*i}], v0, s[{S_WS}:{S_WS+3}], s84 offen offset:{16*i}")

def vr(b, n=4): return f"v[{b}:{b+n-1}]"

def srd(a, base, ptr, nbytes):
    a(f"s_mov_b32 s{base}, s{ptr}")
    a(f"s_and_b32 s{base+1}, s{ptr+1}, 0xffff")
    if isinstance(nbytes, int): a(f"s_mov_b32 s{base+2}, {nbytes}")
    else: a(nbytes)
    a(f"s_mov_b32 s{base+3}, 0x20000")

def dma_x(a, half, par, i):
    arr = (2 * half + par) * XARR
    if i < 4:
        a(f"s_add_u32 m0, s{S_XM}, {arr + i * 4 * 1056}")
        a(f"s_add_u32 s{S_T0}, s{S_XQ}, {i * 65536 + par * 1024 + half * 128}")
    else:
        a(f"s_mov_b32 m0, {arr + 16 * 1056}")
        a(f"s_add_u32 s{S_T0}, s{S_XO}, {16 * 16384 + par * 1024 + half * 128}")
    a(f"buffer_load_dwordx4 v{V_OFFX}, s[{S_X}:{S_X+3}], s{S_T0} offen lds")

def dma_x16(a, half, par):
    arr = 2 * half + par
    lab = f"L_skipx{arr}"
    a(f"s_cmp_eq_u32 s{S_Q}, {arr}")
    a(f"s_cbranch_scc0 {lab}")
    dma_x(a, half, par, 4)
    a(f"{lab}:")

def dma_w(a, n):
    k, nl = divmod(n, 15)
    tap = TAPS[nl]
    slot = ((n // P) % NSTG) * STAGE + (n % P) * 4096
    a(f"s_add_u32 m0, s{S_WM}, {slot}")
    a(f"s_add_u32 s{S_T0}, s{S_WO}, {(tap * 512 + k * 32) * 1024}")
    a(f"buffer_load_dwordx4 v{V_OFFW}, s[{S_W}:{S_W+3}], s{S_T0} offen lds")

def x_imm(par, m): return par * XARR + (m >> 3) * 1056 + (m & 7) * 128

def prologue(a, cfg):
    a(f"""
    s_cmp_ge_u32 s2, 256
    s_cbranch_scc1 L_end
    """)
    if not cfg.get("noprefetch"):
        a(f"""
        s_getpc_b64 s[4:5]
        L_pc:
        v_lshrrev_b32 v132, 6, v0
        v_and_b32 v133, 7, v0
        v_lshl_add_u32 v132, v132, 3, v133
        v_lshlrev_b32 v132, 7, v132
        s_sub_u32 s4, s4, L_pc-{KNAME}
        s_subb_u32 s5, s5, 0
        v_min_u32 v132, L_end-{KNAME}, v132
        global_load_dword v133, v132, s[4:5]
        """)
    stamp(a, cfg, 0)
    if cfg.get("pad"):
        a("s_memrealtime s[98:99]")
    a(f"s_load_dwordx16 s[{S_KA}:{S_KA+15}], s[0:1], 0")
    if cfg.get("ldssync", 1):
        a(f"""
        v_mov_b32 v{V_T0}, {CNTW}
        v_mov_b32 v{V_T1}, 0
        ds_write_b32 v{V_T0}, v{V_T1}
        """)
    if cfg.get("map", 1) == 1:
        a(f"""
        s_and_b32 s24, s2, 7
        s_lshr_b32 s25, s2, 3
        s_and_b32 s{S_BT}, s24, 1
        s_and_b32 s{S_NG}, s24, 6
        s_lshr_b32 s{S_T0}, s25, 4
        s_add_u32 s{S_NG}, s{S_NG}, s{S_T0}
        """)
    elif cfg.get("map") == 0:
        a(f"""
        s_and_b32 s{S_NG}, s2, 7
        s_lshr_b32 s25, s2, 3
        s_lshr_b32 s{S_BT}, s25, 4
        """)
    else:
        a(f"""
        s_lshr_b32 s24, s2, 4
        s_and_b32 s25, s2, 15
        s_and_b32 s{S_BT}, s24, 1
        s_lshr_b32 s{S_NG}, s24, 1
        """)
    a(f"""
    s_lshr_b32 s{S_MT}, s25, 2
    s_and_b32 s{S_MT}, s{S_MT}, 3
    s_and_b32 s{S_KS}, s25, 3
    s_and_b32 s{S_MEM}, s25, 15
    s_lshl_b32 s{S_GRP}, s{S_BT}, 3
    s_add_u32 s{S_GRP}, s{S_GRP}, s{S_NG}
    v_lshrrev_b32 v{V_T0}, 6, v0
    v_and_b32 v{V_LANE}, 63, v0
    v_readfirstlane_b32 s{S_WAVE}, v{V_T0}
    v_lshrrev_b32 v{V_T0}, 3, v{V_LANE}          ; lane>>3
    v_and_b32 v{V_T1}, 7, v{V_LANE}              ; lane&7
    v_lshlrev_b32 v{V_OFFX}, 11, v{V_T0}
    v_lshl_add_u32 v{V_OFFX}, v{V_T1}, 4, v{V_OFFX}
    s_and_b32 s{S_Q}, s{S_WAVE}, 3
    s_mul_i32 s{S_XO}, s{S_BT}, 1024000
    s_add_u32 s{S_T2}, s{S_XO}, 1024000
    s_lshl_b32 s{S_T0}, s{S_MT}, 18
    s_add_u32 s{S_XO}, s{S_XO}, s{S_T0}
    s_lshl_b32 s{S_T0}, s{S_KS}, 8
    s_add_u32 s{S_XO}, s{S_XO}, s{S_T0}
    s_lshl_b32 s{S_T0}, s{S_Q}, 14
    s_add_u32 s{S_XQ}, s{S_XO}, s{S_T0}
    s_mul_i32 s{S_XM}, s{S_Q}, 1056
    s_lshl_b32 s{S_WO}, s{S_KS}, 17
    s_lshl_b32 s{S_T0}, s{S_Q}, 13
    s_add_u32 s{S_WO}, s{S_WO}, s{S_T0}
    s_lshl_b32 s{S_T0}, s{S_NG}, 7
    s_add_u32 s{S_WO}, s{S_WO}, s{S_T0}
    s_lshl_b32 s{S_WM}, s{S_Q}, 10
    s_add_u32 s{S_WM}, s{S_WM}, {WRING}
    s_lshl_b32 s{S_T1}, s{S_MEM}, 3
    s_add_u32 s{S_COL2}, s{S_T0}, s{S_T1}
    v_bfe_u32 v{V_T2}, v{V_LANE}, 4, 1
    s_and_b32 s{S_T1}, s{S_Q}, 1
    s_lshl_b32 s{S_T1}, s{S_T1}, 1
    v_or_b32 v{V_T2}, s{S_T1}, v{V_T2}
    v_lshrrev_b32 v{V_T3}, 1, v{V_T1}
    v_xor_b32 v{V_T2}, v{V_T3}, v{V_T2}
    v_lshlrev_b32 v{V_OFFW}, 10, v{V_T0}
    v_lshl_add_u32 v{V_OFFW}, v{V_T2}, 5, v{V_OFFW}
    v_and_b32 v{V_T3}, 1, v{V_LANE}
    v_lshl_add_u32 v{V_OFFW}, v{V_T3}, 4, v{V_OFFW}
    s_waitcnt lgkmcnt(0)
    """)
    if cfg.get("ldssync", 1): a("s_barrier")
    srd(a, S_X, S_KA + 0, f"s_mov_b32 s{S_X+2}, s{S_T2}")
    srd(a, S_W, S_KA + 2, 7864320)
    stamp(a, cfg, 1)
    a(f"""
    s_lshr_b32 s55, s{S_WAVE}, 2                 ; role
    s_mul_i32 s56, s55, {XARR}
    s_add_u32 s56, s56, s{S_XM}
    s_lshl_b32 s57, s55, 10
    s_add_u32 s57, s57, s{S_XQ}
    """)
    for i in range(4):
        a(f"s_add_u32 m0, s56, {i * 4 * 1056}")
        a(f"s_add_u32 s{S_T0}, s57, {i * 65536}")
        a(f"buffer_load_dwordx4 v{V_OFFX}, s[{S_X}:{S_X+3}], s{S_T0} offen lds")
    a(f"""
    s_mul_i32 s58, s55, {10 * 524288}
    s_add_u32 s58, s58, s{S_WO}
    s_mul_i32 s59, s55, {5 * 524288}
    s_sub_u32 s59, s{S_WO}, s59
    s_mul_i32 s60, s55, {STAGE}
    s_add_u32 s60, s60, s{S_WM}
    s_cmp_eq_u32 s{S_Q}, s55
    s_cbranch_scc0 L_skipx01
    s_mul_i32 s{S_T1}, s55, {XARR}
    s_add_u32 m0, s{S_T1}, {16 * 1056}
    s_lshl_b32 s{S_T1}, s55, 10
    s_add_u32 s{S_T1}, s{S_T1}, s{S_XO}
    s_add_u32 s{S_T0}, s{S_T1}, {16 * 16384}
    buffer_load_dwordx4 v{V_OFFX}, s[{S_X}:{S_X+3}], s{S_T0} offen lds
    L_skipx01:
    """)
    for j in range(5):
        a(f"s_add_u32 m0, s60, {j * 4096}")
        a(f"s_add_u32 s{S_T0}, s{58 if j < 3 else 59}, {TAPS[j] * 524288}")
        a(f"buffer_load_dwordx4 v{V_OFFW}, s[{S_W}:{S_W+3}], s{S_T0} offen lds")

def mall_prefetch(a, cfg):
    if cfg.get("mallpf"):
        a(f"""
        s_cmp_ge_u32 s{S_Q}, 2
        s_cbranch_scc1 L_mallpf_x
        v_lshrrev_b32 v14, 1, v{V_LANE}
        v_min_u32 v14, 29, v14
        v_lshlrev_b32 v14, 10, v14
        v_and_b32 v15, 1, v{V_LANE}
        v_lshl_or_b32 v14, v15, 6, v14
        s_mul_i32 s{S_T0}, s2, 30720
        s_lshl_b32 s{S_T1}, s{S_Q}, 9
        s_add_u32 s{S_T0}, s{S_T0}, s{S_T1}
        s_add_u32 s{S_T0}, s{S_T0}, 384
        buffer_load_dword v134, v14, s[{S_W}:{S_W+3}], s{S_T0} offen
        s_branch L_nomallpf
        L_mallpf_x:
        s_cmp_eq_u32 s{S_Q}, 2
        s_cbranch_scc0 L_nomallpf
        v_bfe_u32 v14, v{V_LANE}, 2, 3
        s_lshl_b32 s{S_T0}, s2, 3
        v_add_u32 v14, s{S_T0}, v14
        v_min_u32 v14, 1999, v14
        v_lshlrev_b32 v14, 10, v14
        v_bfe_u32 v15, v{V_LANE}, 1, 1
        v_lshl_or_b32 v14, v15, 9, v14
        v_and_b32 v15, 1, v{V_LANE}
        v_lshl_or_b32 v14, v15, 6, v14
        v_add_u32 v14, 384, v14
        global_load_dword v134, v14, s[{S_KA}:{S_KA+1}]
        L_nomallpf:
        """)

def late_params(a):
    srd(a, S_WS, S_KA + 14, 268435456)
    srd(a, S_OUT, S_KA + 10, 2 * 493 * 512 * 2)
    a(f"s_load_dwordx2 s[{S_RAW}:{S_RAW+1}], s[{S_KA+4}:{S_KA+5}], s{S_COL2}")
    a(f"s_load_dwordx2 s[{S_RAW+2}:{S_RAW+3}], s[{S_KA+6}:{S_KA+7}], s{S_COL2}")
    a(f"s_load_dwordx2 s[{S_RAW+4}:{S_RAW+5}], s[{S_KA+8}:{S_KA+9}], s{S_COL2}")
    a(f"s_lshl_b32 s{S_T1}, s{S_GRP}, 7")
    a(f"s_add_u32 s{S_T1}, s{S_T1}, {EPOCH}")
    a(f"s_load_dword s{S_E1}, s[{S_KA+14}:{S_KA+15}], s{S_T1}")

def loader(a, cfg):
    def xop(half, par, i): return ("x", half, par, i) if i < 4 else ("x16", half, par)
    def st(s): return [("w", n) for n in range(s * P, (s + 1) * P)] if s < 12 else []
    PFD = cfg.get("pfd", 6)
    def pf(s): return [("pf", s)] if (PFD and 4 <= s <= 11) else []
    xpf = [("xpf",)] if cfg.get("xpf") else []
    base = [
        [("done", xop(0, 1, i)) for i in range(5)] + [("done", op) for op in st(1)] + ([("mallpf",)] if cfg.get("mallpf") == 1 else []) + st(2) + st(3) + ([("mallpf",)] if cfg.get("mallpf") == 2 else []),
        [("arrive",)],
        st(4) + [xop(1, 0, 0), xop(1, 0, 1)],
        st(5) + [xop(1, 0, 2), xop(1, 0, 3)],
        [xop(1, 0, 4)] + st(6) + [xop(1, 1, 0)],
        st(7) + [xop(1, 1, 1), xop(1, 1, 2)],
        [xop(1, 1, 3), xop(1, 1, 4)] + st(8) + [("touch",), ("nop_vm",)],
        [("dbgload",)] + st(9),
        st(10),
        st(11),
        [("mode",)],
        [], [],
    ]
    phases = []
    for m, ph in enumerate(base):
        extra = []
        if m == 0:
            if PFD: extra = [("pfsetup",)]
            for s_ in range(4, PFD): extra += pf(s_)
            extra += xpf
        elif PFD:
            extra = pf(m - 1 + PFD)
        DPF = cfg.get("dpf", 0)
        if DPF:
            if m == 0:
                extra += [("dpfsetup",)] + [("dpf", s_) for s_ in range(4, min(DPF, 12))] + ([("dxpf",)] if cfg.get("dxpf") else [])
            elif m - 1 + DPF <= 11:
                extra += [("dpf", m - 1 + DPF)]
        if m == 1: ph = extra + ph
        else: ph = ph + extra
        phases.append(ph)
    optional = ("x16", "mode", "arrive", "pfsetup", "mallpf", "dpfsetup", "dpf", "dxpf")
    flat, marks = [], []
    for ph in phases:
        flat += [op[1] if op[0] == "done" else op for op in ph]; marks.append(len(flat))
    def last_required(m):
        req = -1
        for idx, op in enumerate(flat):
            if op[0] == "w" and op[1] // P <= m: req = idx
            if op[0] in ("x", "x16"):
                need = {(0, 1): 1, (1, 0): 5, (1, 1): 7}[(op[1], op[2])]
                if need <= m: req = max(req, idx)
            if op[0] == "dbgload" and m >= 9: req = max(req, idx)
        return req
    for m, ph in enumerate(phases):
        for op in ph:
            if op[0] in ("done", "nop_vm"): continue
            if op[0] == "w": dma_w(a, op[1])
            elif op[0] == "x": dma_x(a, op[1], op[2], op[3])
            elif op[0] == "x16": dma_x16(a, op[1], op[2])
            elif op[0] == "arrive":
                a(f"""
                s_waitcnt lgkmcnt(0)
                s_add_u32 s{S_E1}, s{S_E1}, 1
                s_getreg_b32 s{S_XCC}, hwreg(HW_REG_XCC_ID, 0, 3)
                s_lshl_b32 s53, s{S_E1}, 3
                s_or_b32 s53, s53, s{S_XCC}
                s_lshl_b32 s{S_T2}, s{S_GRP}, 7
                s_add_u32 s54, s{S_T2}, {ARRIVE}
                s_cmp_eq_u32 s{S_Q}, 0
                s_cbranch_scc0 L_noarrive
                s_lshl_b32 s{S_T2}, s{S_MEM}, 2
                s_add_u32 s{S_T2}, s{S_T2}, s54
                v_mov_b32 v{V_T1}, s53
                v_mov_b32 v{V_T2}, 0
                s_mov_b64 exec, 1
                buffer_store_dword v{V_T1}, v{V_T2}, s[{S_WS}:{S_WS+3}], s{S_T2} offen sc1
                s_mov_b64 exec, -1
                L_noarrive:
                """)
            elif op[0] == "mallpf": mall_prefetch(a, cfg)
            elif op[0] == "pfsetup":
                a(f"""
                s_mul_i32 s{S_T1}, s{S_MT}, 40
                s_mul_i32 s{S_T2}, s{S_Q}, 10
                s_add_u32 s{S_T1}, s{S_T1}, s{S_T2}
                v_min_u32 v14, 9, v{V_LANE}
                v_add_u32 v14, s{S_T1}, v14
                v_lshrrev_b32 v15, 5, v14                    ; j
                v_and_b32 v14, 31, v14
                v_lshlrev_b32 v14, 10, v14                   ; row*1024
                s_lshl_b32 s61, s{S_KS}, 17
                s_lshl_b32 s{S_T2}, s{S_NG}, 7
                s_add_u32 s61, s61, s{S_T2}
                """)
                for c in range(3):
                    a(f"""
                    v_add_u32 v16, {5*c}, v15                ; nl
                    v_lshlrev_b32 v17, 1, v16
                    v_cmp_gt_u32 vcc, 8, v16
                    v_subrev_u32 v18, 15, v17
                    s_nop 0
                    v_cndmask_b32 v17, v18, v17, vcc         ; tap
                    v_lshl_or_b32 v{20+c}, v17, 19, v14
                    """)
            elif op[0] == "dpfsetup":
                NL = 2 if cfg.get("dpf2", 1) else 1
                a(f"""
                v_lshrrev_b32 v14, {1 if NL == 2 else 0}, v{V_LANE}
                v_min_u32 v14, 19, v14                       ; i
                s_and_b32 s{S_T1}, s2, 1
                s_mul_i32 s{S_T1}, s{S_T1}, 20
                v_add_u32 v14, s{S_T1}, v14                  ; l
                v_and_b32 v15, 7, v14                        ; class
                v_lshrrev_b32 v14, 3, v14
                s_lshr_b32 s{S_T1}, s2, 1
                s_mul_i32 s{S_T1}, s{S_T1}, 5
                v_add_u32 v14, s{S_T1}, v14                  ; R = 0..639
                v_lshlrev_b32 v15, 7, v15
                v_and_b32 v16, 1, v{V_LANE}
                v_lshl_or_b32 v15, v16, {6 if NL == 2 else 6}, v15
                v_and_b32 v16, 31, v14                       ; rr
                v_lshl_or_b32 v15, v16, 10, v15
                v_bfe_u32 v16, v14, 5, 2                     ; ks'
                v_lshl_or_b32 v15, v16, 17, v15
                v_lshrrev_b32 v14, 7, v14                    ; j
                """)
                for c in range(3):
                    a(f"""
                    v_add_u32 v16, {5*c}, v14                ; nl
                    v_lshlrev_b32 v17, 1, v16
                    v_cmp_gt_u32 vcc, 8, v16
                    v_subrev_u32 v18, 15, v17
                    s_nop 0
                    v_cndmask_b32 v17, v18, v17, vcc         ; tap
                    v_lshl_or_b32 v{26+c}, v17, 19, v15
                    """)
            elif op[0] == "dpf":
                s_ = op[1]
                a(f"s_cmp_eq_u32 s{S_Q}, {s_ & 3}")
                a(f"s_cbranch_scc0 L_nodpf{s_}")
                a(f"s_mov_b32 s{S_T1}, {(s_ // 3) * 32768}")
                a(f"buffer_load_dword v19, v{26 + s_ % 3}, s[{S_W}:{S_W+3}], s{S_T1} offen")
                a(f"L_nodpf{s_}:")
            elif op[0] == "dxpf":
                a(f"""
                s_cmp_eq_u32 s{S_Q}, 3
                s_cbranch_scc0 L_nodxpf
                v_lshrrev_b32 v14, 3, v{V_LANE}
                s_lshl_b32 s{S_T1}, s2, 3
                v_add_u32 v14, s{S_T1}, v14
                v_min_u32 v14, 1999, v14
                v_lshlrev_b32 v14, 10, v14
                v_bfe_u32 v15, v{V_LANE}, 1, 2
                v_lshl_or_b32 v14, v15, 8, v14
                v_and_b32 v15, 1, v{V_LANE}
                v_lshl_or_b32 v14, v15, 6, v14
                v_add_u32 v14, 128, v14
                global_load_dword v19, v14, s[{S_KA}:{S_KA+1}]
                L_nodxpf:
                """)
            elif op[0] == "pf":
                s_ = op[1]
                a(f"s_add_u32 s{S_T1}, s61, {(s_ // 3) * 32768}")
                a(f"buffer_load_dword v19, v{20 + s_ % 3}, s[{S_W}:{S_W+3}], s{S_T1} offen")
            elif op[0] == "xpf":
                a(f"""
                s_lshr_b32 s{S_T2}, s2, 7
                s_mul_i32 s{S_T2}, s{S_T2}, 136
                s_mul_i32 s{S_T3}, s{S_Q}, 34
                s_add_u32 s{S_T2}, s{S_T2}, s{S_T3}
                s_lshl_b32 s{S_T2}, s{S_T2}, 10
                s_add_u32 s{S_T2}, s{S_T2}, s{S_XO}
                s_add_u32 s{S_T2}, s{S_T2}, 128
                v_min_u32 v15, 33, v{V_LANE}
                v_lshlrev_b32 v15, 10, v15
                buffer_load_dword v19, v15, s[{S_X}:{S_X+3}], s{S_T2} offen
                """)
            elif op[0] == "touch":
                a(f"""
                v_and_b32 v{V_T1}, 31, v{V_LANE}
                v_lshlrev_b32 v{V_T1}, 7, v{V_T1}
                s_lshl_b32 s{S_T1}, s{S_GRP}, 18
                s_lshl_b32 s{S_T2}, s{S_MEM}, 14
                s_add_u32 s{S_T1}, s{S_T1}, s{S_T2}
                s_lshl_b32 s{S_T2}, s{S_Q}, 12
                s_add_u32 s{S_T1}, s{S_T1}, s{S_T2}
                buffer_load_dword v{V_T0}, v{V_T1}, s[{S_WS}:{S_WS+3}], s{S_T1} offen sc1
                """)
                if not cfg.get("noouttouch"):
                    a(f"""
                    s_mul_i32 s{S_T1}, s{S_BT}, {493*1024}
                    s_add_u32 s{S_T1}, s{S_T1}, s{S_COL2}
                    v_mov_b32 v14, 0
                    buffer_load_dword v15, v14, s[{S_OUT}:{S_OUT+3}], s{S_T1} offen
                    """)
            elif op[0] == "dbgload":
                a(f"""
                v_and_b32 v{V_T2}, 15, v{V_LANE}
                v_lshlrev_b32 v{V_T2}, 2, v{V_T2}
                buffer_load_dword v24, v{V_T2}, s[{S_WS}:{S_WS+3}], s54 offen sc1
                """)
            elif op[0] == "mode":
                a(f"""
                s_mov_b32 s{S_K}, 0
                s_lshr_b32 s{S_T3}, s53, 3
                L_cntpoll:
                v_lshrrev_b32 v25, 3, v24
                v_cmp_eq_u32 vcc, s{S_T3}, v25
                s_nop 4
                s_cmp_eq_u64 vcc, exec
                s_cbranch_scc1 L_cntok
                s_add_u32 s{S_K}, s{S_K}, 1
                s_cmp_ge_u32 s{S_K}, {POLL_MAX}
                s_cbranch_scc1 L_cntok
                s_sleep 2
                buffer_load_dword v24, v{V_T2}, s[{S_WS}:{S_WS+3}], s54 offen sc1
                s_waitcnt vmcnt(0)
                s_branch L_cntpoll
                L_cntok:
                v_cmp_eq_u32 vcc, s53, v24
                s_nop 4
                s_cmp_eq_u64 vcc, exec
                s_cselect_b32 s{S_MODE}, {0 if cfg.get('forceslow') else 1}, 0
                v_mov_b32 v{V_T1}, s{S_MODE}
                v_mov_b32 v{V_T2}, {MODEW}
                s_mov_b64 exec, 1
                ds_write_b32 v{V_T2}, v{V_T1}
                s_mov_b64 exec, -1
                s_waitcnt lgkmcnt(0)
                """)
        pos = marks[m]
        req = last_required(m)
        if m == 0:
            late_params(a)
            stamp(a, cfg, 2)
        else:
            assert req < pos
            n_after = sum(1 for op in flat[req + 1:pos] if op[0] not in optional)
            if m < 12: a(f"s_waitcnt vmcnt({n_after})")
        if m in (1, 3, 6, 9, 11): stamp(a, cfg, {1: 4, 3: 5, 6: 6, 9: 7, 11: 8}[m])
        if not (m == 0 and cfg.get("ldssync", 1)): a("s_barrier")

def compute(a, cfg):
    late_params(a)
    a(f"""
    v_and_b32 v{V_T0}, 15, v{V_LANE}             ; i / j
    v_lshrrev_b32 v{V_T1}, 4, v{V_LANE}          ; g
    v_mul_u32_u24 v{V_XL}, 1056, v{V_T0}
    v_lshl_add_u32 v{V_XL}, v{V_T1}, 4, v{V_XL}
    v_lshrrev_b32 v{V_T2}, 2, v{V_T0}
    v_lshl_add_u32 v{V_T2}, v{V_T1}, 3, v{V_T2}
    v_lshlrev_b32 v{V_WL}, 7, v{V_T2}
    v_bfe_u32 v{V_T2}, v{V_T0}, 3, 1
    v_and_b32 v{V_T3}, 1, v{V_T1}
    v_lshl_or_b32 v{V_T2}, v{V_T3}, 1, v{V_T2}
    v_xor_b32 v{V_T2}, s{S_Q}, v{V_T2}
    v_lshl_add_u32 v{V_WL}, v{V_T2}, 5, v{V_WL}
    v_and_b32 v{V_T3}, 3, v{V_T0}
    v_lshl_add_u32 v{V_WL}, v{V_T3}, 3, v{V_WL}
    v_add_u32 v{V_WL}, {WRING}, v{V_WL}
    v_mov_b32 v{V_XC}, v{V_XL}
    v_add_u32 v{V_XN}, 64, v{V_XL}
    v_mov_b32 v{V_W}, v{V_WL}
    v_mov_b32 v{V_T3}, {MODEW}
    s_mov_b32 s{S_SG}, 0
    s_mov_b32 s{S_K}, 0
    """)
    for r in range(32): a(f"v_mov_b32 v{ACC + r}, 0")
    store_setup(a)
    stamp(a, cfg, 2)
    a("s_waitcnt vmcnt(0) lgkmcnt(0)")
    stamp(a, cfg, 3)
    if cfg.get("ldssync", 1):
        a(f"""
        v_mov_b32 v{V_T0}, {CNTW}
        v_mov_b32 v{V_T1}, 1
        s_mov_b64 exec, 1
        ds_add_u32 v{V_T0}, v{V_T1}
        s_mov_b64 exec, -1
        L_b0spin:
        ds_read_b32 v{V_T1}, v{V_T0}
        s_waitcnt lgkmcnt(0)
        v_readfirstlane_b32 s{S_T0}, v{V_T1}
        s_cmp_ge_u32 s{S_T0}, 4
        s_cbranch_scc0 L_b0spin
        """)
    else:
        a("s_barrier")
    stamp(a, cfg, 4)
    stamp(a, cfg, 8, True)
    a(f"ds_read_b64_tr_b16 {vr(WB,2)}, v{V_W}")
    a(f"ds_read_b64_tr_b16 {vr(WB+2,2)}, v{V_W} offset:512")
    for m in range(8):
        a(f"ds_read_b128 {vr(XE + 4*m)}, v{V_XC} offset:{x_imm(0, m)}")
    a("L_kloop:")
    extras = {4: [(1, 0), (1, 1), (1, 2)], 5: [(1, 3), (1, 4), (1, 5)], 6: [(1, 6), (1, 7)],
              10: [(0, 0), (0, 1), (0, 2)], 11: [(0, 3), (0, 4), (0, 5)], 12: [(0, 6), (0, 7)]}
    for n in range(15):
        par = 0 if n < 8 else 1
        p = n if n < 8 else n - 8
        bank = XE if par == 0 else XO
        wbuf = WB + 4 * (n % 3)
        wnext = WB + 4 * ((n + 1) % 3)
        prev_extras = len(extras.get(n - 1, []))
        pre = []
        if n in (4, 9, 14):
            pre = [f"s_add_u32 s{S_SG}, s{S_SG}, {STAGE}",
                   f"s_cmp_eq_u32 s{S_SG}, {NSTG*STAGE}",
                   f"s_cselect_b32 s{S_SG}, 0, s{S_SG}",
                   f"v_add_u32 v{V_W}, s{S_SG}, v{V_WL}"]
        reads = []
        if n == 14: reads.append(f"ds_read_b32 v{V_MODE}, v{V_T3}")
        last_p = 6 if par == 0 else 5
        if p <= last_p:
            m = p + 8
            reads.append(f"ds_read_b128 {vr(bank + 4*(m % 9))}, v{V_XC} offset:{x_imm(par, m)}")
        toff = ((n + 1) % P) * 4096
        reads.append(f"ds_read_b64_tr_b16 {vr(wnext,2)}, v{V_W} offset:{toff}")
        reads.append(f"ds_read_b64_tr_b16 {vr(wnext+2,2)}, v{V_W} offset:{toff + 512}")
        for (epar, m) in extras.get(n, []):
            if epar == 1: reads.append(f"ds_read_b128 {vr(XO + 4*m)}, v{V_XC} offset:{x_imm(1, m)}")
            else: reads.append(f"ds_read_b128 {vr(XE + 4*m)}, v{V_XN} offset:{x_imm(0, m)}")
        post = []
        if n == 14:
            post = [f"s_add_u32 s{S_K}, s{S_K}, 1",
                    f"v_mov_b32 v{V_XC}, v{V_XN}",
                    f"s_add_u32 s{S_T1}, s{S_K}, 1",
                    f"s_lshr_b32 s{S_T2}, s{S_T1}, 1",
                    f"s_mul_i32 s{S_T2}, s{S_T2}, {2*XARR}",
                    f"s_and_b32 s{S_T1}, s{S_T1}, 1",
                    f"s_lshl_b32 s{S_T1}, s{S_T1}, 6",
                    f"s_add_u32 s{S_T1}, s{S_T1}, s{S_T2}",
                    f"v_add_u32 v{V_XN}, s{S_T1}, v{V_XL}",
                    f"s_cmp_lt_u32 s{S_K}, 4"]
        for x in pre: a(x)
        a(f"s_waitcnt lgkmcnt({prev_extras})")
        ri = 0
        for t in range(8):
            m = p + t
            a(f"v_mfma_f32_16x16x32_bf16 {vr(ACC + 4*t)}, {vr(wbuf)}, {vr(bank + 4*(m % 9))}, {vr(ACC + 4*t)}")
            if t == 0 and n in (4, 9, 14): a("s_barrier")
            if t < 7 and ri < len(reads):
                a(reads[ri]); ri += 1
            if n == 14 and t >= 3:
                for x in post[(t - 3) * 2:(t - 3) * 2 + 2]: a(x)
        assert ri == len(reads)
    if cfg.get("stamps") == 2:
        a(f"""
        s_cselect_b32 s100, 1, 0
        s_memtime s[84:85]
        s_waitcnt lgkmcnt(0)
        s_cmp_eq_u32 s{S_K}, 1
        s_cselect_b32 s96, s84, s96
        s_cmp_eq_u32 s{S_K}, 2
        s_cselect_b32 s97, s84, s97
        s_cmp_eq_u32 s{S_K}, 3
        s_cselect_b32 s98, s84, s98
        s_cmp_eq_u32 s100, 1
        """)
    a("s_cbranch_scc1 L_kloop")
    stamp(a, cfg, 9, True)
    stamp(a, cfg, 5)

def store_setup(a):
    a(f"""
    v_lshrrev_b32 v15, 4, v{V_LANE}
    v_and_b32 v14, 15, v{V_LANE}
    v_lshlrev_b32 v15, 14, v15
    v_lshl_add_u32 v14, v14, 4, v15
    s_lshl_b32 s{S_T0}, s{S_Q}, 16
    v_add_u32 v14, s{S_T0}, v14
    s_lshl_b32 s{S_T0}, s{S_GRP}, 18
    s_lshl_b32 s{S_T1}, s{S_MEM}, 10
    s_add_u32 s25, s{S_T0}, s{S_T1}
    s_lshl_b32 s{S_T1}, s{S_Q}, 4
    s_add_u32 s{S_T1}, s{S_T1}, s{S_MEM}
    s_lshl_b32 s{S_T1}, s{S_T1}, 2
    s_lshl_b32 s{S_T2}, s{S_GRP}, 8
    s_add_u32 s{S_T1}, s{S_T1}, s{S_T2}
    s_add_u32 s11, s{S_T1}, {FLAGS}              ; flag[group][q*16+member]
    """)

def store_partials(a, cfg):
    T = XE
    a("s_waitcnt lgkmcnt(0)")
    a(f"v_readfirstlane_b32 s{S_MODE}, v{V_MODE}")
    a("s_nop 3")
    a(f"s_cmp_eq_u32 s{S_MODE}, 1")
    a(f"s_cbranch_scc1 L_fast")
    for lab, sc in (("", " sc1"), ("L_fast:", "")):
        if lab: a(lab)
        for s in range(4):
            for e in range(2):
                t = 2 * s + e
                a(f"v_cvt_pk_bf16_f32 v{T + 4*s + 2*e}, v{ACC + 4*t}, v{ACC + 4*t + 1}")
                a(f"v_cvt_pk_bf16_f32 v{T + 4*s + 2*e + 1}, v{ACC + 4*t + 2}, v{ACC + 4*t + 3}")
            a(f"buffer_store_dwordx4 {vr(T + 4*s)}, v14, s[{S_WS}:{S_WS+3}], s25 offen offset:{s*256}{sc}")
        if not lab: a("s_branch L_stored")
    a("L_stored:")
    stamp(a, cfg, 6)
    a(f"s_waitcnt lgkmcnt(0)")
    a(f"s_add_u32 s{S_E1}, s{S_E1}, 1")
    a("L_setup:")
    final_setup(a, cfg, False)
    a(f"s_cmp_ge_u32 s{S_WAVE}, 4")
    a("s_cbranch_scc1 L_final")
    a(f"v_mov_b32 v{V_T3}, s{S_E1}")
    a("s_waitcnt vmcnt(0)")
    a(f"s_cmp_eq_u32 s{S_MODE}, 1")
    a("s_mov_b64 exec, 1")
    a("s_cbranch_scc1 L_fastflag")
    a(f"buffer_store_dword v{V_T3}, v{FV_ZERO}, s[{S_WS}:{S_WS+3}], s11 offen sc1")
    a("s_branch L_flagged")
    a("L_fastflag:")
    a(f"buffer_store_dword v{V_T3}, v{FV_ZERO}, s[{S_WS}:{S_WS+3}], s11 offen")
    a("L_flagged:")
    a("s_mov_b64 exec, -1")
    stamp(a, cfg, 7)

FV_A, FV_C, FV_BETA, FV_R2 = 64, 68, 72, 76
FV_GAM, FV_PAY, FV_ZERO, FV_OUT, FV_RW, FV_RR, FV_L = 84, 85, 86, 87, 88, 89, 90
F_Y, F_IN, F_T = 16, 20, 28

def final_setup(a, cfg, inc_epoch):
    a("s_waitcnt lgkmcnt(0)")
    if inc_epoch: a(f"s_add_u32 s{S_E1}, s{S_E1}, 1")
    for c in range(4):
        src = S_RAW + (c >> 1)
        a(f"s_lshl_b32 s{S_T0}, s{src}, 16" if c % 2 == 0 else f"s_and_b32 s{S_T0}, s{src}, 0xffff0000")
        srcb = S_RAW + 4 + (c >> 1)
        a(f"s_lshl_b32 s{S_T1}, s{srcb}, 16" if c % 2 == 0 else f"s_and_b32 s{S_T1}, s{srcb}, 0xffff0000")
        a(f"v_mov_b32 v{FV_C+c}, s{S_T0}")
        a(f"v_mov_b32 v{FV_BETA+c}, s{S_T1}")
        a(f"v_mov_b32 v{FV_R2+c}, 0")
    a(f"""
    v_and_b32 v{F_T}, 3, v{V_LANE}               ; c = lane&3
    v_mov_b32 v{F_T+1}, s{S_RAW+2}
    v_mov_b32 v{F_T+2}, s{S_RAW+3}
    v_cmp_gt_u32 vcc, 2, v{F_T}
    v_lshlrev_b32 v{FV_RR}, 5, v{F_T}
    v_add_u32 v{FV_RR}, {RED}, v{FV_RR}
    v_cndmask_b32 v{F_T+1}, v{F_T+2}, v{F_T+1}, vcc
    v_and_b32 v{F_T+2}, 1, v{V_LANE}
    v_lshlrev_b32 v{F_T+2}, 4, v{F_T+2}          ; 0 or 16
    v_sub_u32 v{F_T+2}, 16, v{F_T+2}
    v_lshlrev_b32 v{F_T+1}, v{F_T+2}, v{F_T+1}
    v_and_b32 v{FV_GAM}, 0xffff0000, v{F_T+1}
    v_bfe_u32 v{F_T}, v{V_LANE}, 2, 2            ; i>>2
    v_lshrrev_b32 v{F_T+1}, 4, v{V_LANE}         ; g
    v_cmp_eq_u32 vcc, v{F_T}, v{F_T+1}
    v_and_b32 v{F_T+2}, 1, v{V_LANE}
    v_lshlrev_b32 v{F_T+2}, 4, v{F_T+2}
    v_mov_b32 v{F_T+3}, 0x3f80
    v_lshlrev_b32 v{F_T+3}, v{F_T+2}, v{F_T+3}
    v_cndmask_b32 v{F_T+3}, 0, v{F_T+3}, vcc
    v_bfe_u32 v{F_T}, v{V_LANE}, 1, 1            ; (i>>1)&1
    v_cmp_eq_u32 vcc, 0, v{F_T}
    s_nop 1
    v_cndmask_b32 v{FV_A}, 0, v{F_T+3}, vcc
    v_cndmask_b32 v{FV_A+1}, v{F_T+3}, 0, vcc
    v_mov_b32 v{FV_A+2}, v{FV_A}
    v_mov_b32 v{FV_A+3}, v{FV_A+1}
    v_lshrrev_b32 v{F_T}, 4, v{V_LANE}
    v_and_b32 v{F_T+1}, 1, v{F_T}
    v_lshrrev_b32 v{F_T}, 1, v{F_T}
    v_lshl_or_b32 v{F_T}, v{F_T+1}, 1, v{F_T}
    v_lshlrev_b32 v{F_T}, 5, v{F_T}
    s_lshl_b32 s{S_T0}, s{S_WAVE}, 2
    s_add_u32 s{S_T0}, s{S_T0}, {RED}
    v_add_u32 v{FV_RW}, s{S_T0}, v{F_T}
    v_mov_b32 v{FV_ZERO}, 0
    v_lshlrev_b32 v{FV_PAY}, 3, v{V_LANE}
    s_lshr_b32 s{S_T1}, s{S_WAVE}, 1
    s_lshr_b32 s{S_T2}, s{S_MEM}, 2
    s_lshl_b32 s{S_T2}, s{S_T2}, 6
    s_lshl_b32 s{S_T3}, s{S_T1}, 4
    s_add_u32 s{S_T2}, s{S_T2}, s{S_T3}
    s_lshl_b32 s{S_T3}, s{S_GRP}, 8
    s_add_u32 s{S_T2}, s{S_T2}, s{S_T3}
    s_add_u32 s3, s{S_T2}, {FLAGS}
    s_lshl_b32 s{S_T0}, s{S_GRP}, 18
    s_lshl_b32 s{S_T2}, s{S_MEM}, 14
    s_add_u32 s{S_T0}, s{S_T0}, s{S_T2}
    s_lshl_b32 s{S_T2}, s{S_T1}, 12
    s_add_u32 s{S_T0}, s{S_T0}, s{S_T2}
    s_and_b32 s{S_T2}, s{S_WAVE}, 1
    s_lshl_b32 s{S_T3}, s{S_T2}, 9
    s_add_u32 s10, s{S_T0}, s{S_T3}
    s_lshl_b32 s{S_T1}, s{S_T1}, 7
    s_lshl_b32 s{S_T2}, s{S_T2}, 2
    s_add_u32 s{S_T1}, s{S_T1}, s{S_T2}
    v_bfe_u32 v{FV_L}, v{V_LANE}, 1, 4
    v_lshlrev_b32 v{FV_L}, 3, v{FV_L}
    v_lshrrev_b32 v{F_T+2}, 5, v{V_LANE}
    v_lshl_add_u32 v{FV_L}, v{F_T+2}, 1, v{FV_L}
    v_and_b32 v{F_T+2}, 1, v{V_LANE}
    v_add3_u32 v{FV_L}, v{FV_L}, v{F_T+2}, s{S_T1}
    s_movk_i32 s{S_T3}, 493
    v_cmp_gt_u32 s[{S_VALID}:{S_VALID+1}], s{S_T3}, v{FV_L}
    v_lshlrev_b32 v{FV_OUT}, 10, v{FV_L}
    s_mul_i32 s24, s{S_BT}, {493*1024}
    s_add_u32 s24, s24, s{S_COL2}
    """)

def fold_reduce(a, r, ldsoff):
    a(f"""
    s_nop 1
    v_permlane32_swap_b32 v{r}, v{r+1}
    v_permlane32_swap_b32 v{r+2}, v{r+3}
    v_add_f32 v{r}, v{r}, v{r+1}
    v_add_f32 v{r+2}, v{r+2}, v{r+3}
    s_nop 1
    v_permlane16_swap_b32 v{r}, v{r+2}
    v_add_f32 v{r}, v{r}, v{r+2}
    """)
    for sh in (8, 4, 2, 1):
        a("s_nop 1")
        a(f"v_add_f32_dpp v{r}, v{r}, v{r} row_ror:{sh} row_mask:0xf bank_mask:0xf")
    a(f"""
    s_mov_b32 exec_lo, 0x00010001
    s_mov_b32 exec_hi, 0x00010001
    ds_write_b32 v{FV_RW}, v{r} offset:{ldsoff}
    s_mov_b64 exec, -1
    s_waitcnt lgkmcnt(0)
    s_barrier
    ds_read_b128 {vr(r)}, v{FV_RR} offset:{ldsoff}
    ds_read_b128 {vr(r+4)}, v{FV_RR} offset:{ldsoff + 16}
    s_waitcnt lgkmcnt(0)
    v_pk_add_f32 {vr(r,2)}, {vr(r,2)}, {vr(r+2,2)}
    v_pk_add_f32 {vr(r+4,2)}, {vr(r+4,2)}, {vr(r+6,2)}
    v_pk_add_f32 {vr(r,2)}, {vr(r,2)}, {vr(r+4,2)}
    v_add_f32 v{r}, v{r}, v{r+1}
    """)

def final_phase(a, cfg):
    a("L_final:")
    a(f"""
    s_mov_b32 s{S_K}, 0
    L_flagpoll:
    buffer_load_dwordx4 v[20:23], v{FV_ZERO}, s[{S_WS}:{S_WS+3}], s3 offen sc1
    s_waitcnt vmcnt(0)
    v_xor_b32 v20, s{S_E1}, v20
    v_xor_b32 v21, s{S_E1}, v21
    v_xor_b32 v22, s{S_E1}, v22
    v_xor_b32 v23, s{S_E1}, v23
    v_or3_b32 v20, v20, v21, v22
    v_or_b32 v20, v20, v23
    s_add_u32 s{S_K}, s{S_K}, 1
    v_readfirstlane_b32 s{S_T1}, v20
    s_cmp_eq_u32 s{S_T1}, 0
    s_cbranch_scc1 L_flagok
    s_cmp_ge_u32 s{S_K}, {POLL_MAX}
    s_cbranch_scc1 L_flagok
    s_branch L_flagpoll
    L_flagok:
    """)
    stamp(a, cfg, 10)
    for ks in range(4):
        a(f"buffer_load_dwordx2 {vr(F_IN + 2*ks, 2)}, v{FV_PAY}, s[{S_WS}:{S_WS+3}], s10 offen offset:{ks*1024} sc1")
    a("s_waitcnt vmcnt(2)")
    a(f"v_mfma_f32_16x16x32_bf16 {vr(F_Y)}, {vr(FV_A)}, {vr(F_IN)}, {vr(FV_C)}")
    a("s_waitcnt vmcnt(0)")
    stamp(a, cfg, 11)
    a(f"v_mfma_f32_16x16x32_bf16 {vr(F_Y)}, {vr(FV_A)}, {vr(F_IN+4)}, {vr(F_Y)}")
    R = F_T
    a("s_nop 7")
    for c in range(4): a(f"v_cndmask_b32 v{R+c}, 0, v{F_Y+c}, s[{S_VALID}:{S_VALID+1}]")
    fold_reduce(a, R, 0)
    a(f"v_mul_f32 v{R}, {f2h(1/493)}, v{R}")
    a("s_nop 1")
    for c in range(4):
        a(f"v_subrev_f32_dpp v{F_Y+c}, v{R}, v{F_Y+c} quad_perm:[{c},{c},{c},{c}] row_mask:0xf bank_mask:0xf")
    a(f"s_mov_b64 exec, s[{S_VALID}:{S_VALID+1}]")
    for c in range(4): a(f"v_mul_f32 v{FV_R2+c}, v{F_Y+c}, v{F_Y+c}")
    a("s_mov_b64 exec, -1")
    fold_reduce(a, FV_R2, 128)
    a(f"v_mov_b32 v{R+1}, {f2h(1e-5)}")
    a(f"v_fmac_f32 v{R+1}, {f2h(1/493)}, v{FV_R2}")
    a(f"v_rsq_f32 v{R+1}, v{R+1}")
    a("s_nop 0")
    a(f"v_mul_f32 v{R+1}, v{R+1}, v{FV_GAM}")
    a("s_nop 1")
    for c in range(4):
        a(f"v_fmac_f32_dpp v{FV_BETA+c}, v{R+1}, v{F_Y+c} quad_perm:[{c},{c},{c},{c}] row_mask:0xf bank_mask:0xf")
    X = FV_BETA
    c1 = 2.302208198144325
    a(f"s_mov_b32 s{S_T0}, {f2h(c1*0.044715)}")
    a(f"v_mov_b32 v{R}, {f2h(c1)}")
    Z = R + 2
    for c in range(4): a(f"v_mul_f32 v{Z+c}, v{X+c}, v{X+c}")
    for c in range(4): a(f"v_fma_f32 v{Z+c}, v{Z+c}, s{S_T0}, v{R}")
    for c in range(4): a(f"v_mul_f32 v{Z+c}, v{X+c}, v{Z+c}")
    for c in range(4): a(f"v_exp_f32 v{Z+c}, -v{Z+c}")
    a("s_nop 0")
    for c in range(4): a(f"v_add_f32 v{Z+c}, 1.0, v{Z+c}")
    for c in range(4): a(f"v_rcp_f32 v{Z+c}, v{Z+c}")
    a("s_nop 0")
    for c in range(4): a(f"v_mul_f32 v{X+c}, v{X+c}, v{Z+c}")
    a(f"v_cvt_pk_bf16_f32 v{Z}, v{X}, v{X+1}")
    a(f"v_cvt_pk_bf16_f32 v{Z+1}, v{X+2}, v{X+3}")
    a(f"s_mov_b64 exec, s[{S_VALID}:{S_VALID+1}]")
    a(f"buffer_store_dwordx2 {vr(Z,2)}, v{FV_OUT}, s[{S_OUT}:{S_OUT+3}], s24 offen")
    a(f"""
    s_or_b32 s{S_T0}, s{S_MEM}, s{S_WAVE}
    s_cmp_eq_u32 s{S_T0}, 0
    s_cbranch_scc0 L_noepoch
    s_lshl_b32 s{S_T1}, s{S_GRP}, 7
    s_add_u32 s{S_T1}, s{S_T1}, {EPOCH}
    v_mov_b32 v{Z+2}, s{S_E1}
    s_mov_b64 exec, 1
    buffer_store_dword v{Z+2}, v{FV_ZERO}, s[{S_WS}:{S_WS+3}], s{S_T1} offen
    L_noepoch:
    """)
    stamp(a, cfg, 12)
    if cfg.get("stamps"): a("s_waitcnt vmcnt(0)")
    stamp(a, cfg, 13)
    stamp_flush(a, cfg)

HEADER = open("cdna_kernels/" + NAME + ".s.ref").read().split("; Override")[0]

def gen(cfg):
    a = A()
    out = HEADER
    out += "; Fused kernel: implicit-GEMM conv (split-K 4 over channels) -> in-launch all-to-all of bf16 partials -> GroupNorm over time -> GELU\n"
    out += f"; @launch grid=(256,1,1) block=(512,1,1) lds={LDS_BYTES}\n"
    a('.amdgcn_target "amdgcn-amd-amdhsa--gfx950"')
    a(".text")
    a(f".globl {KNAME}\n.p2align 8\n.type {KNAME},@function\n{KNAME}:")
    prologue(a, cfg)
    a(f"s_cmp_ge_u32 s{S_WAVE}, 4")
    a("s_cbranch_scc1 L_loader")
    compute(a, cfg)
    store_partials(a, cfg)
    final_phase(a, cfg)
    if cfg.get("probe"):
        idx = cfg["probe"]
        a(f"""
        s_cmp_ge_u32 s{S_WAVE}, 4
        s_cbranch_scc1 L_noprobe
        {"s_sub_u32 s84, s95, s94" if idx == 89 else f"s_sub_u32 s84, s{86+idx}, s86"}
        {"s_lshr_b32 s84, s84, 2" if idx == 89 else "s_mul_i32 s84, s84, 4"}
        s_memrealtime s[96:97]
        s_waitcnt lgkmcnt(0)
        s_add_u32 s84, s84, s96
        L_probe:
        s_memrealtime s[96:97]
        s_waitcnt lgkmcnt(0)
        s_sub_u32 s96, s96, s84
        s_cmp_lt_i32 s96, 0
        s_cbranch_scc1 L_probe
        L_noprobe:
        """)
    if cfg.get("pad"):
        a(f"""
        s_waitcnt vmcnt(0) lgkmcnt(0)
        L_pad:
        s_memrealtime s[96:97]
        s_waitcnt lgkmcnt(0)
        s_sub_u32 s96, s96, s98
        s_cmp_lt_u32 s96, {cfg['pad']}
        s_cbranch_scc1 L_pad
        """)
    a("s_endpgm")
    a("L_loader:")
    loader(a, cfg)
    stamp(a, cfg, 9)
    a("s_branch L_setup")
    a("L_end:")
    a("s_endpgm")
    out += a.text()
    out += f""".section .rodata,"a"
.p2align 6
.amdhsa_kernel {KNAME}
  .amdhsa_next_free_vgpr 136
  .amdhsa_next_free_sgpr 102
  .amdhsa_accum_offset 136
  .amdhsa_group_segment_fixed_size 0
  .amdhsa_kernarg_size 64
  .amdhsa_user_sgpr_count 2
  .amdhsa_user_sgpr_kernarg_segment_ptr 1
  .amdhsa_system_sgpr_workgroup_id_x 1
.end_amdhsa_kernel
"""
    return out

if __name__ == "__main__":
    ap = argparse.ArgumentParser()
    ap.add_argument("-o", default="/dev/stdout")
    ap.add_argument("--stamps", type=int, nargs="?", const=1, default=0)
    ap.add_argument("--map", type=int, default=1)
    ap.add_argument("--forceslow", action="store_true")
    ap.add_argument("--pad", type=int, default=0)
    ap.add_argument("--noprefetch", action="store_true")
    ap.add_argument("--pfd", type=int, default=0)
    ap.add_argument("--mallpf", type=int, default=1)
    ap.add_argument("--dpf", type=int, default=0)
    ap.add_argument("--dxpf", type=int, default=0)
    ap.add_argument("--ldssync", type=int, default=1)
    ap.add_argument("--xpf", action="store_true")
    ap.add_argument("--probe", type=int, default=0)
    args = ap.parse_args()
    if args.probe: args.stamps = 1
    cfg = {"probe": args.probe, "stamps": args.stamps, "map": args.map, "forceslow": args.forceslow, "pad": args.pad, "noprefetch": args.noprefetch, "pfd": args.pfd, "mallpf": args.mallpf, "dpf": args.dpf, "dxpf": args.dxpf, "ldssync": args.ldssync, "xpf": args.xpf}
    open(args.o, "w").write(gen(cfg))
```

```python
import sys, argparse, struct

NAME = "standalone__self_sup_conv_stem_hubert__speech"
KNAME = NAME + "_kernel"

XARR = 17 * 1056
WRING = 4 * XARR
P = 5
NSTG = 4
STAGE = P * 4096
RED = WRING + NSTG * STAGE
MODEW = RED + 256
CNTW = RED + 260
LDS_BYTES = RED + 512
TAPS = [0, 2, 4, 6, 8, 10, 12, 14, 1, 3, 5, 7, 9, 11, 13]
INBOX_GROUP = 16 * 16 * 1024
FLAGS = 16 * INBOX_GROUP
EPOCH = FLAGS + 16 * 2048
ARRIVE = EPOCH + 16 * 128
STAMPS = 8 << 20
POLL_MAX = 200000

def f2h(x): return hex(struct.unpack('<I', struct.pack('<f', x))[0])

class A:
    def __init__(self): self.l = []
    def __call__(self, s):
        for x in s.strip("\n").split("\n"):
            x = x.strip()
            if x: self.l.append(x)
    def text(self):
        out = []
        for x in self.l:
            if x.endswith(":") or x.startswith(".") or x.startswith(";"): out.append(x)
            else: out.append("    " + x)
        return "\n".join(out) + "\n"

S_RAW = 4
S_POLL, S_PAY, S_FLAG = 3, 10, 11
S_X, S_W, S_WS, S_OUT = 12, 16, 20, 48
S_OUTO, S_STO = 24, 25
S_BT, S_NG, S_MT, S_KS, S_MEM, S_GRP, S_WAVE, S_Q = 26, 27, 28, 29, 30, 31, 32, 33
S_XO, S_XQ, S_XM, S_WO, S_WM = 34, 35, 36, 37, 38
S_COL2 = 39
S_T0, S_T1, S_T2, S_T3 = 40, 41, 42, 43
S_SG, S_K, S_MODE, S_XCC = 44, 45, 46, 47
S_E1, S_ARW, S_ARA = 52, 53, 54
S_KA = 64
S_VALID = 80
V_LANE, V_OFFX, V_OFFW = 1, 2, 3
V_XL, V_WL, V_XC, V_XN, V_W, V_MODE = 4, 5, 6, 7, 8, 9
V_T0, V_T1, V_T2, V_T3 = 10, 11, 12, 13
V_STO, V_MW = 14, 15
ACC = 16
XE = 48
XO = 84
WB = 120
V_PF0, V_PF1 = 132, 133
FV_A, FV_C, FV_BETA, FV_R2 = 136, 140, 144, 148
FV_GAM, FV_PAY, FV_ZERO, FV_OUT, FV_RW, FV_RR, FV_L, FV_E = 156, 157, 158, 159, 160, 161, 162, 163
FT = 164
NVGPR = 168
F_Y, F_IN, F_T = 16, 20, 28

def stamp(a, cfg, idx, clk=False):
    if not cfg.get("stamps"): return
    if cfg.get("stamps") == 2 and idx >= 10: return
    a(f"{'s_memtime' if clk else 's_memrealtime'} s[84:85]")
    a("s_waitcnt lgkmcnt(0)")
    a(f"s_mov_b32 s{86+idx}, s84")
def stamp_flush(a, cfg):
    if not cfg.get("stamps") or cfg.get("probe"): return
    a("s_mov_b64 exec, -1")
    a(f"s_lshl_b32 s84, s2, 3")
    a(f"s_add_u32 s84, s84, s{S_WAVE}")
    a(f"s_lshl_b32 s84, s84, 6")
    a(f"s_add_u32 s84, s84, {STAMPS}")
    a(f"v_mov_b32 v0, 0")
    for i in range(16): a(f"v_mov_b32 v{100+i}, s{86+i}")
    for i in range(4):
        a(f"buffer_store_dwordx4 v[{100+4*i}:{103+4*i}], v0, s[{S_WS}:{S_WS+3}], s84 offen offset:{16*i}")

def vr(b, n=4): return f"v[{b}:{b+n-1}]"

def srd(a, base, ptr, nbytes):
    a(f"s_mov_b32 s{base}, s{ptr}")
    a(f"s_and_b32 s{base+1}, s{ptr+1}, 0xffff")
    if isinstance(nbytes, int): a(f"s_mov_b32 s{base+2}, {nbytes}")
    else: a(nbytes)
    a(f"s_mov_b32 s{base+3}, 0x20000")

def dma_x(a, half, par, i):
    arr = (2 * half + par) * XARR
    if i < 4:
        a(f"s_add_u32 m0, s{S_XM}, {arr + i * 4 * 1056}")
        a(f"s_add_u32 s{S_T0}, s{S_XQ}, {i * 65536 + par * 1024 + half * 128}")
    else:
        a(f"s_mov_b32 m0, {arr + 16 * 1056}")
        a(f"s_add_u32 s{S_T0}, s{S_XO}, {16 * 16384 + par * 1024 + half * 128}")
    a(f"buffer_load_dwordx4 v{V_OFFX}, s[{S_X}:{S_X+3}], s{S_T0} offen lds")

def dma_x16(a, half, par):
    arr = 2 * half + par
    lab = f"L_skipx{arr}"
    a(f"s_cmp_eq_u32 s{S_Q}, {arr}")
    a(f"s_cbranch_scc0 {lab}")
    dma_x(a, half, par, 4)
    a(f"{lab}:")

def dma_w(a, n):
    k, nl = divmod(n, 15)
    tap = TAPS[nl]
    slot = ((n // P) % NSTG) * STAGE + (n % P) * 4096
    a(f"s_add_u32 m0, s{S_WM}, {slot}")
    a(f"s_add_u32 s{S_T0}, s{S_WO}, {(tap * 512 + k * 32) * 1024}")
    a(f"buffer_load_dwordx4 v{V_OFFW}, s[{S_W}:{S_W+3}], s{S_T0} offen lds")

def x_imm(par, m): return par * XARR + (m >> 3) * 1056 + (m & 7) * 128

def prologue(a, cfg):
    a(f"""
    s_cmp_ge_u32 s2, 256
    s_cbranch_scc1 L_end
    """)
    stamp(a, cfg, 0)
    if cfg.get("pad"): a("s_memrealtime s[98:99]")
    a(f"s_load_dwordx16 s[{S_KA}:{S_KA+15}], s[0:1], 0")
    a(f"""
    s_getpc_b64 s[4:5]
    L_pc:
    v_lshrrev_b32 v{V_PF0}, 6, v0
    v_and_b32 v{V_PF1}, 7, v0
    v_lshl_add_u32 v{V_PF0}, v{V_PF0}, 3, v{V_PF1}
    v_lshlrev_b32 v{V_PF0}, 7, v{V_PF0}
    s_sub_u32 s4, s4, L_pc-{KNAME}
    s_subb_u32 s5, s5, 0
    v_min_u32 v{V_PF0}, L_end-{KNAME}, v{V_PF0}
    global_load_dword v{V_PF1}, v{V_PF0}, s[4:5]
    v_mov_b32 v{V_T0}, {CNTW}
    v_mov_b32 v{V_T1}, 0
    ds_write_b32 v{V_T0}, v{V_T1}
    """)
    if cfg.get("map", 1) == 1:
        a(f"""
        s_and_b32 s24, s2, 7
        s_lshr_b32 s25, s2, 3
        s_and_b32 s{S_BT}, s24, 1
        s_and_b32 s{S_NG}, s24, 6
        s_lshr_b32 s{S_T0}, s25, 4
        s_add_u32 s{S_NG}, s{S_NG}, s{S_T0}
        """)
    else:
        a(f"""
        s_lshr_b32 s24, s2, 4
        s_and_b32 s25, s2, 15
        s_and_b32 s{S_BT}, s24, 1
        s_lshr_b32 s{S_NG}, s24, 1
        """)
    a(f"""
    s_lshr_b32 s{S_MT}, s25, 2
    s_and_b32 s{S_MT}, s{S_MT}, 3
    s_and_b32 s{S_KS}, s25, 3
    s_and_b32 s{S_MEM}, s25, 15
    s_lshl_b32 s{S_GRP}, s{S_BT}, 3
    s_add_u32 s{S_GRP}, s{S_GRP}, s{S_NG}
    v_lshrrev_b32 v{V_T0}, 6, v0
    v_and_b32 v{V_LANE}, 63, v0
    v_readfirstlane_b32 s{S_WAVE}, v{V_T0}
    v_lshrrev_b32 v{V_T0}, 3, v{V_LANE}          ; lane>>3
    v_and_b32 v{V_T1}, 7, v{V_LANE}              ; lane&7
    v_lshlrev_b32 v{V_OFFX}, 11, v{V_T0}
    v_lshl_add_u32 v{V_OFFX}, v{V_T1}, 4, v{V_OFFX}
    s_and_b32 s{S_Q}, s{S_WAVE}, 3
    s_mul_i32 s{S_XO}, s{S_BT}, 1024000
    s_add_u32 s{S_T2}, s{S_XO}, 1024000
    s_lshl_b32 s{S_T0}, s{S_MT}, 18
    s_add_u32 s{S_XO}, s{S_XO}, s{S_T0}
    s_lshl_b32 s{S_T0}, s{S_KS}, 8
    s_add_u32 s{S_XO}, s{S_XO}, s{S_T0}
    s_lshl_b32 s{S_T0}, s{S_Q}, 14
    s_add_u32 s{S_XQ}, s{S_XO}, s{S_T0}
    s_mul_i32 s{S_XM}, s{S_Q}, 1056
    s_lshl_b32 s{S_WO}, s{S_KS}, 17
    s_lshl_b32 s{S_T0}, s{S_Q}, 13
    s_add_u32 s{S_WO}, s{S_WO}, s{S_T0}
    s_lshl_b32 s{S_T0}, s{S_NG}, 7
    s_add_u32 s{S_WO}, s{S_WO}, s{S_T0}
    s_lshl_b32 s{S_WM}, s{S_Q}, 10
    s_add_u32 s{S_WM}, s{S_WM}, {WRING}
    s_lshl_b32 s{S_T1}, s{S_MEM}, 3
    s_add_u32 s{S_COL2}, s{S_T0}, s{S_T1}
    v_bfe_u32 v{V_T2}, v{V_LANE}, 4, 1
    s_and_b32 s{S_T1}, s{S_Q}, 1
    s_lshl_b32 s{S_T1}, s{S_T1}, 1
    v_or_b32 v{V_T2}, s{S_T1}, v{V_T2}
    v_lshrrev_b32 v{V_T3}, 1, v{V_T1}
    v_xor_b32 v{V_T2}, v{V_T3}, v{V_T2}
    v_lshlrev_b32 v{V_OFFW}, 10, v{V_T0}
    v_lshl_add_u32 v{V_OFFW}, v{V_T2}, 5, v{V_OFFW}
    v_and_b32 v{V_T3}, 1, v{V_LANE}
    v_lshl_add_u32 v{V_OFFW}, v{V_T3}, 4, v{V_OFFW}
    s_lshr_b32 s55, s{S_WAVE}, 2
    s_mul_i32 s56, s55, {XARR}
    s_add_u32 s56, s56, s{S_XM}
    s_lshl_b32 s57, s55, 10
    s_add_u32 s57, s57, s{S_XQ}
    s_mul_i32 s58, s55, {10 * 524288}
    s_add_u32 s58, s58, s{S_WO}
    s_mul_i32 s59, s55, {5 * 524288}
    s_sub_u32 s59, s{S_WO}, s59
    s_mul_i32 s60, s55, {STAGE}
    s_add_u32 s60, s60, s{S_WM}
    s_mov_b32 s{S_X+2}, s{S_T2}
    s_mov_b32 s{S_X+3}, 0x20000
    s_mov_b32 s{S_W+2}, 7864320
    s_mov_b32 s{S_W+3}, 0x20000
    s_waitcnt lgkmcnt(0)
    s_barrier
    s_mov_b32 s{S_X}, s{S_KA}
    s_and_b32 s{S_X+1}, s{S_KA+1}, 0xffff
    s_mov_b32 s{S_W}, s{S_KA+2}
    s_and_b32 s{S_W+1}, s{S_KA+3}, 0xffff
    """)
    stamp(a, cfg, 1)
    if cfg.get("premall"):
        nst = cfg["premall"]
        a(f"""
        s_cmp_eq_u32 s{S_WAVE}, 7
        s_cbranch_scc0 L_nopremall
        v_lshrrev_b32 v20, 1, v{V_LANE}
        v_min_u32 v20, {5*nst//2 - 1}, v20
        s_mul_i32 s{S_T0}, s2, {5*nst//2}
        v_add_u32 v20, s{S_T0}, v20
        v_lshrrev_b32 v21, 7, v20
        v_and_b32 v20, 127, v20
        v_lshrrev_b32 v22, 5, v20
        v_and_b32 v20, 31, v20
        v_lshlrev_b32 v20, 10, v20
        v_lshl_or_b32 v20, v22, 17, v20
        v_cmp_le_u32 vcc, 15, v21
        v_subrev_u32 v22, 15, v21
        s_nop 0
        v_cndmask_b32 v22, v21, v22, vcc             ; nl
        v_cndmask_b32 v23, 0, 1, vcc                 ; k-step
        v_lshl_or_b32 v20, v23, 15, v20
        v_lshlrev_b32 v23, 1, v22
        v_cmp_gt_u32 vcc, 8, v22
        v_subrev_u32 v21, 15, v23
        s_nop 0
        v_cndmask_b32 v23, v21, v23, vcc             ; tap
        v_lshl_or_b32 v20, v23, 19, v20
        v_and_b32 v21, 1, v{V_LANE}
        v_lshl_or_b32 v20, v21, 6, v20
        s_movk_i32 s{S_T0}, 384
        buffer_load_dword v134, v20, s[{S_W}:{S_W+3}], s{S_T0} offen
        L_nopremall:
        """)
    for i in range(4):
        a(f"s_add_u32 m0, s56, {i * 4 * 1056}")
        a(f"s_add_u32 s{S_T0}, s57, {i * 65536}")
        a(f"buffer_load_dwordx4 v{V_OFFX}, s[{S_X}:{S_X+3}], s{S_T0} offen lds")
    a(f"""
    s_cmp_eq_u32 s{S_Q}, s55
    s_cbranch_scc0 L_skipx01
    s_mul_i32 s{S_T1}, s55, {XARR}
    s_add_u32 m0, s{S_T1}, {16 * 1056}
    s_lshl_b32 s{S_T1}, s55, 10
    s_add_u32 s{S_T1}, s{S_T1}, s{S_XO}
    s_add_u32 s{S_T0}, s{S_T1}, {16 * 16384}
    buffer_load_dwordx4 v{V_OFFX}, s[{S_X}:{S_X+3}], s{S_T0} offen lds
    L_skipx01:
    """)
    for j in range(5):
        a(f"s_add_u32 m0, s60, {j * 4096}")
        a(f"s_add_u32 s{S_T0}, s{58 if j < 3 else 59}, {TAPS[j] * 524288}")
        a(f"buffer_load_dwordx4 v{V_OFFW}, s[{S_W}:{S_W+3}], s{S_T0} offen lds")

def late_params(a):
    srd(a, S_WS, S_KA + 14, 268435456)
    srd(a, S_OUT, S_KA + 10, 2 * 493 * 512 * 2)
    a(f"s_load_dwordx2 s[{S_RAW}:{S_RAW+1}], s[{S_KA+4}:{S_KA+5}], s{S_COL2}")
    a(f"s_load_dwordx2 s[{S_RAW+2}:{S_RAW+3}], s[{S_KA+6}:{S_KA+7}], s{S_COL2}")
    a(f"s_load_dwordx2 s[{S_RAW+4}:{S_RAW+5}], s[{S_KA+8}:{S_KA+9}], s{S_COL2}")
    a(f"s_lshl_b32 s{S_T1}, s{S_GRP}, 7")
    a(f"s_add_u32 s{S_T1}, s{S_T1}, {EPOCH}")
    a(f"s_load_dword s{S_E1}, s[{S_KA+14}:{S_KA+15}], s{S_T1}")

def mall_prefetch(a, cfg):
    a(f"""
    s_cmp_ge_u32 s{S_Q}, {cfg.get("mallw", 2)}
    s_cbranch_scc1 L_mallx
    v_lshrrev_b32 v20, 1, v{V_LANE}
    v_min_u32 v20, 29, v20
    v_lshlrev_b32 v20, 10, v20
    v_and_b32 v21, 1, v{V_LANE}
    v_lshl_or_b32 v20, v21, 6, v20
    s_mul_i32 s{S_T0}, s2, 30720
    s_lshl_b32 s{S_T1}, s{S_Q}, 9
    s_add_u32 s{S_T0}, s{S_T0}, s{S_T1}
    s_add_u32 s{S_T0}, s{S_T0}, 384
    buffer_load_dword v134, v20, s[{S_W}:{S_W+3}], s{S_T0} offen
    s_branch L_nomallpf
    L_mallx:
    """)
    if cfg.get("mallx"):
        a(f"""
        s_cmp_eq_u32 s{S_Q}, 2
        s_cbranch_scc0 L_nomallpf
        v_bfe_u32 v20, v{V_LANE}, 2, 3
        s_lshl_b32 s{S_T0}, s2, 3
        v_add_u32 v20, s{S_T0}, v20
        v_min_u32 v20, 1999, v20
        v_lshlrev_b32 v20, 10, v20
        v_bfe_u32 v21, v{V_LANE}, 1, 1
        v_lshl_or_b32 v20, v21, 9, v20
        v_and_b32 v21, 1, v{V_LANE}
        v_lshl_or_b32 v20, v21, 6, v20
        v_add_u32 v20, 384, v20
        global_load_dword v134, v20, s[{S_KA}:{S_KA+1}]
        """)
    a("L_nomallpf:")

def setup_lanes(a):
    T = FT
    a(f"""
    v_and_b32 v{T}, 3, v{V_LANE}
    v_lshlrev_b32 v{FV_RR}, 5, v{T}
    v_add_u32 v{FV_RR}, {RED}, v{FV_RR}
    v_bfe_u32 v{T}, v{V_LANE}, 2, 2
    v_lshrrev_b32 v{T+1}, 4, v{V_LANE}
    v_cmp_eq_u32 vcc, v{T}, v{T+1}
    v_and_b32 v{T+2}, 1, v{V_LANE}
    v_lshlrev_b32 v{T+2}, 4, v{T+2}
    v_mov_b32 v{T+3}, 0x3f80
    v_lshlrev_b32 v{T+3}, v{T+2}, v{T+3}
    v_cndmask_b32 v{T+3}, 0, v{T+3}, vcc
    v_bfe_u32 v{T}, v{V_LANE}, 1, 1
    v_cmp_eq_u32 vcc, 0, v{T}
    v_mov_b32 v{FV_ZERO}, 0
    v_lshlrev_b32 v{FV_PAY}, 3, v{V_LANE}
    v_cndmask_b32 v{FV_A}, 0, v{T+3}, vcc
    v_cndmask_b32 v{FV_A+1}, v{T+3}, 0, vcc
    v_mov_b32 v{FV_A+2}, v{FV_A}
    v_mov_b32 v{FV_A+3}, v{FV_A+1}
    v_lshrrev_b32 v{T}, 4, v{V_LANE}
    v_and_b32 v{T+1}, 1, v{T}
    v_lshrrev_b32 v{T}, 1, v{T}
    v_lshl_or_b32 v{T}, v{T+1}, 1, v{T}
    v_lshlrev_b32 v{T}, 5, v{T}
    s_lshl_b32 s{S_T0}, s{S_WAVE}, 2
    s_add_u32 s{S_T0}, s{S_T0}, {RED}
    v_add_u32 v{FV_RW}, s{S_T0}, v{T}
    s_lshr_b32 s{S_T1}, s{S_WAVE}, 1
    s_and_b32 s{S_T2}, s{S_MEM}, 12
    s_add_u32 s{S_T2}, s{S_T2}, s{S_T1}
    s_lshl_b32 s{S_T2}, s{S_T2}, 7
    s_lshl_b32 s{S_T3}, s{S_GRP}, 11
    s_add_u32 s{S_T2}, s{S_T2}, s{S_T3}
    s_add_u32 s{S_POLL}, s{S_T2}, {FLAGS}
    s_lshl_b32 s{S_T0}, s{S_GRP}, 18
    s_lshl_b32 s{S_T2}, s{S_MEM}, 14
    s_add_u32 s{S_T0}, s{S_T0}, s{S_T2}
    s_lshl_b32 s{S_T2}, s{S_T1}, 12
    s_add_u32 s{S_T0}, s{S_T0}, s{S_T2}
    s_and_b32 s{S_T2}, s{S_WAVE}, 1
    s_lshl_b32 s{S_T3}, s{S_T2}, 9
    s_add_u32 s{S_PAY}, s{S_T0}, s{S_T3}
    s_lshl_b32 s{S_T1}, s{S_T1}, 7
    s_lshl_b32 s{S_T2}, s{S_T2}, 2
    s_add_u32 s{S_T1}, s{S_T1}, s{S_T2}
    v_bfe_u32 v{FV_L}, v{V_LANE}, 1, 4
    v_lshlrev_b32 v{FV_L}, 3, v{FV_L}
    v_lshrrev_b32 v{T+2}, 5, v{V_LANE}
    v_lshl_add_u32 v{FV_L}, v{T+2}, 1, v{FV_L}
    v_and_b32 v{T+2}, 1, v{V_LANE}
    v_add3_u32 v{FV_L}, v{FV_L}, v{T+2}, s{S_T1}
    s_movk_i32 s{S_T3}, 493
    v_cmp_gt_u32 s[{S_VALID}:{S_VALID+1}], s{S_T3}, v{FV_L}
    v_lshlrev_b32 v{FV_OUT}, 10, v{FV_L}
    s_mul_i32 s{S_OUTO}, s{S_BT}, {493*1024}
    s_add_u32 s{S_OUTO}, s{S_OUTO}, s{S_COL2}
    """)
    for c in range(8): a(f"v_mov_b32 v{FV_R2+c}, 0")

def setup_params(a):
    T = FT
    for c in range(4):
        src = S_RAW + (c >> 1)
        a(f"s_lshl_b32 s{S_T0}, s{src}, 16" if c % 2 == 0 else f"s_and_b32 s{S_T0}, s{src}, 0xffff0000")
        srcb = S_RAW + 4 + (c >> 1)
        a(f"s_lshl_b32 s{S_T1}, s{srcb}, 16" if c % 2 == 0 else f"s_and_b32 s{S_T1}, s{srcb}, 0xffff0000")
        a(f"v_mov_b32 v{FV_C+c}, s{S_T0}")
        a(f"v_mov_b32 v{FV_BETA+c}, s{S_T1}")
    a(f"""
    v_and_b32 v{T}, 3, v{V_LANE}
    v_mov_b32 v{T+1}, s{S_RAW+2}
    v_mov_b32 v{T+2}, s{S_RAW+3}
    v_cmp_gt_u32 vcc, 2, v{T}
    v_and_b32 v{T+3}, 1, v{V_LANE}
    v_lshlrev_b32 v{T+3}, 4, v{T+3}
    v_cndmask_b32 v{T+1}, v{T+2}, v{T+1}, vcc
    v_sub_u32 v{T+3}, 16, v{T+3}
    v_lshlrev_b32 v{T+1}, v{T+3}, v{T+1}
    v_and_b32 v{FV_GAM}, 0xffff0000, v{T+1}
    v_mov_b32 v{FV_E}, s{S_E1}
    """)

def loader(a, cfg):
    def xop(half, par, i): return ("x", half, par, i) if i < 4 else ("x16", half, par)
    def st(s): return [("w", n) for n in range(s * P, (s + 1) * P)]
    XS = cfg.get("xsched", 0)
    E = [xop(1, 0, i) for i in range(5)]; O = [xop(1, 1, i) for i in range(5)]
    if XS == 0:   xs = {2: ([], E[0:2]), 3: ([], E[2:4]), 4: (E[4:5], O[0:1]), 5: ([], O[1:3]), 6: (O[3:5], [])}
    elif XS == 1: xs = {1: ([], E[0:3]), 2: ([], E[3:5] + O[0:1]), 3: ([], O[1:3]), 4: ([], O[3:5])}
    elif XS == 2: xs = {1: ([], E + O)}
    elif XS == 3: xs = {1: ([], E), 2: ([], O[0:2]), 3: ([], O[2:4]), 4: ([], O[4:5])}
    elif XS == 4: xs = {2: ([], E), 3: ([], O)}
    def ph(m, mid):
        pre, post = xs.get(m, ([], []))
        return pre + mid + post
    phases = [
        [("done", xop(0, 1, i)) for i in range(5)] + [("done", op) for op in st(1)] + ([("mallpf",)] if cfg.get("mallpos", 1) == 1 else []) + st(2) + [("params",)] + st(3) + ([("mallpf",)] if cfg.get("mallpos", 1) == 2 else []),
        ph(1, [("arrive",)] + ([("mallpf",)] if cfg.get("mallpos", 1) == 3 else [])),
        ph(2, st(4)),
        ph(3, st(5)),
        ph(4, st(6)),
        ph(5, st(7)),
        ph(6, st(8)) + ([("touch",), ("nop_vm",)] if cfg.get("ctouch", 2) == 0 else []),
        st(9) + [("dbgload",)],
        st(10),
        st(11) + ([("touch",), ("nop_vm",)] if cfg.get("ctouch", 2) == 2 else []),
        [("setup",)],
        [("mode",)],
    ]
    optional = ("x16", "mode", "arrive", "mallpf", "params", "setup")
    flat, marks = [], []
    for ph in phases:
        flat += [op[1] if op[0] == "done" else op for op in ph]; marks.append(len(flat))
    def last_required(m):
        req = -1
        for idx, op in enumerate(flat):
            if op[0] == "w" and op[1] // P <= m: req = idx
            if op[0] in ("x", "x16"):
                need = {(0, 1): 1, (1, 0): 5, (1, 1): 7}[(op[1], op[2])]
                if need <= m: req = max(req, idx)
            if op[0] == "dbgload" and m >= 10: req = max(req, idx)
        return req
    for m, ph in enumerate(phases):
        for op in ph:
            if op[0] in ("done", "nop_vm"): continue
            if op[0] == "w": dma_w(a, op[1])
            elif op[0] == "x": dma_x(a, op[1], op[2], op[3])
            elif op[0] == "x16": dma_x16(a, op[1], op[2])
            elif op[0] == "mallpf": mall_prefetch(a, cfg)
            elif op[0] == "params": late_params(a)
            elif op[0] == "setup":
                setup_lanes(a)
                setup_params(a)
            elif op[0] == "arrive":
                a(f"""
                s_waitcnt lgkmcnt(0)
                s_add_u32 s{S_E1}, s{S_E1}, 1
                s_getreg_b32 s{S_XCC}, hwreg(HW_REG_XCC_ID, 0, 3)
                s_lshl_b32 s{S_ARW}, s{S_E1}, 3
                s_or_b32 s{S_ARW}, s{S_ARW}, s{S_XCC}
                s_lshl_b32 s{S_T2}, s{S_GRP}, 7
                s_add_u32 s{S_ARA}, s{S_T2}, {ARRIVE}
                s_cmp_eq_u32 s{S_Q}, 0
                s_cbranch_scc0 L_noarrive
                s_lshl_b32 s{S_T2}, s{S_MEM}, 2
                s_add_u32 s{S_T2}, s{S_T2}, s{S_ARA}
                v_mov_b32 v{V_T1}, s{S_ARW}
                v_mov_b32 v{V_T2}, 0
                s_mov_b64 exec, 1
                buffer_store_dword v{V_T1}, v{V_T2}, s[{S_WS}:{S_WS+3}], s{S_T2} offen sc1
                s_mov_b64 exec, -1
                L_noarrive:
                """)
            elif op[0] == "touch":
                a(f"""
                v_and_b32 v{V_T1}, 31, v{V_LANE}
                v_lshlrev_b32 v{V_T1}, 7, v{V_T1}
                s_lshl_b32 s{S_T1}, s{S_GRP}, 18
                s_lshl_b32 s{S_T2}, s{S_MEM}, 14
                s_add_u32 s{S_T1}, s{S_T1}, s{S_T2}
                s_lshl_b32 s{S_T2}, s{S_Q}, 12
                s_add_u32 s{S_T1}, s{S_T1}, s{S_T2}
                buffer_load_dword v{V_T0}, v{V_T1}, s[{S_WS}:{S_WS+3}], s{S_T1} offen sc1
                s_mul_i32 s{S_T1}, s{S_BT}, {493*1024}
                s_add_u32 s{S_T1}, s{S_T1}, s{S_COL2}
                v_mov_b32 v20, 0
                buffer_load_dword v21, v20, s[{S_OUT}:{S_OUT+3}], s{S_T1} offen
                """)
            elif op[0] == "dbgload":
                a(f"""
                v_and_b32 v{V_T2}, 15, v{V_LANE}
                v_lshlrev_b32 v{V_T2}, 2, v{V_T2}
                buffer_load_dword v24, v{V_T2}, s[{S_WS}:{S_WS+3}], s{S_ARA} offen sc1
                """)
            elif op[0] == "mode":
                a(f"""
                s_mov_b32 s{S_K}, 0
                s_lshr_b32 s{S_T3}, s{S_ARW}, 3
                L_cntpoll:
                v_lshrrev_b32 v25, 3, v24
                v_cmp_eq_u32 vcc, s{S_T3}, v25
                s_nop 4
                s_cmp_eq_u64 vcc, exec
                s_cbranch_scc1 L_cntok
                s_add_u32 s{S_K}, s{S_K}, 1
                s_cmp_ge_u32 s{S_K}, {POLL_MAX}
                s_cbranch_scc1 L_cntok
                s_sleep 2
                buffer_load_dword v24, v{V_T2}, s[{S_WS}:{S_WS+3}], s{S_ARA} offen sc1
                s_waitcnt vmcnt(0)
                s_branch L_cntpoll
                L_cntok:
                v_cmp_eq_u32 vcc, s{S_ARW}, v24
                s_nop 4
                s_cmp_eq_u64 vcc, exec
                s_cselect_b32 s{S_MODE}, {0 if cfg.get('forceslow') else 1}, 0
                v_mov_b32 v{V_T1}, s{S_MODE}
                v_mov_b32 v{V_T2}, {MODEW}
                s_mov_b64 exec, 1
                ds_write_b32 v{V_T2}, v{V_T1}
                s_mov_b64 exec, -1
                s_waitcnt lgkmcnt(0)
                """)
        pos = marks[m]
        req = last_required(m)
        if m == 0:
            stamp(a, cfg, 2)
            continue
        assert req < pos
        n_after = sum(1 for op in flat[req + 1:pos] if op[0] not in optional)
        a(f"s_waitcnt vmcnt({n_after})")
        if m in (1, 3, 6, 9, 11): stamp(a, cfg, {1: 4, 3: 5, 6: 6, 9: 7, 11: 8}[m])
        a("s_barrier")

EXTRAS = {4: [(1, 0), (1, 1), (1, 2)], 5: [(1, 3), (1, 4), (1, 5)], 6: [(1, 6), (1, 7)],
          10: [(0, 0), (0, 1), (0, 2)], 11: [(0, 3), (0, 4), (0, 5)], 12: [(0, 6), (0, 7)]}

def tap_code(a, n):
    par = 0 if n < 8 else 1
    p = n if n < 8 else n - 8
    bank = XE if par == 0 else XO
    wbuf = WB + 4 * (n % 3)
    wnext = WB + 4 * ((n + 1) % 3)
    prev_extras = len(EXTRAS.get(n - 1, []))
    pre = []
    if n in (4, 9, 14):
        pre = [f"s_add_u32 s{S_SG}, s{S_SG}, {STAGE}",
               f"s_cmp_eq_u32 s{S_SG}, {NSTG*STAGE}",
               f"s_cselect_b32 s{S_SG}, 0, s{S_SG}",
               f"v_add_u32 v{V_W}, s{S_SG}, v{V_WL}"]
    reads = []
    if n == 10: reads.append(f"ds_read_b32 v{V_MODE}, v{V_MW}")
    last_p = 6 if par == 0 else 5
    if p <= last_p:
        m = p + 8
        reads.append(f"ds_read_b128 {vr(bank + 4*(m % 9))}, v{V_XC} offset:{x_imm(par, m)}")
    toff = ((n + 1) % P) * 4096
    reads.append(f"ds_read_b64_tr_b16 {vr(wnext,2)}, v{V_W} offset:{toff}")
    reads.append(f"ds_read_b64_tr_b16 {vr(wnext+2,2)}, v{V_W} offset:{toff + 512}")
    for (epar, m) in EXTRAS.get(n, []):
        if epar == 1: reads.append(f"ds_read_b128 {vr(XO + 4*m)}, v{V_XC} offset:{x_imm(1, m)}")
        else: reads.append(f"ds_read_b128 {vr(XE + 4*m)}, v{V_XN} offset:{x_imm(0, m)}")
    post = []
    if n == 14:
        post = [f"s_add_u32 s{S_K}, s{S_K}, 1",
                f"v_mov_b32 v{V_XC}, v{V_XN}",
                f"s_add_u32 s{S_T1}, s{S_K}, 1",
                f"s_lshr_b32 s{S_T2}, s{S_T1}, 1",
                f"s_mul_i32 s{S_T2}, s{S_T2}, {2*XARR}",
                f"s_and_b32 s{S_T1}, s{S_T1}, 1",
                f"s_lshl_b32 s{S_T1}, s{S_T1}, 6",
                f"s_add_u32 s{S_T1}, s{S_T1}, s{S_T2}",
                f"v_add_u32 v{V_XN}, s{S_T1}, v{V_XL}"]
    for x in pre: a(x)
    a(f"s_waitcnt lgkmcnt({prev_extras})")
    ri = 0
    for t in range(8):
        m = p + t
        a(f"v_mfma_f32_16x16x32_bf16 {vr(ACC + 4*t)}, {vr(wbuf)}, {vr(bank + 4*(m % 9))}, {vr(ACC + 4*t)}")
        if t == 0 and n in (4, 9, 14): a("s_barrier")
        if t < 7 and ri < len(reads):
            a(reads[ri]); ri += 1
        if n == 14 and t >= 2:
            for x in post[(t - 2) * 2:(t - 2) * 2 + 2]: a(x)
        if n == 13 and t == 6: a(f"s_cmp_eq_u32 s{S_K}, 3")
    assert ri == len(reads)

def compute(a, cfg):
    late_params(a)
    a(f"""
    v_and_b32 v{V_T0}, 15, v{V_LANE}             ; i / j
    v_lshrrev_b32 v{V_T1}, 4, v{V_LANE}          ; g
    v_mul_u32_u24 v{V_XL}, 1056, v{V_T0}
    v_lshl_add_u32 v{V_XL}, v{V_T1}, 4, v{V_XL}
    v_lshrrev_b32 v{V_T2}, 2, v{V_T0}
    v_lshl_add_u32 v{V_T2}, v{V_T1}, 3, v{V_T2}
    v_lshlrev_b32 v{V_WL}, 7, v{V_T2}
    v_bfe_u32 v{V_T2}, v{V_T0}, 3, 1
    v_and_b32 v{V_T3}, 1, v{V_T1}
    v_lshl_or_b32 v{V_T2}, v{V_T3}, 1, v{V_T2}
    v_xor_b32 v{V_T2}, s{S_Q}, v{V_T2}
    v_lshl_add_u32 v{V_WL}, v{V_T2}, 5, v{V_WL}
    v_and_b32 v{V_T3}, 3, v{V_T0}
    v_lshl_add_u32 v{V_WL}, v{V_T3}, 3, v{V_WL}
    v_add_u32 v{V_WL}, {WRING}, v{V_WL}
    v_mov_b32 v{V_XC}, v{V_XL}
    v_add_u32 v{V_XN}, 64, v{V_XL}
    v_mov_b32 v{V_W}, v{V_WL}
    v_mov_b32 v{V_MW}, {MODEW}
    s_mov_b32 s{S_SG}, 0
    s_mov_b32 s{S_K}, 0
    v_lshlrev_b32 v{V_T1}, 14, v{V_T1}
    v_lshl_add_u32 v{V_STO}, v{V_T0}, 4, v{V_T1}
    s_lshl_b32 s{S_T0}, s{S_Q}, 16
    v_add_u32 v{V_STO}, s{S_T0}, v{V_STO}
    s_lshl_b32 s{S_T0}, s{S_GRP}, 18
    s_lshl_b32 s{S_T1}, s{S_MEM}, 10
    s_add_u32 s{S_STO}, s{S_T0}, s{S_T1}
    s_lshl_b32 s{S_T1}, s{S_Q}, 2
    s_add_u32 s{S_T1}, s{S_T1}, s{S_MT}
    s_lshl_b32 s{S_T1}, s{S_T1}, 7
    s_lshl_b32 s{S_T2}, s{S_KS}, 2
    s_add_u32 s{S_T1}, s{S_T1}, s{S_T2}
    s_lshl_b32 s{S_T2}, s{S_GRP}, 11
    s_add_u32 s{S_T1}, s{S_T1}, s{S_T2}
    s_add_u32 s{S_FLAG}, s{S_T1}, {FLAGS}
    """)
    for r in range(32): a(f"v_mov_b32 v{ACC + r}, 0")
    setup_lanes(a)
    a("s_waitcnt lgkmcnt(0)")
    a(f"s_add_u32 s{S_E1}, s{S_E1}, 1")
    setup_params(a)
    stamp(a, cfg, 2)
    a("s_waitcnt vmcnt(0)")
    stamp(a, cfg, 3)
    a(f"""
    v_mov_b32 v{V_T0}, {CNTW}
    v_mov_b32 v{V_T1}, 1
    s_mov_b64 exec, 1
    ds_add_u32 v{V_T0}, v{V_T1}
    s_mov_b64 exec, -1
    L_b0spin:
    ds_read_b32 v{V_T1}, v{V_T0}
    s_waitcnt lgkmcnt(0)
    v_readfirstlane_b32 s{S_T0}, v{V_T1}
    s_cmp_ge_u32 s{S_T0}, 4
    s_cbranch_scc0 L_b0spin
    """)
    if cfg.get("ctouch", 2) == 1:
        a(f"""
        v_and_b32 v{V_T1}, 31, v{V_LANE}
        v_lshlrev_b32 v{V_T1}, 7, v{V_T1}
        s_lshl_b32 s{S_T1}, s{S_GRP}, 18
        s_lshl_b32 s{S_T2}, s{S_MEM}, 14
        s_add_u32 s{S_T1}, s{S_T1}, s{S_T2}
        s_lshl_b32 s{S_T2}, s{S_Q}, 12
        s_add_u32 s{S_T1}, s{S_T1}, s{S_T2}
        buffer_load_dword v134, v{V_T1}, s[{S_WS}:{S_WS+3}], s{S_T1} offen sc1
        buffer_load_dword v135, v{FV_ZERO}, s[{S_OUT}:{S_OUT+3}], s{S_OUTO} offen
        """)
    stamp(a, cfg, 4)
    stamp(a, cfg, 8, True)
    a(f"ds_read_b64_tr_b16 {vr(WB,2)}, v{V_W}")
    a(f"ds_read_b64_tr_b16 {vr(WB+2,2)}, v{V_W} offset:512")
    for m in range(8):
        a(f"ds_read_b128 {vr(XE + 4*m)}, v{V_XC} offset:{x_imm(0, m)}")
    a("L_kloop:")
    for n in range(14): tap_code(a, n)
    a("s_cbranch_scc1 L_lasttap")
    tap_code(a, 14)
    if cfg.get("stamps") == 2:
        a(f"""
        s_memtime s[84:85]
        s_waitcnt lgkmcnt(0)
        s_cmp_eq_u32 s{S_K}, 1
        s_cselect_b32 s96, s84, s96
        s_cmp_eq_u32 s{S_K}, 2
        s_cselect_b32 s97, s84, s97
        s_cmp_eq_u32 s{S_K}, 3
        s_cselect_b32 s98, s84, s98
        """)
    a("s_branch L_kloop")
    a("L_lasttap:")
    n = 14; p = 6; bank = XO; wbuf = WB + 4 * (n % 3)
    T = XE
    def cvt(s):
        out = []
        for e in range(2):
            t = 2 * s + e
            out.append(f"v_cvt_pk_bf16_f32 v{T + 4*s + 2*e}, v{ACC + 4*t}, v{ACC + 4*t + 1}")
            out.append(f"v_cvt_pk_bf16_f32 v{T + 4*s + 2*e + 1}, v{ACC + 4*t + 2}, v{ACC + 4*t + 3}")
        return out
    def store(s, sc):
        if cfg.get("nopayload"): return "s_nop 0"
        return f"buffer_store_dwordx4 {vr(T + 4*s)}, v{V_STO}, s[{S_WS}:{S_WS+3}], s{S_STO} offen offset:{s*256}{sc}"
    a("s_waitcnt lgkmcnt(0)")
    a(f"v_readfirstlane_b32 s{S_MODE}, v{V_MODE}")
    mf = [f"v_mfma_f32_16x16x32_bf16 {vr(ACC + 4*t)}, {vr(wbuf)}, {vr(bank + 4*((p + t) % 9))}, {vr(ACC + 4*t)}" for t in range(8)]
    a(mf[0]); a("s_nop 0"); a(mf[1]); a("s_nop 0"); a(mf[2]); a(f"s_cmp_eq_u32 s{S_MODE}, 1"); a(mf[3])
    a("s_cbranch_scc1 L_fast")
    for lab, sc in (("", " sc1"), ("L_fast:", cfg.get("fastflavor", ""))):
        if lab: a(lab)
        a(mf[4]); a("s_nop 0"); a(mf[5]); a("s_nop 0"); a(mf[6]); a("s_nop 0")
        c0 = cvt(0); a(c0[0]); a(mf[7])
        for x in c0[1:]: a(x)
        a(store(0, sc))
        for x in cvt(1): a(x)
        a(store(1, sc))
        for x in cvt(2): a(x)
        a(store(2, sc))
        for x in cvt(3): a(x)
        a(store(3, sc))
        stamp(a, cfg, 9, True)
        stamp(a, cfg, 5)
        a("s_waitcnt vmcnt(0)")
        a("s_mov_b64 exec, 1")
        a(f"buffer_store_dword v{FV_E}, v{FV_ZERO}, s[{S_WS}:{S_WS+3}], s{S_FLAG} offen{' sc1' if sc == ' sc1' else ''}")
        a("s_mov_b64 exec, -1")
        stamp(a, cfg, 7)
        if not lab: a("s_branch L_final")

def fold_reduce(a, r, ldsoff):
    a(f"""
    s_nop 1
    v_permlane32_swap_b32 v{r}, v{r+1}
    v_permlane32_swap_b32 v{r+2}, v{r+3}
    v_add_f32 v{r}, v{r}, v{r+1}
    v_add_f32 v{r+2}, v{r+2}, v{r+3}
    s_nop 1
    v_permlane16_swap_b32 v{r}, v{r+2}
    v_add_f32 v{r}, v{r}, v{r+2}
    """)
    for sh in (8, 4, 2, 1):
        a("s_nop 1")
        a(f"v_add_f32_dpp v{r}, v{r}, v{r} row_ror:{sh} row_mask:0xf bank_mask:0xf")
    a(f"""
    s_mov_b32 exec_lo, 0x00010001
    s_mov_b32 exec_hi, 0x00010001
    ds_write_b32 v{FV_RW}, v{r} offset:{ldsoff}
    s_mov_b64 exec, -1
    s_waitcnt lgkmcnt(0)
    s_barrier
    ds_read_b128 {vr(r)}, v{FV_RR} offset:{ldsoff}
    ds_read_b128 {vr(r+4)}, v{FV_RR} offset:{ldsoff + 16}
    s_waitcnt lgkmcnt(0)
    v_pk_add_f32 {vr(r,2)}, {vr(r,2)}, {vr(r+2,2)}
    v_pk_add_f32 {vr(r+4,2)}, {vr(r+4,2)}, {vr(r+6,2)}
    v_pk_add_f32 {vr(r,2)}, {vr(r,2)}, {vr(r+4,2)}
    v_add_f32 v{r}, v{r}, v{r+1}
    """)

def final_phase(a, cfg):
    a("L_final:")
    a(f"""
    s_mov_b32 s{S_K}, 0
    L_flagpoll:
    buffer_load_dwordx4 v[20:23], v{FV_ZERO}, s[{S_WS}:{S_WS+3}], s{S_POLL} offen sc1
    s_waitcnt vmcnt(0)
    v_xor_b32 v20, s{S_E1}, v20
    v_xor_b32 v21, s{S_E1}, v21
    v_xor_b32 v22, s{S_E1}, v22
    v_xor_b32 v23, s{S_E1}, v23
    v_or3_b32 v20, v20, v21, v22
    v_or_b32 v20, v20, v23
    s_add_u32 s{S_K}, s{S_K}, 1
    v_readfirstlane_b32 s{S_T1}, v20
    s_cmp_eq_u32 s{S_T1}, 0
    s_cbranch_scc1 L_flagok
    s_cmp_ge_u32 s{S_K}, {POLL_MAX}
    s_cbranch_scc1 L_flagok
    s_branch L_flagpoll
    L_flagok:
    """)
    stamp(a, cfg, 10)
    for ks in range(4):
        a(f"buffer_load_dwordx2 {vr(F_IN + 2*ks, 2)}, v{FV_PAY}, s[{S_WS}:{S_WS+3}], s{S_PAY} offen offset:{ks*1024} sc1")
    a("s_waitcnt vmcnt(2)")
    a(f"v_mfma_f32_16x16x32_bf16 {vr(F_Y)}, {vr(FV_A)}, {vr(F_IN)}, {vr(FV_C)}")
    a("s_waitcnt vmcnt(0)")
    stamp(a, cfg, 11)
    a(f"v_mfma_f32_16x16x32_bf16 {vr(F_Y)}, {vr(FV_A)}, {vr(F_IN+4)}, {vr(F_Y)}")
    if cfg.get("wbl2"):
        mask = {1: 15, 2: 3, 3: 0}[cfg["wbl2"]]
        a(f"""
        s_and_b32 s{S_T0}, s{S_MEM}, {mask}
        s_or_b32 s{S_T0}, s{S_T0}, s{S_WAVE}
        s_cmp_eq_u32 s{S_T0}, 0
        s_cbranch_scc0 L_nowb
        buffer_wbl2 sc1
        L_nowb:
        """)
    R = F_T
    a("s_nop 7")
    for c in range(4): a(f"v_cndmask_b32 v{R+c}, 0, v{F_Y+c}, s[{S_VALID}:{S_VALID+1}]")
    fold_reduce(a, R, 0)
    a(f"v_mul_f32 v{R}, {f2h(1/493)}, v{R}")
    a("s_nop 1")
    for c in range(4):
        a(f"v_subrev_f32_dpp v{F_Y+c}, v{R}, v{F_Y+c} quad_perm:[{c},{c},{c},{c}] row_mask:0xf bank_mask:0xf")
    a(f"s_mov_b64 exec, s[{S_VALID}:{S_VALID+1}]")
    for c in range(4): a(f"v_mul_f32 v{FV_R2+c}, v{F_Y+c}, v{F_Y+c}")
    a("s_mov_b64 exec, -1")
    fold_reduce(a, FV_R2, 128)
    a(f"v_mov_b32 v{R+1}, {f2h(1e-5)}")
    a(f"v_fmac_f32 v{R+1}, {f2h(1/493)}, v{FV_R2}")
    a(f"v_rsq_f32 v{R+1}, v{R+1}")
    a("s_nop 0")
    a(f"v_mul_f32 v{R+1}, v{R+1}, v{FV_GAM}")
    a("s_nop 1")
    for c in range(4):
        a(f"v_fmac_f32_dpp v{FV_BETA+c}, v{R+1}, v{F_Y+c} quad_perm:[{c},{c},{c},{c}] row_mask:0xf bank_mask:0xf")
    X = FV_BETA
    c1 = 2.302208198144325
    a(f"s_mov_b32 s{S_T0}, {f2h(c1*0.044715)}")
    a(f"v_mov_b32 v{R}, {f2h(c1)}")
    Z = R + 2
    for c in range(4): a(f"v_mul_f32 v{Z+c}, v{X+c}, v{X+c}")
    for c in range(4): a(f"v_fma_f32 v{Z+c}, v{Z+c}, s{S_T0}, v{R}")
    for c in range(4): a(f"v_mul_f32 v{Z+c}, v{X+c}, v{Z+c}")
    for c in range(4): a(f"v_exp_f32 v{Z+c}, -v{Z+c}")
    a("s_nop 0")
    for c in range(4): a(f"v_add_f32 v{Z+c}, 1.0, v{Z+c}")
    for c in range(4): a(f"v_rcp_f32 v{Z+c}, v{Z+c}")
    a("s_nop 0")
    for c in range(4): a(f"v_mul_f32 v{X+c}, v{X+c}, v{Z+c}")
    a(f"v_cvt_pk_bf16_f32 v{Z}, v{X}, v{X+1}")
    a(f"v_cvt_pk_bf16_f32 v{Z+1}, v{X+2}, v{X+3}")
    a(f"s_mov_b64 exec, s[{S_VALID}:{S_VALID+1}]")
    a(f"buffer_store_dwordx2 {vr(Z,2)}, v{FV_OUT}, s[{S_OUT}:{S_OUT+3}], s{S_OUTO} offen")
    a(f"""
    s_or_b32 s{S_T0}, s{S_MEM}, s{S_WAVE}
    s_cmp_eq_u32 s{S_T0}, 0
    s_cbranch_scc0 L_noepoch
    s_lshl_b32 s{S_T1}, s{S_GRP}, 7
    s_add_u32 s{S_T1}, s{S_T1}, {EPOCH}
    s_mov_b64 exec, 1
    buffer_store_dword v{FV_E}, v{FV_ZERO}, s[{S_WS}:{S_WS+3}], s{S_T1} offen
    L_noepoch:
    """)
    stamp(a, cfg, 12)
    if cfg.get("stamps"): a("s_waitcnt vmcnt(0)")
    stamp(a, cfg, 13)
    stamp_flush(a, cfg)

HEADER = open("cdna_kernels/" + NAME + ".s.ref").read().split("; Override")[0]

def gen(cfg):
    a = A()
    out = HEADER
    out += "; Fused kernel: implicit-GEMM conv (split-K 4 over channels) -> in-launch all-to-all of bf16 partials -> GroupNorm over time -> GELU\n"
    out += f"; @launch grid=(256,1,1) block=(512,1,1) lds={LDS_BYTES}\n"
    a('.amdgcn_target "amdgcn-amd-amdhsa--gfx950"')
    a(".text")
    a(f".globl {KNAME}\n.p2align 8\n.type {KNAME},@function\n{KNAME}:")
    prologue(a, cfg)
    a(f"s_cmp_ge_u32 s{S_WAVE}, 4")
    a("s_cbranch_scc1 L_loader")
    compute(a, cfg)
    final_phase(a, cfg)
    if cfg.get("probe"):
        idx = cfg["probe"]
        a(f"""
        s_cmp_ge_u32 s{S_WAVE}, 4
        s_cbranch_scc1 L_noprobe
        {"s_sub_u32 s84, s95, s94" if idx == 89 else f"s_sub_u32 s84, s{86+idx}, s86"}
        {"s_lshr_b32 s84, s84, 2" if idx == 89 else "s_mul_i32 s84, s84, 4"}
        s_memrealtime s[96:97]
        s_waitcnt lgkmcnt(0)
        s_add_u32 s84, s84, s96
        L_probe:
        s_memrealtime s[96:97]
        s_waitcnt lgkmcnt(0)
        s_sub_u32 s96, s96, s84
        s_cmp_lt_i32 s96, 0
        s_cbranch_scc1 L_probe
        L_noprobe:
        """)
    if cfg.get("pad"):
        a(f"""
        s_waitcnt vmcnt(0) lgkmcnt(0)
        L_pad:
        s_memrealtime s[96:97]
        s_waitcnt lgkmcnt(0)
        s_sub_u32 s96, s96, s98
        s_cmp_lt_u32 s96, {cfg['pad']}
        s_cbranch_scc1 L_pad
        """)
    a("s_endpgm")
    a("L_loader:")
    loader(a, cfg)
    stamp(a, cfg, 9)
    a("s_branch L_final")
    a("L_end:")
    a("s_endpgm")
    out += a.text()
    out += f""".section .rodata,"a"
.p2align 6
.amdhsa_kernel {KNAME}
  .amdhsa_next_free_vgpr {NVGPR}
  .amdhsa_next_free_sgpr 102
  .amdhsa_accum_offset {NVGPR}
  .amdhsa_group_segment_fixed_size 0
  .amdhsa_kernarg_size 64
  .amdhsa_user_sgpr_count 2
  .amdhsa_user_sgpr_kernarg_segment_ptr 1
  .amdhsa_system_sgpr_workgroup_id_x 1
.end_amdhsa_kernel
"""
    return out

if __name__ == "__main__":
    ap = argparse.ArgumentParser()
    ap.add_argument("-o", default="/dev/stdout")
    ap.add_argument("--stamps", type=int, nargs="?", const=1, default=0)
    ap.add_argument("--map", type=int, default=1)
    ap.add_argument("--forceslow", action="store_true")
    ap.add_argument("--pad", type=int, default=0)
    ap.add_argument("--probe", type=int, default=0)
    ap.add_argument("--fastflavor", type=str, default="")
    ap.add_argument("--nopayload", action="store_true")
    ap.add_argument("--wbl2", type=int, default=0)
    ap.add_argument("--mallw", type=int, default=2)
    ap.add_argument("--mallx", type=int, default=0)
    ap.add_argument("--mallpos", type=int, default=1)
    ap.add_argument("--xsched", type=int, default=0)
    ap.add_argument("--ctouch", type=int, default=2)
    ap.add_argument("--premall", type=int, default=0)
    args = ap.parse_args()
    if args.probe: args.stamps = 1
    cfg = vars(args)
    open(args.o, "w").write(gen(cfg))
```

```python
import sys, argparse, struct

NAME = "standalone__self_sup_conv_stem_hubert__speech"
KNAME = NAME + "_kernel"

XARR = 17 * 1056
WRING = 4 * XARR
P = 5
NSTG = 4
STAGE = P * 4096
RED = WRING + NSTG * STAGE
MODEW = RED + 256
CNTW = RED + 260
LDS_BYTES = RED + 512
TAPS = [0, 2, 4, 6, 8, 10, 12, 14, 1, 3, 5, 7, 9, 11, 13]
INBOX_GROUP = 16 * 16 * 1024
FLAGS = 16 * INBOX_GROUP
EPOCH = FLAGS + 16 * 2048
ARRIVE = EPOCH + 16 * 128
STAMPS = 8 << 20
POLL_MAX = 200000

def f2h(x): return hex(struct.unpack('<I', struct.pack('<f', x))[0])

class A:
    def __init__(self): self.l = []
    def __call__(self, s):
        for x in s.strip("\n").split("\n"):
            x = x.strip()
            if x: self.l.append(x)
    def text(self):
        out = []
        for x in self.l:
            if x.endswith(":") or x.startswith(".") or x.startswith(";"): out.append(x)
            else: out.append("    " + x)
        return "\n".join(out) + "\n"

S_RAW = 4
S_POLL, S_PAY, S_FLAG = 3, 10, 11
S_X, S_W, S_WS, S_OUT = 12, 16, 20, 48
S_OUTO, S_STO = 24, 25
S_BT, S_NG, S_MT, S_KS, S_MEM, S_GRP, S_WAVE, S_Q = 26, 27, 28, 29, 30, 31, 32, 33
S_XO, S_XQ, S_XM, S_WO, S_WM = 34, 35, 36, 37, 38
S_COL2 = 39
S_T0, S_T1, S_T2, S_T3 = 40, 41, 42, 43
S_SG, S_K, S_MODE, S_XCC = 44, 45, 46, 47
S_E1, S_ARW, S_ARA = 52, 53, 54
S_KA = 64
S_VALID = 80
V_LANE, V_OFFX, V_OFFW = 1, 2, 3
V_XL, V_WL, V_XC, V_XN, V_W, V_MODE = 4, 5, 6, 7, 8, 9
V_T0, V_T1, V_T2, V_T3 = 10, 11, 12, 13
V_STO, V_MW = 14, 15
ACC = 16
XE = 48
XO = 84
WB = 120
V_PF0, V_PF1 = 132, 133
FV_A, FV_C, FV_BETA, FV_R2 = 136, 140, 144, 148
FV_GAM, FV_PAY, FV_ZERO, FV_OUT, FV_RW, FV_RR, FV_L, FV_E = 156, 157, 158, 159, 160, 161, 162, 163
FT = 164
NVGPR = 168
F_Y, F_IN, F_T = 16, 40, 28

def stamp(a, cfg, idx, clk=False):
    if not cfg.get("stamps"): return
    if cfg.get("stamps") == 2 and idx >= 10: return
    a(f"{'s_memtime' if clk else 's_memrealtime'} s[84:85]")
    a("s_waitcnt lgkmcnt(0)")
    a(f"s_mov_b32 s{86+idx}, s84")
def stamp_flush(a, cfg):
    if not cfg.get("stamps") or cfg.get("probe"): return
    a("s_mov_b64 exec, -1")
    a(f"s_lshl_b32 s84, s2, 3")
    a(f"s_add_u32 s84, s84, s{S_WAVE}")
    a(f"s_lshl_b32 s84, s84, 6")
    a(f"s_add_u32 s84, s84, {STAMPS}")
    a(f"v_mov_b32 v0, 0")
    for i in range(16): a(f"v_mov_b32 v{100+i}, s{86+i}")
    for i in range(4):
        a(f"buffer_store_dwordx4 v[{100+4*i}:{103+4*i}], v0, s[{S_WS}:{S_WS+3}], s84 offen offset:{16*i}")

def vr(b, n=4): return f"v[{b}:{b+n-1}]"

def srd(a, base, ptr, nbytes):
    a(f"s_mov_b32 s{base}, s{ptr}")
    a(f"s_and_b32 s{base+1}, s{ptr+1}, 0xffff")
    if isinstance(nbytes, int): a(f"s_mov_b32 s{base+2}, {nbytes}")
    else: a(nbytes)
    a(f"s_mov_b32 s{base+3}, 0x20000")

def dma_x(a, half, par, i):
    arr = (2 * half + par) * XARR
    if i < 4:
        a(f"s_add_u32 m0, s{S_XM}, {arr + i * 4 * 1056}")
        a(f"s_add_u32 s{S_T0}, s{S_XQ}, {i * 65536 + par * 1024 + half * 128}")
    else:
        a(f"s_mov_b32 m0, {arr + 16 * 1056}")
        a(f"s_add_u32 s{S_T0}, s{S_XO}, {16 * 16384 + par * 1024 + half * 128}")
    a(f"buffer_load_dwordx4 v{V_OFFX}, s[{S_X}:{S_X+3}], s{S_T0} offen lds")

def dma_x16(a, half, par):
    arr = 2 * half + par
    lab = f"L_skipx{arr}"
    a(f"s_cmp_eq_u32 s{S_Q}, {arr}")
    a(f"s_cbranch_scc0 {lab}")
    dma_x(a, half, par, 4)
    a(f"{lab}:")

def dma_w(a, n):
    k, nl = divmod(n, 15)
    tap = TAPS[nl]
    slot = ((n // P) % NSTG) * STAGE + (n % P) * 4096
    a(f"s_add_u32 m0, s{S_WM}, {slot}")
    a(f"s_add_u32 s{S_T0}, s{S_WO}, {(tap * 512 + k * 32) * 1024}")
    a(f"buffer_load_dwordx4 v{V_OFFW}, s[{S_W}:{S_W+3}], s{S_T0} offen lds")

def x_imm(par, m): return par * XARR + (m >> 3) * 1056 + (m & 7) * 128

def prologue(a, cfg):
    a(f"""
    s_cmp_ge_u32 s2, 256
    s_cbranch_scc1 L_end
    """)
    stamp(a, cfg, 0)
    if cfg.get("pad"): a("s_memrealtime s[98:99]")
    a(f"s_load_dwordx16 s[{S_KA}:{S_KA+15}], s[0:1], 0")
    a(f"""
    s_getpc_b64 s[4:5]
    L_pc:
    v_lshrrev_b32 v{V_PF0}, 6, v0
    v_and_b32 v{V_PF1}, 7, v0
    v_lshl_add_u32 v{V_PF0}, v{V_PF0}, 3, v{V_PF1}
    v_lshlrev_b32 v{V_PF0}, 7, v{V_PF0}
    s_sub_u32 s4, s4, L_pc-{KNAME}
    s_subb_u32 s5, s5, 0
    v_min_u32 v{V_PF0}, L_end-{KNAME}, v{V_PF0}
    global_load_dword v{V_PF1}, v{V_PF0}, s[4:5]
    v_mov_b32 v{V_T0}, {CNTW}
    v_mov_b32 v{V_T1}, 0
    ds_write_b32 v{V_T0}, v{V_T1}
    """)
    if cfg.get("map", 1) == 1:
        a(f"""
        s_and_b32 s24, s2, 7
        s_lshr_b32 s25, s2, 3
        s_and_b32 s{S_BT}, s24, 1
        s_and_b32 s{S_NG}, s24, 6
        s_lshr_b32 s{S_T0}, s25, 4
        s_add_u32 s{S_NG}, s{S_NG}, s{S_T0}
        """)
    else:
        a(f"""
        s_lshr_b32 s24, s2, 4
        s_and_b32 s25, s2, 15
        s_and_b32 s{S_BT}, s24, 1
        s_lshr_b32 s{S_NG}, s24, 1
        """)
    a(f"""
    s_lshr_b32 s{S_MT}, s25, 2
    s_and_b32 s{S_MT}, s{S_MT}, 3
    s_and_b32 s{S_KS}, s25, 3
    s_and_b32 s{S_MEM}, s25, 15
    s_lshl_b32 s{S_GRP}, s{S_BT}, 3
    s_add_u32 s{S_GRP}, s{S_GRP}, s{S_NG}
    v_lshrrev_b32 v{V_T0}, 6, v0
    v_and_b32 v{V_LANE}, 63, v0
    v_readfirstlane_b32 s{S_WAVE}, v{V_T0}
    v_lshrrev_b32 v{V_T0}, 3, v{V_LANE}          ; lane>>3
    v_and_b32 v{V_T1}, 7, v{V_LANE}              ; lane&7
    v_lshlrev_b32 v{V_OFFX}, 11, v{V_T0}
    v_lshl_add_u32 v{V_OFFX}, v{V_T1}, 4, v{V_OFFX}
    s_and_b32 s{S_Q}, s{S_WAVE}, 3
    s_mul_i32 s{S_XO}, s{S_BT}, 1024000
    s_add_u32 s{S_T2}, s{S_XO}, 1024000
    s_lshl_b32 s{S_T0}, s{S_MT}, 18
    s_add_u32 s{S_XO}, s{S_XO}, s{S_T0}
    s_lshl_b32 s{S_T0}, s{S_KS}, 8
    s_add_u32 s{S_XO}, s{S_XO}, s{S_T0}
    s_lshl_b32 s{S_T0}, s{S_Q}, 14
    s_add_u32 s{S_XQ}, s{S_XO}, s{S_T0}
    s_mul_i32 s{S_XM}, s{S_Q}, 1056
    s_lshl_b32 s{S_WO}, s{S_KS}, 17
    s_lshl_b32 s{S_T0}, s{S_Q}, 13
    s_add_u32 s{S_WO}, s{S_WO}, s{S_T0}
    s_lshl_b32 s{S_T0}, s{S_NG}, 7
    s_add_u32 s{S_WO}, s{S_WO}, s{S_T0}
    s_lshl_b32 s{S_WM}, s{S_Q}, 10
    s_add_u32 s{S_WM}, s{S_WM}, {WRING}
    s_lshl_b32 s{S_T1}, s{S_MEM}, 3
    s_add_u32 s{S_COL2}, s{S_T0}, s{S_T1}
    v_bfe_u32 v{V_T2}, v{V_LANE}, 4, 1
    s_and_b32 s{S_T1}, s{S_Q}, 1
    s_lshl_b32 s{S_T1}, s{S_T1}, 1
    v_or_b32 v{V_T2}, s{S_T1}, v{V_T2}
    v_lshrrev_b32 v{V_T3}, 1, v{V_T1}
    v_xor_b32 v{V_T2}, v{V_T3}, v{V_T2}
    v_lshlrev_b32 v{V_OFFW}, 10, v{V_T0}
    v_lshl_add_u32 v{V_OFFW}, v{V_T2}, 5, v{V_OFFW}
    v_and_b32 v{V_T3}, 1, v{V_LANE}
    v_lshl_add_u32 v{V_OFFW}, v{V_T3}, 4, v{V_OFFW}
    s_lshr_b32 s55, s{S_WAVE}, 2
    s_mul_i32 s56, s55, {XARR}
    s_add_u32 s56, s56, s{S_XM}
    s_lshl_b32 s57, s55, 10
    s_add_u32 s57, s57, s{S_XQ}
    s_mul_i32 s58, s55, {10 * 524288}
    s_add_u32 s58, s58, s{S_WO}
    s_mul_i32 s59, s55, {5 * 524288}
    s_sub_u32 s59, s{S_WO}, s59
    s_mul_i32 s60, s55, {STAGE}
    s_add_u32 s60, s60, s{S_WM}
    s_mov_b32 s{S_X+2}, s{S_T2}
    s_mov_b32 s{S_X+3}, 0x20000
    s_mov_b32 s{S_W+2}, 7864320
    s_mov_b32 s{S_W+3}, 0x20000
    s_waitcnt lgkmcnt(0)
    s_barrier
    s_mov_b32 s{S_X}, s{S_KA}
    s_and_b32 s{S_X+1}, s{S_KA+1}, 0xffff
    s_mov_b32 s{S_W}, s{S_KA+2}
    s_and_b32 s{S_W+1}, s{S_KA+3}, 0xffff
    """)
    stamp(a, cfg, 1)
    if cfg.get("prio"):
        a(f"""
        s_cmp_lt_u32 s{S_WAVE}, 4
        s_cbranch_scc0 L_noprio
        s_setprio 2
        L_noprio:
        """)
    if cfg.get("ldelay"):
        a(f"""
        s_cmp_ge_u32 s{S_WAVE}, 4
        s_cbranch_scc0 L_nodelay
        """)
        late_params(a)
        for r in range(cfg["ldelay"]): a("s_nop 7")
        a("L_nodelay:")
    if cfg.get("premall"):
        nst = cfg["premall"]
        a(f"""
        s_cmp_eq_u32 s{S_WAVE}, 7
        s_cbranch_scc0 L_nopremall
        v_lshrrev_b32 v20, 1, v{V_LANE}
        v_min_u32 v20, {5*nst//2 - 1}, v20
        s_mul_i32 s{S_T0}, s2, {5*nst//2}
        v_add_u32 v20, s{S_T0}, v20
        v_lshrrev_b32 v21, 7, v20
        v_and_b32 v20, 127, v20
        v_lshrrev_b32 v22, 5, v20
        v_and_b32 v20, 31, v20
        v_lshlrev_b32 v20, 10, v20
        v_lshl_or_b32 v20, v22, 17, v20
        v_cmp_le_u32 vcc, 15, v21
        v_subrev_u32 v22, 15, v21
        s_nop 0
        v_cndmask_b32 v22, v21, v22, vcc             ; nl
        v_cndmask_b32 v23, 0, 1, vcc                 ; k-step
        v_lshl_or_b32 v20, v23, 15, v20
        v_lshlrev_b32 v23, 1, v22
        v_cmp_gt_u32 vcc, 8, v22
        v_subrev_u32 v21, 15, v23
        s_nop 0
        v_cndmask_b32 v23, v21, v23, vcc             ; tap
        v_lshl_or_b32 v20, v23, 19, v20
        v_and_b32 v21, 1, v{V_LANE}
        v_lshl_or_b32 v20, v21, 6, v20
        s_movk_i32 s{S_T0}, 384
        buffer_load_dword v134, v20, s[{S_W}:{S_W+3}], s{S_T0} offen
        L_nopremall:
        """)
    for i in range(4):
        a(f"s_add_u32 m0, s56, {i * 4 * 1056}")
        a(f"s_add_u32 s{S_T0}, s57, {i * 65536}")
        a(f"buffer_load_dwordx4 v{V_OFFX}, s[{S_X}:{S_X+3}], s{S_T0} offen lds")
    a(f"""
    s_cmp_eq_u32 s{S_Q}, s55
    s_cbranch_scc0 L_skipx01
    s_mul_i32 s{S_T1}, s55, {XARR}
    s_add_u32 m0, s{S_T1}, {16 * 1056}
    s_lshl_b32 s{S_T1}, s55, 10
    s_add_u32 s{S_T1}, s{S_T1}, s{S_XO}
    s_add_u32 s{S_T0}, s{S_T1}, {16 * 16384}
    buffer_load_dwordx4 v{V_OFFX}, s[{S_X}:{S_X+3}], s{S_T0} offen lds
    L_skipx01:
    """)
    for j in range(5):
        a(f"s_add_u32 m0, s60, {j * 4096}")
        a(f"s_add_u32 s{S_T0}, s{58 if j < 3 else 59}, {TAPS[j] * 524288}")
        a(f"buffer_load_dwordx4 v{V_OFFW}, s[{S_W}:{S_W+3}], s{S_T0} offen lds")

def late_params(a):
    srd(a, S_WS, S_KA + 14, 268435456)
    srd(a, S_OUT, S_KA + 10, 2 * 493 * 512 * 2)
    a(f"s_load_dwordx2 s[{S_RAW}:{S_RAW+1}], s[{S_KA+4}:{S_KA+5}], s{S_COL2}")
    a(f"s_load_dwordx2 s[{S_RAW+2}:{S_RAW+3}], s[{S_KA+6}:{S_KA+7}], s{S_COL2}")
    a(f"s_load_dwordx2 s[{S_RAW+4}:{S_RAW+5}], s[{S_KA+8}:{S_KA+9}], s{S_COL2}")
    a(f"s_lshl_b32 s{S_T1}, s{S_GRP}, 7")
    a(f"s_add_u32 s{S_T1}, s{S_T1}, {EPOCH}")
    a(f"s_load_dword s{S_E1}, s[{S_KA+14}:{S_KA+15}], s{S_T1}")

def mall_prefetch(a, cfg):
    a(f"""
    s_cmp_ge_u32 s{S_Q}, {cfg.get("mallw", 2)}
    s_cbranch_scc1 L_mallx
    v_lshrrev_b32 v20, 1, v{V_LANE}
    v_min_u32 v20, 29, v20
    v_lshlrev_b32 v20, 10, v20
    v_and_b32 v21, 1, v{V_LANE}
    v_lshl_or_b32 v20, v21, 6, v20
    s_mul_i32 s{S_T0}, s2, 30720
    s_lshl_b32 s{S_T1}, s{S_Q}, 9
    s_add_u32 s{S_T0}, s{S_T0}, s{S_T1}
    s_add_u32 s{S_T0}, s{S_T0}, 384
    buffer_load_dword v134, v20, s[{S_W}:{S_W+3}], s{S_T0} offen
    s_branch L_nomallpf
    L_mallx:
    """)
    if cfg.get("mallx"):
        a(f"""
        s_cmp_eq_u32 s{S_Q}, 2
        s_cbranch_scc0 L_nomallpf
        v_bfe_u32 v20, v{V_LANE}, 2, 3
        s_lshl_b32 s{S_T0}, s2, 3
        v_add_u32 v20, s{S_T0}, v20
        v_min_u32 v20, 1999, v20
        v_lshlrev_b32 v20, 10, v20
        v_bfe_u32 v21, v{V_LANE}, 1, 1
        v_lshl_or_b32 v20, v21, 9, v20
        v_and_b32 v21, 1, v{V_LANE}
        v_lshl_or_b32 v20, v21, 6, v20
        v_add_u32 v20, 384, v20
        global_load_dword v134, v20, s[{S_KA}:{S_KA+1}]
        """)
    a("L_nomallpf:")

def setup_lanes(a):
    T = FT
    a(f"""
    v_and_b32 v{T}, 3, v{V_LANE}
    v_lshlrev_b32 v{FV_RR}, 5, v{T}
    v_add_u32 v{FV_RR}, {RED}, v{FV_RR}
    v_bfe_u32 v{T}, v{V_LANE}, 2, 2
    v_lshrrev_b32 v{T+1}, 4, v{V_LANE}
    v_cmp_eq_u32 vcc, v{T}, v{T+1}
    v_and_b32 v{T+2}, 1, v{V_LANE}
    v_lshlrev_b32 v{T+2}, 4, v{T+2}
    v_mov_b32 v{T+3}, 0x3f80
    v_lshlrev_b32 v{T+3}, v{T+2}, v{T+3}
    v_cndmask_b32 v{T+3}, 0, v{T+3}, vcc
    v_bfe_u32 v{T}, v{V_LANE}, 1, 1
    v_cmp_eq_u32 vcc, 0, v{T}
    v_mov_b32 v{FV_ZERO}, 0
    v_lshlrev_b32 v{FV_PAY}, 3, v{V_LANE}
    v_cndmask_b32 v{FV_A}, 0, v{T+3}, vcc
    v_cndmask_b32 v{FV_A+1}, v{T+3}, 0, vcc
    v_mov_b32 v{FV_A+2}, v{FV_A}
    v_mov_b32 v{FV_A+3}, v{FV_A+1}
    v_lshrrev_b32 v{T}, 4, v{V_LANE}
    v_and_b32 v{T+1}, 1, v{T}
    v_lshrrev_b32 v{T}, 1, v{T}
    v_lshl_or_b32 v{T}, v{T+1}, 1, v{T}
    v_lshlrev_b32 v{T}, 5, v{T}
    s_lshl_b32 s{S_T0}, s{S_WAVE}, 2
    s_add_u32 s{S_T0}, s{S_T0}, {RED}
    v_add_u32 v{FV_RW}, s{S_T0}, v{T}
    s_lshr_b32 s{S_T1}, s{S_WAVE}, 1
    s_and_b32 s{S_T2}, s{S_MEM}, 12
    s_add_u32 s{S_T2}, s{S_T2}, s{S_T1}
    s_lshl_b32 s{S_T2}, s{S_T2}, 7
    s_lshl_b32 s{S_T3}, s{S_GRP}, 11
    s_add_u32 s{S_T2}, s{S_T2}, s{S_T3}
    s_add_u32 s{S_POLL}, s{S_T2}, {FLAGS}
    s_lshl_b32 s{S_T0}, s{S_GRP}, 18
    s_lshl_b32 s{S_T2}, s{S_MEM}, 14
    s_add_u32 s{S_T0}, s{S_T0}, s{S_T2}
    s_lshl_b32 s{S_T2}, s{S_T1}, 12
    s_add_u32 s{S_T0}, s{S_T0}, s{S_T2}
    s_and_b32 s{S_T2}, s{S_WAVE}, 1
    s_lshl_b32 s{S_T3}, s{S_T2}, 9
    s_add_u32 s{S_PAY}, s{S_T0}, s{S_T3}
    s_lshl_b32 s{S_T1}, s{S_T1}, 7
    s_lshl_b32 s{S_T2}, s{S_T2}, 2
    s_add_u32 s{S_T1}, s{S_T1}, s{S_T2}
    v_bfe_u32 v{FV_L}, v{V_LANE}, 1, 4
    v_lshlrev_b32 v{FV_L}, 3, v{FV_L}
    v_lshrrev_b32 v{T+2}, 5, v{V_LANE}
    v_lshl_add_u32 v{FV_L}, v{T+2}, 1, v{FV_L}
    v_and_b32 v{T+2}, 1, v{V_LANE}
    v_add3_u32 v{FV_L}, v{FV_L}, v{T+2}, s{S_T1}
    s_movk_i32 s{S_T3}, 493
    v_cmp_gt_u32 s[{S_VALID}:{S_VALID+1}], s{S_T3}, v{FV_L}
    v_lshlrev_b32 v{FV_OUT}, 10, v{FV_L}
    s_mul_i32 s{S_OUTO}, s{S_BT}, {493*1024}
    s_add_u32 s{S_OUTO}, s{S_OUTO}, s{S_COL2}
    """)
    for c in range(8): a(f"v_mov_b32 v{FV_R2+c}, 0")

def setup_params(a):
    T = FT
    for c in range(4):
        src = S_RAW + (c >> 1)
        a(f"s_lshl_b32 s{S_T0}, s{src}, 16" if c % 2 == 0 else f"s_and_b32 s{S_T0}, s{src}, 0xffff0000")
        srcb = S_RAW + 4 + (c >> 1)
        a(f"s_lshl_b32 s{S_T1}, s{srcb}, 16" if c % 2 == 0 else f"s_and_b32 s{S_T1}, s{srcb}, 0xffff0000")
        a(f"v_mov_b32 v{FV_C+c}, s{S_T0}")
        a(f"v_mov_b32 v{FV_BETA+c}, s{S_T1}")
    a(f"""
    v_and_b32 v{T}, 3, v{V_LANE}
    v_mov_b32 v{T+1}, s{S_RAW+2}
    v_mov_b32 v{T+2}, s{S_RAW+3}
    v_cmp_gt_u32 vcc, 2, v{T}
    v_and_b32 v{T+3}, 1, v{V_LANE}
    v_lshlrev_b32 v{T+3}, 4, v{T+3}
    v_cndmask_b32 v{T+1}, v{T+2}, v{T+1}, vcc
    v_sub_u32 v{T+3}, 16, v{T+3}
    v_lshlrev_b32 v{T+1}, v{T+3}, v{T+1}
    v_and_b32 v{FV_GAM}, 0xffff0000, v{T+1}
    v_mov_b32 v{FV_E}, s{S_E1}
    """)

def loader(a, cfg):
    def xop(half, par, i): return ("x", half, par, i) if i < 4 else ("x16", half, par)
    def st(s): return [("w", n) for n in range(s * P, (s + 1) * P)]
    XS = cfg.get("xsched", 0)
    E = [xop(1, 0, i) for i in range(5)]; O = [xop(1, 1, i) for i in range(5)]
    if XS == 0:   xs = {2: ([], E[0:2]), 3: ([], E[2:4]), 4: (E[4:5], O[0:1]), 5: ([], O[1:3]), 6: (O[3:5], [])}
    elif XS == 1: xs = {1: ([], E[0:3]), 2: ([], E[3:5] + O[0:1]), 3: ([], O[1:3]), 4: ([], O[3:5])}
    elif XS == 2: xs = {1: ([], E + O)}
    elif XS == 3: xs = {1: ([], E), 2: ([], O[0:2]), 3: ([], O[2:4]), 4: ([], O[4:5])}
    elif XS == 4: xs = {2: ([], E), 3: ([], O)}
    def ph(m, mid):
        pre, post = xs.get(m, ([], []))
        return pre + mid + post
    phases = [
        [("done", xop(0, 1, i)) for i in range(5)] + [("done", op) for op in st(1)] + ([("mallpf",)] if cfg.get("mallpos", 1) == 1 else []) + st(2) + [("params",)] + st(3) + ([("mallpf",)] if cfg.get("mallpos", 1) == 2 else []),
        ph(1, [("arrive",)] + ([("mallpf",)] if cfg.get("mallpos", 1) == 3 else [])),
        ph(2, st(4)),
        ph(3, st(5)),
        ph(4, st(6)),
        ph(5, st(7)),
        ph(6, st(8)) + ([("touch",), ("nop_vm",)] if cfg.get("ctouch", 2) == 0 else []),
        st(9) + [("dbgload",)],
        st(10),
        st(11) + ([("touch",), ("nop_vm",)] if cfg.get("ctouch", 2) == 2 else []),
        [("setup",)],
        [("mode",)],
    ]
    PFD = cfg.get("pfd", 0)
    if PFD:
        newp = []
        for m, ph_ in enumerate(phases):
            extra = []
            if m == 0:
                extra = [("pfsetup",)] + [("pf", s_) for s_ in range(4, min(PFD, 12))]
            elif 4 <= m - 1 + PFD <= 11:
                extra = [("pf", m - 1 + PFD)]
            if m == 1: newp.append(extra + ph_)
            elif m >= 9: newp.append(ph_)
            else: newp.append(ph_ + extra)
        phases = newp
    optional = ("x16", "mode", "arrive", "mallpf", "params", "setup", "pfsetup", "pf")
    flat, marks = [], []
    for ph in phases:
        flat += [op[1] if op[0] == "done" else op for op in ph]; marks.append(len(flat))
    def last_required(m):
        req = -1
        for idx, op in enumerate(flat):
            if op[0] == "w" and op[1] // P <= m: req = idx
            if op[0] in ("x", "x16"):
                need = {(0, 1): 1, (1, 0): 5, (1, 1): 7}[(op[1], op[2])]
                if need <= m: req = max(req, idx)
            if op[0] == "dbgload" and m >= 10: req = max(req, idx)
        return req
    for m, ph in enumerate(phases):
        for op in ph:
            if op[0] in ("done", "nop_vm"): continue
            if op[0] == "w": dma_w(a, op[1])
            elif op[0] == "x": dma_x(a, op[1], op[2], op[3])
            elif op[0] == "x16": dma_x16(a, op[1], op[2])
            elif op[0] == "mallpf": mall_prefetch(a, cfg)
            elif op[0] == "params": late_params(a)
            elif op[0] == "pfsetup":
                a(f"""
                s_mul_i32 s{S_T1}, s{S_MT}, 40
                s_mul_i32 s{S_T2}, s{S_Q}, 10
                s_add_u32 s{S_T1}, s{S_T1}, s{S_T2}
                v_min_u32 v20, 9, v{V_LANE}
                v_add_u32 v20, s{S_T1}, v20
                v_lshrrev_b32 v21, 5, v20
                v_and_b32 v20, 31, v20
                v_lshlrev_b32 v20, 10, v20
                s_lshl_b32 s61, s{S_KS}, 17
                s_lshl_b32 s{S_T2}, s{S_NG}, 7
                s_add_u32 s61, s61, s{S_T2}
                s_and_b32 s62, s{S_NG}, {cfg.get("pfmask", 7)}
                """)
                for c in range(3):
                    a(f"""
                    v_add_u32 v22, {5*c}, v21
                    v_lshlrev_b32 v23, 1, v22
                    v_cmp_gt_u32 vcc, 8, v22
                    v_subrev_u32 v25, 15, v23
                    s_nop 0
                    v_cndmask_b32 v23, v25, v23, vcc
                    v_lshl_or_b32 v{26+c}, v23, 19, v20
                    """)
            elif op[0] == "pf":
                s_ = op[1]
                a(f"s_cmp_eq_u32 s62, 3")
                a(f"s_cbranch_scc0 L_nopf{s_}")
                a(f"s_add_u32 s{S_T1}, s61, {(s_ // 3) * 32768}")
                a(f"buffer_load_dword v135, v{26 + s_ % 3}, s[{S_W}:{S_W+3}], s{S_T1} offen")
                a(f"L_nopf{s_}:")
            elif op[0] == "setup":
                setup_lanes(a)
                setup_params(a)
            elif op[0] == "arrive":
                a(f"""
                s_waitcnt lgkmcnt(0)
                s_add_u32 s{S_E1}, s{S_E1}, 1
                s_getreg_b32 s{S_XCC}, hwreg(HW_REG_XCC_ID, 0, 3)
                s_lshl_b32 s{S_ARW}, s{S_E1}, 3
                s_or_b32 s{S_ARW}, s{S_ARW}, s{S_XCC}
                s_lshl_b32 s{S_T2}, s{S_GRP}, 7
                s_add_u32 s{S_ARA}, s{S_T2}, {ARRIVE}
                s_cmp_eq_u32 s{S_Q}, 0
                s_cbranch_scc0 L_noarrive
                s_lshl_b32 s{S_T2}, s{S_MEM}, 2
                s_add_u32 s{S_T2}, s{S_T2}, s{S_ARA}
                v_mov_b32 v{V_T1}, s{S_ARW}
                v_mov_b32 v{V_T2}, 0
                s_mov_b64 exec, 1
                buffer_store_dword v{V_T1}, v{V_T2}, s[{S_WS}:{S_WS+3}], s{S_T2} offen sc1
                s_mov_b64 exec, -1
                L_noarrive:
                """)
            elif op[0] == "touch":
                a(f"""
                v_and_b32 v{V_T1}, 31, v{V_LANE}
                v_lshlrev_b32 v{V_T1}, 7, v{V_T1}
                s_lshl_b32 s{S_T1}, s{S_GRP}, 18
                s_lshl_b32 s{S_T2}, s{S_MEM}, 14
                s_add_u32 s{S_T1}, s{S_T1}, s{S_T2}
                s_lshl_b32 s{S_T2}, s{S_Q}, 12
                s_add_u32 s{S_T1}, s{S_T1}, s{S_T2}
                buffer_load_dword v{V_T0}, v{V_T1}, s[{S_WS}:{S_WS+3}], s{S_T1} offen sc1
                s_mul_i32 s{S_T1}, s{S_BT}, {493*1024}
                s_add_u32 s{S_T1}, s{S_T1}, s{S_COL2}
                v_mov_b32 v20, 0
                buffer_load_dword v21, v20, s[{S_OUT}:{S_OUT+3}], s{S_T1} offen
                """)
            elif op[0] == "dbgload":
                a(f"""
                v_and_b32 v{V_T2}, 15, v{V_LANE}
                v_lshlrev_b32 v{V_T2}, 2, v{V_T2}
                buffer_load_dword v24, v{V_T2}, s[{S_WS}:{S_WS+3}], s{S_ARA} offen sc1
                """)
            elif op[0] == "mode":
                a(f"""
                s_mov_b32 s{S_K}, 0
                s_lshr_b32 s{S_T3}, s{S_ARW}, 3
                L_cntpoll:
                v_lshrrev_b32 v25, 3, v24
                v_cmp_eq_u32 vcc, s{S_T3}, v25
                s_nop 4
                s_cmp_eq_u64 vcc, exec
                s_cbranch_scc1 L_cntok
                s_add_u32 s{S_K}, s{S_K}, 1
                s_cmp_ge_u32 s{S_K}, {POLL_MAX}
                s_cbranch_scc1 L_cntok
                s_sleep 2
                buffer_load_dword v24, v{V_T2}, s[{S_WS}:{S_WS+3}], s{S_ARA} offen sc1
                s_waitcnt vmcnt(0)
                s_branch L_cntpoll
                L_cntok:
                v_cmp_eq_u32 vcc, s{S_ARW}, v24
                s_nop 4
                s_cmp_eq_u64 vcc, exec
                s_cselect_b32 s{S_MODE}, {0 if cfg.get('forceslow') else 1}, 0
                v_mov_b32 v{V_T1}, s{S_MODE}
                v_mov_b32 v{V_T2}, {MODEW}
                s_mov_b64 exec, 1
                ds_write_b32 v{V_T2}, v{V_T1}
                s_mov_b64 exec, -1
                s_waitcnt lgkmcnt(0)
                """)
        pos = marks[m]
        req = last_required(m)
        if m == 0:
            stamp(a, cfg, 2)
            continue
        assert req < pos
        n_after = sum(1 for op in flat[req + 1:pos] if op[0] not in optional)
        a(f"s_waitcnt vmcnt({n_after})")
        if m in (1, 3, 6, 9, 11): stamp(a, cfg, {1: 4, 3: 5, 6: 6, 9: 7, 11: 8}[m])
        a("s_barrier")

EXTRAS = {4: [(1, 0), (1, 1), (1, 2)], 5: [(1, 3), (1, 4), (1, 5)], 6: [(1, 6), (1, 7)],
          10: [(0, 0), (0, 1), (0, 2)], 11: [(0, 3), (0, 4), (0, 5)], 12: [(0, 6), (0, 7)]}

def tap_code(a, n):
    par = 0 if n < 8 else 1
    p = n if n < 8 else n - 8
    bank = XE if par == 0 else XO
    wbuf = WB + 4 * (n % 3)
    wnext = WB + 4 * ((n + 1) % 3)
    prev_extras = len(EXTRAS.get(n - 1, []))
    pre = []
    if n in (4, 9, 14):
        pre = [f"s_add_u32 s{S_SG}, s{S_SG}, {STAGE}",
               f"s_cmp_eq_u32 s{S_SG}, {NSTG*STAGE}",
               f"s_cselect_b32 s{S_SG}, 0, s{S_SG}",
               f"v_add_u32 v{V_W}, s{S_SG}, v{V_WL}"]
    reads = []
    if n == 10: reads.append(f"ds_read_b32 v{V_MODE}, v{V_MW}")
    last_p = 6 if par == 0 else 5
    if p <= last_p:
        m = p + 8
        reads.append(f"ds_read_b128 {vr(bank + 4*(m % 9))}, v{V_XC} offset:{x_imm(par, m)}")
    toff = ((n + 1) % P) * 4096
    reads.append(f"ds_read_b64_tr_b16 {vr(wnext,2)}, v{V_W} offset:{toff}")
    reads.append(f"ds_read_b64_tr_b16 {vr(wnext+2,2)}, v{V_W} offset:{toff + 512}")
    for (epar, m) in EXTRAS.get(n, []):
        if epar == 1: reads.append(f"ds_read_b128 {vr(XO + 4*m)}, v{V_XC} offset:{x_imm(1, m)}")
        else: reads.append(f"ds_read_b128 {vr(XE + 4*m)}, v{V_XN} offset:{x_imm(0, m)}")
    post = []
    if n == 14:
        post = [f"s_add_u32 s{S_K}, s{S_K}, 1",
                f"v_mov_b32 v{V_XC}, v{V_XN}",
                f"s_add_u32 s{S_T1}, s{S_K}, 1",
                f"s_lshr_b32 s{S_T2}, s{S_T1}, 1",
                f"s_mul_i32 s{S_T2}, s{S_T2}, {2*XARR}",
                f"s_and_b32 s{S_T1}, s{S_T1}, 1",
                f"s_lshl_b32 s{S_T1}, s{S_T1}, 6",
                f"s_add_u32 s{S_T1}, s{S_T1}, s{S_T2}",
                f"v_add_u32 v{V_XN}, s{S_T1}, v{V_XL}"]
    for x in pre: a(x)
    a(f"s_waitcnt lgkmcnt({prev_extras})")
    ri = 0
    for t in range(8):
        m = p + t
        a(f"v_mfma_f32_16x16x32_bf16 {vr(ACC + 4*t)}, {vr(wbuf)}, {vr(bank + 4*(m % 9))}, {vr(ACC + 4*t)}")
        if t == 0 and n in (4, 9, 14): a("s_barrier")
        if t < 7 and ri < len(reads):
            a(reads[ri]); ri += 1
        if n == 14 and t >= 2:
            for x in post[(t - 2) * 2:(t - 2) * 2 + 2]: a(x)
        if n == 13 and t == 6: a(f"s_cmp_eq_u32 s{S_K}, 3")
    assert ri == len(reads)

def compute(a, cfg):
    late_params(a)
    a(f"""
    v_and_b32 v{V_T0}, 15, v{V_LANE}             ; i / j
    v_lshrrev_b32 v{V_T1}, 4, v{V_LANE}          ; g
    v_mul_u32_u24 v{V_XL}, 1056, v{V_T0}
    v_lshl_add_u32 v{V_XL}, v{V_T1}, 4, v{V_XL}
    v_lshrrev_b32 v{V_T2}, 2, v{V_T0}
    v_lshl_add_u32 v{V_T2}, v{V_T1}, 3, v{V_T2}
    v_lshlrev_b32 v{V_WL}, 7, v{V_T2}
    v_bfe_u32 v{V_T2}, v{V_T0}, 3, 1
    v_and_b32 v{V_T3}, 1, v{V_T1}
    v_lshl_or_b32 v{V_T2}, v{V_T3}, 1, v{V_T2}
    v_xor_b32 v{V_T2}, s{S_Q}, v{V_T2}
    v_lshl_add_u32 v{V_WL}, v{V_T2}, 5, v{V_WL}
    v_and_b32 v{V_T3}, 3, v{V_T0}
    v_lshl_add_u32 v{V_WL}, v{V_T3}, 3, v{V_WL}
    v_add_u32 v{V_WL}, {WRING}, v{V_WL}
    v_mov_b32 v{V_XC}, v{V_XL}
    v_add_u32 v{V_XN}, 64, v{V_XL}
    v_mov_b32 v{V_W}, v{V_WL}
    v_mov_b32 v{V_MW}, {MODEW}
    s_mov_b32 s{S_SG}, 0
    s_mov_b32 s{S_K}, 0
    v_lshlrev_b32 v{V_T1}, 14, v{V_T1}
    v_lshl_add_u32 v{V_STO}, v{V_T0}, 4, v{V_T1}
    s_lshl_b32 s{S_T0}, s{S_Q}, 16
    v_add_u32 v{V_STO}, s{S_T0}, v{V_STO}
    s_lshl_b32 s{S_T0}, s{S_GRP}, 18
    s_lshl_b32 s{S_T1}, s{S_MEM}, 10
    s_add_u32 s{S_STO}, s{S_T0}, s{S_T1}
    s_lshl_b32 s{S_T1}, s{S_Q}, 2
    s_add_u32 s{S_T1}, s{S_T1}, s{S_MT}
    s_lshl_b32 s{S_T1}, s{S_T1}, 7
    s_lshl_b32 s{S_T2}, s{S_KS}, 2
    s_add_u32 s{S_T1}, s{S_T1}, s{S_T2}
    s_lshl_b32 s{S_T2}, s{S_GRP}, 11
    s_add_u32 s{S_T1}, s{S_T1}, s{S_T2}
    s_add_u32 s{S_FLAG}, s{S_T1}, {FLAGS}
    """)
    for r in range(32): a(f"v_mov_b32 v{ACC + r}, 0")
    setup_lanes(a)
    a("s_waitcnt lgkmcnt(0)")
    a(f"s_add_u32 s{S_E1}, s{S_E1}, 1")
    setup_params(a)
    stamp(a, cfg, 2)
    a("s_waitcnt vmcnt(0)")
    stamp(a, cfg, 3)
    a(f"""
    v_mov_b32 v{V_T0}, {CNTW}
    v_mov_b32 v{V_T1}, 1
    s_mov_b64 exec, 1
    ds_add_u32 v{V_T0}, v{V_T1}
    s_mov_b64 exec, -1
    L_b0spin:
    ds_read_b32 v{V_T1}, v{V_T0}
    s_waitcnt lgkmcnt(0)
    v_readfirstlane_b32 s{S_T0}, v{V_T1}
    s_cmp_ge_u32 s{S_T0}, 4
    s_cbranch_scc0 L_b0spin
    """)
    if cfg.get("ctouch", 2) == 1:
        a(f"""
        v_and_b32 v{V_T1}, 31, v{V_LANE}
        v_lshlrev_b32 v{V_T1}, 7, v{V_T1}
        s_lshl_b32 s{S_T1}, s{S_GRP}, 18
        s_lshl_b32 s{S_T2}, s{S_MEM}, 14
        s_add_u32 s{S_T1}, s{S_T1}, s{S_T2}
        s_lshl_b32 s{S_T2}, s{S_Q}, 12
        s_add_u32 s{S_T1}, s{S_T1}, s{S_T2}
        buffer_load_dword v134, v{V_T1}, s[{S_WS}:{S_WS+3}], s{S_T1} offen sc1
        buffer_load_dword v135, v{FV_ZERO}, s[{S_OUT}:{S_OUT+3}], s{S_OUTO} offen
        """)
    if cfg.get("prio") == 1: a("s_setprio 0")
    stamp(a, cfg, 4)
    stamp(a, cfg, 8, True)
    a(f"ds_read_b64_tr_b16 {vr(WB,2)}, v{V_W}")
    a(f"ds_read_b64_tr_b16 {vr(WB+2,2)}, v{V_W} offset:512")
    for m in range(8):
        a(f"ds_read_b128 {vr(XE + 4*m)}, v{V_XC} offset:{x_imm(0, m)}")
    a("L_kloop:")
    for n in range(14): tap_code(a, n)
    a("s_cbranch_scc1 L_lasttap")
    tap_code(a, 14)
    if cfg.get("stamps") == 2:
        a(f"""
        s_memtime s[84:85]
        s_waitcnt lgkmcnt(0)
        s_cmp_eq_u32 s{S_K}, 1
        s_cselect_b32 s96, s84, s96
        s_cmp_eq_u32 s{S_K}, 2
        s_cselect_b32 s97, s84, s97
        s_cmp_eq_u32 s{S_K}, 3
        s_cselect_b32 s98, s84, s98
        """)
    a("s_branch L_kloop")
    a("L_lasttap:")
    n = 14; p = 6; bank = XO; wbuf = WB + 4 * (n % 3)
    T = XE
    def cvt(s):
        out = []
        for e in range(2):
            t = 2 * s + e
            out.append(f"v_cvt_pk_bf16_f32 v{T + 4*s + 2*e}, v{ACC + 4*t}, v{ACC + 4*t + 1}")
            out.append(f"v_cvt_pk_bf16_f32 v{T + 4*s + 2*e + 1}, v{ACC + 4*t + 2}, v{ACC + 4*t + 3}")
        return out
    def store(s, sc):
        if cfg.get("nopayload"): return "s_nop 0"
        return f"buffer_store_dwordx4 {vr(T + 4*s)}, v{V_STO}, s[{S_WS}:{S_WS+3}], s{S_STO} offen offset:{s*256}{sc}"
    a("s_waitcnt lgkmcnt(0)")
    a(f"v_readfirstlane_b32 s{S_MODE}, v{V_MODE}")
    mf = [f"v_mfma_f32_16x16x32_bf16 {vr(ACC + 4*t)}, {vr(wbuf)}, {vr(bank + 4*((p + t) % 9))}, {vr(ACC + 4*t)}" for t in range(8)]
    a(mf[0]); a("s_nop 0"); a(mf[1]); a("s_nop 0"); a(mf[2]); a(f"s_cmp_eq_u32 s{S_MODE}, 1"); a(mf[3])
    a("s_cbranch_scc1 L_fast")
    for lab, sc in (("", " sc1"), ("L_fast:", cfg.get("fastflavor", ""))):
        if lab: a(lab)
        a(mf[4]); a("s_nop 0"); a(mf[5]); a("s_nop 0"); a(mf[6]); a("s_nop 0")
        c0 = cvt(0); a(c0[0]); a(mf[7])
        for x in c0[1:]: a(x)
        a(store(0, sc))
        for x in cvt(1): a(x)
        a(store(1, sc))
        for x in cvt(2): a(x)
        a(store(2, sc))
        for x in cvt(3): a(x)
        a(store(3, sc))
        stamp(a, cfg, 9, True)
        stamp(a, cfg, 5)
        a("s_waitcnt vmcnt(0)")
        a("s_mov_b64 exec, 1")
        a(f"buffer_store_dword v{FV_E}, v{FV_ZERO}, s[{S_WS}:{S_WS+3}], s{S_FLAG} offen{' sc1' if sc == ' sc1' else ''}")
        a("s_mov_b64 exec, -1")
        stamp(a, cfg, 7)
        if not lab: a("s_branch L_final")

def fold_reduce(a, r, ldsoff):
    a(f"""
    s_nop 1
    v_permlane32_swap_b32 v{r}, v{r+1}
    v_permlane32_swap_b32 v{r+2}, v{r+3}
    v_add_f32 v{r}, v{r}, v{r+1}
    v_add_f32 v{r+2}, v{r+2}, v{r+3}
    s_nop 1
    v_permlane16_swap_b32 v{r}, v{r+2}
    v_add_f32 v{r}, v{r}, v{r+2}
    """)
    for sh in (8, 4, 2, 1):
        a("s_nop 1")
        a(f"v_add_f32_dpp v{r}, v{r}, v{r} row_ror:{sh} row_mask:0xf bank_mask:0xf")
    a(f"""
    s_mov_b32 exec_lo, 0x00010001
    s_mov_b32 exec_hi, 0x00010001
    ds_write_b32 v{FV_RW}, v{r} offset:{ldsoff}
    s_mov_b64 exec, -1
    s_waitcnt lgkmcnt(0)
    s_barrier
    ds_read_b128 {vr(r)}, v{FV_RR} offset:{ldsoff}
    ds_read_b128 {vr(r+4)}, v{FV_RR} offset:{ldsoff + 16}
    s_waitcnt lgkmcnt(0)
    v_pk_add_f32 {vr(r,2)}, {vr(r,2)}, {vr(r+2,2)}
    v_pk_add_f32 {vr(r+4,2)}, {vr(r+4,2)}, {vr(r+6,2)}
    v_pk_add_f32 {vr(r,2)}, {vr(r,2)}, {vr(r+4,2)}
    v_add_f32 v{r}, v{r}, v{r+1}
    """)

def final_phase(a, cfg):
    a("L_final:")
    if cfg.get("poll2"):
        def chk(r):
            return f"""
            v_xor_b32 v{r}, s{S_E1}, v{r}
            v_xor_b32 v{r+1}, s{S_E1}, v{r+1}
            v_xor_b32 v{r+2}, s{S_E1}, v{r+2}
            v_xor_b32 v{r+3}, s{S_E1}, v{r+3}
            v_or3_b32 v{r}, v{r}, v{r+1}, v{r+2}
            v_or_b32 v{r}, v{r}, v{r+3}
            s_add_u32 s{S_K}, s{S_K}, 1
            v_readfirstlane_b32 s{S_T1}, v{r}
            s_cmp_eq_u32 s{S_T1}, 0
            s_cbranch_scc1 L_flagok
            """
        ld = lambda r: f"buffer_load_dwordx4 v[{r}:{r+3}], v{FV_ZERO}, s[{S_WS}:{S_WS+3}], s{S_POLL} offen sc1"
        a(f"s_mov_b32 s{S_K}, 0")
        a(ld(20))
        a("L_flagpoll:")
        a(ld(24)); a("s_waitcnt vmcnt(1)"); a(chk(20))
        a(ld(20)); a("s_waitcnt vmcnt(1)"); a(chk(24))
        a(f"""
        s_cmp_ge_u32 s{S_K}, {POLL_MAX}
        s_cbranch_scc0 L_flagpoll
        L_flagok:
        """)
    else:
        a(f"""
        s_mov_b32 s{S_K}, 0
        L_flagpoll:
        buffer_load_dwordx4 v[20:23], v{FV_ZERO}, s[{S_WS}:{S_WS+3}], s{S_POLL} offen sc1
        s_waitcnt vmcnt(0)
        v_xor_b32 v20, s{S_E1}, v20
        v_xor_b32 v21, s{S_E1}, v21
        v_xor_b32 v22, s{S_E1}, v22
        v_xor_b32 v23, s{S_E1}, v23
        v_or3_b32 v20, v20, v21, v22
        v_or_b32 v20, v20, v23
        s_add_u32 s{S_K}, s{S_K}, 1
        v_readfirstlane_b32 s{S_T1}, v20
        s_cmp_eq_u32 s{S_T1}, 0
        s_cbranch_scc1 L_flagok
        s_cmp_ge_u32 s{S_K}, {POLL_MAX}
        s_cbranch_scc1 L_flagok
        s_branch L_flagpoll
        L_flagok:
        """)
    stamp(a, cfg, 10)
    for ks in range(4):
        a(f"buffer_load_dwordx2 {vr(F_IN + 2*ks, 2)}, v{FV_PAY}, s[{S_WS}:{S_WS+3}], s{S_PAY} offen offset:{ks*1024} sc1")
    a("s_waitcnt vmcnt(2)")
    a(f"v_mfma_f32_16x16x32_bf16 {vr(F_Y)}, {vr(FV_A)}, {vr(F_IN)}, {vr(FV_C)}")
    a("s_waitcnt vmcnt(0)")
    stamp(a, cfg, 11)
    a(f"v_mfma_f32_16x16x32_bf16 {vr(F_Y)}, {vr(FV_A)}, {vr(F_IN+4)}, {vr(F_Y)}")
    if cfg.get("wbl2"):
        mask = {1: 15, 2: 3, 3: 0}[cfg["wbl2"]]
        a(f"""
        s_and_b32 s{S_T0}, s{S_MEM}, {mask}
        s_or_b32 s{S_T0}, s{S_T0}, s{S_WAVE}
        s_cmp_eq_u32 s{S_T0}, 0
        s_cbranch_scc0 L_nowb
        buffer_wbl2 sc1
        L_nowb:
        """)
    R = F_T
    Q = FV_R2
    a("s_nop 7")
    if cfg.get("twopass"):
        for c in range(4): a(f"v_cndmask_b32 v{R+c}, 0, v{F_Y+c}, s[{S_VALID}:{S_VALID+1}]")
        fold_reduce(a, R, 0)
        a(f"v_mul_f32 v{R}, {f2h(1/493)}, v{R}")
        a("s_nop 1")
        for c in range(4):
            a(f"v_subrev_f32_dpp v{F_Y+c}, v{R}, v{F_Y+c} quad_perm:[{c},{c},{c},{c}] row_mask:0xf bank_mask:0xf")
        a(f"s_mov_b64 exec, s[{S_VALID}:{S_VALID+1}]")
        for c in range(4): a(f"v_mul_f32 v{FV_R2+c}, v{F_Y+c}, v{F_Y+c}")
        a("s_mov_b64 exec, -1")
        fold_reduce(a, FV_R2, 128)
        a(f"v_mov_b32 v{R+1}, {f2h(1e-5)}")
        a(f"v_fmac_f32 v{R+1}, {f2h(1/493)}, v{FV_R2}")
    else:
        for c in range(4): a(f"v_cndmask_b32 v{R+c}, 0, v{F_Y+c}, s[{S_VALID}:{S_VALID+1}]")
        for c in range(4): a(f"v_mul_f32 v{Q+c}, v{R+c}, v{R+c}")
        a(f"""
        v_permlane32_swap_b32 v{R}, v{R+1}
        v_permlane32_swap_b32 v{R+2}, v{R+3}
        v_permlane32_swap_b32 v{Q}, v{Q+1}
        v_permlane32_swap_b32 v{Q+2}, v{Q+3}
        v_add_f32 v{R}, v{R}, v{R+1}
        v_add_f32 v{R+2}, v{R+2}, v{R+3}
        v_add_f32 v{Q}, v{Q}, v{Q+1}
        v_add_f32 v{Q+2}, v{Q+2}, v{Q+3}
        s_nop 0
        v_permlane16_swap_b32 v{R}, v{R+2}
        v_permlane16_swap_b32 v{Q}, v{Q+2}
        v_add_f32 v{R}, v{R}, v{R+2}
        v_add_f32 v{Q}, v{Q}, v{Q+2}
        """)
        for sh in (8, 4, 2, 1):
            a("s_nop 0")
            a(f"v_add_f32_dpp v{R}, v{R}, v{R} row_ror:{sh} row_mask:0xf bank_mask:0xf")
            a(f"v_add_f32_dpp v{Q}, v{Q}, v{Q} row_ror:{sh} row_mask:0xf bank_mask:0xf")
        a(f"""
        s_mov_b32 exec_lo, 0x00010001
        s_mov_b32 exec_hi, 0x00010001
        ds_write_b32 v{FV_RW}, v{R}
        ds_write_b32 v{FV_RW}, v{Q} offset:128
        s_mov_b64 exec, -1
        s_waitcnt lgkmcnt(0)
        s_barrier
        ds_read_b128 {vr(R)}, v{FV_RR}
        ds_read_b128 {vr(R+4)}, v{FV_RR} offset:16
        ds_read_b128 {vr(Q)}, v{FV_RR} offset:128
        ds_read_b128 {vr(Q+4)}, v{FV_RR} offset:144
        s_waitcnt lgkmcnt(2)
        v_pk_add_f32 {vr(R,2)}, {vr(R,2)}, {vr(R+2,2)}
        v_pk_add_f32 {vr(R+4,2)}, {vr(R+4,2)}, {vr(R+6,2)}
        s_waitcnt lgkmcnt(0)
        v_pk_add_f32 {vr(Q,2)}, {vr(Q,2)}, {vr(Q+2,2)}
        v_pk_add_f32 {vr(Q+4,2)}, {vr(Q+4,2)}, {vr(Q+6,2)}
        v_pk_add_f32 {vr(R,2)}, {vr(R,2)}, {vr(R+4,2)}
        v_pk_add_f32 {vr(Q,2)}, {vr(Q,2)}, {vr(Q+4,2)}
        v_add_f32 v{R}, v{R}, v{R+1}
        v_add_f32 v{Q}, v{Q}, v{Q+1}
        v_mul_f32 v{R}, {f2h(1/493)}, v{R}                 ; mean
        v_mul_f32 v{Q}, {f2h(1/493)}, v{Q}                 ; E[y^2]
        v_mul_f32 v{R+2}, v{R}, v{R}                       ; mean^2
        v_sub_f32 v{Q}, v{Q}, v{R+2}                       ; variance
        v_mul_f32 v{R+3}, {f2h(256.0)}, v{Q}
        v_cmp_gt_f32 vcc, v{R+2}, v{R+3}
        """)
        for c in range(4):
            a(f"v_subrev_f32_dpp v{F_Y+c}, v{R}, v{F_Y+c} quad_perm:[{c},{c},{c},{c}] row_mask:0xf bank_mask:0xf")
        a(f"""
        s_cmp_lg_u64 vcc, 0
        s_cbranch_scc0 L_varok
        """)
        for c in range(4): a(f"v_mul_f32 v{Q+c}, v{F_Y+c}, v{F_Y+c}")
        for c in range(4): a(f"v_cndmask_b32 v{Q+c}, 0, v{Q+c}, s[{S_VALID}:{S_VALID+1}]")
        fold_reduce(a, Q, 384)
        a(f"v_mul_f32 v{Q}, {f2h(1/493)}, v{Q}")
        a("L_varok:")
        a(f"v_add_f32 v{R+1}, {f2h(1e-5)}, v{Q}")
    a(f"v_rsq_f32 v{R+1}, v{R+1}")
    a("s_nop 0")
    a(f"v_mul_f32 v{R+1}, v{R+1}, v{FV_GAM}")
    a("s_nop 1")
    for c in range(4):
        a(f"v_fmac_f32_dpp v{FV_BETA+c}, v{R+1}, v{F_Y+c} quad_perm:[{c},{c},{c},{c}] row_mask:0xf bank_mask:0xf")
    X = FV_BETA
    c1 = 2.302208198144325
    a(f"s_mov_b32 s{S_T0}, {f2h(c1*0.044715)}")
    a(f"v_mov_b32 v{R}, {f2h(c1)}")
    Z = R + 2
    if cfg.get("pkgelu"):
        a(f"v_mov_b32 v{R+1}, v{R}")
        a(f"v_mov_b32 v{R+6}, s{S_T0}")
        a(f"v_mov_b32 v{R+7}, s{S_T0}")
        for c in (0, 2): a(f"v_pk_mul_f32 {vr(Z+c,2)}, {vr(X+c,2)}, {vr(X+c,2)}")
        for c in (0, 2): a(f"v_pk_fma_f32 {vr(Z+c,2)}, {vr(Z+c,2)}, {vr(R+6,2)}, {vr(R,2)}")
        for c in (0, 2): a(f"v_pk_mul_f32 {vr(Z+c,2)}, {vr(X+c,2)}, {vr(Z+c,2)}")
        for c in range(4): a(f"v_exp_f32 v{Z+c}, -v{Z+c}")
        a("s_nop 0")
        for c in range(4): a(f"v_add_f32 v{Z+c}, 1.0, v{Z+c}")
        for c in range(4): a(f"v_rcp_f32 v{Z+c}, v{Z+c}")
        a("s_nop 0")
        for c in (0, 2): a(f"v_pk_mul_f32 {vr(X+c,2)}, {vr(X+c,2)}, {vr(Z+c,2)}")
    else:
        for c in range(4): a(f"v_mul_f32 v{Z+c}, v{X+c}, v{X+c}")
        for c in range(4): a(f"v_fma_f32 v{Z+c}, v{Z+c}, s{S_T0}, v{R}")
        for c in range(4): a(f"v_mul_f32 v{Z+c}, v{X+c}, v{Z+c}")
        for c in range(4): a(f"v_exp_f32 v{Z+c}, -v{Z+c}")
        a("s_nop 0")
        for c in range(4): a(f"v_add_f32 v{Z+c}, 1.0, v{Z+c}")
        for c in range(4): a(f"v_rcp_f32 v{Z+c}, v{Z+c}")
        a("s_nop 0")
        for c in range(4): a(f"v_mul_f32 v{X+c}, v{X+c}, v{Z+c}")
    a(f"v_cvt_pk_bf16_f32 v{Z}, v{X}, v{X+1}")
    a(f"v_cvt_pk_bf16_f32 v{Z+1}, v{X+2}, v{X+3}")
    a(f"s_mov_b64 exec, s[{S_VALID}:{S_VALID+1}]")
    a(f"buffer_store_dwordx2 {vr(Z,2)}, v{FV_OUT}, s[{S_OUT}:{S_OUT+3}], s{S_OUTO} offen")
    a(f"""
    s_or_b32 s{S_T0}, s{S_MEM}, s{S_WAVE}
    s_cmp_eq_u32 s{S_T0}, 0
    s_cbranch_scc0 L_noepoch
    s_lshl_b32 s{S_T1}, s{S_GRP}, 7
    s_add_u32 s{S_T1}, s{S_T1}, {EPOCH}
    s_mov_b64 exec, 1
    buffer_store_dword v{FV_E}, v{FV_ZERO}, s[{S_WS}:{S_WS+3}], s{S_T1} offen
    L_noepoch:
    """)
    stamp(a, cfg, 12)
    if cfg.get("stamps"): a("s_waitcnt vmcnt(0)")
    stamp(a, cfg, 13)
    stamp_flush(a, cfg)

HEADER = open("cdna_kernels/" + NAME + ".s.ref").read().split("; Override")[0]

def gen(cfg):
    a = A()
    out = HEADER
    out += "; Fused kernel: implicit-GEMM conv (split-K 4 over channels) -> in-launch all-to-all of bf16 partials -> GroupNorm over time -> GELU\n"
    out += f"; @launch grid=(256,1,1) block=(512,1,1) lds={LDS_BYTES}\n"
    a('.amdgcn_target "amdgcn-amd-amdhsa--gfx950"')
    a(".text")
    a(f".globl {KNAME}\n.p2align 8\n.type {KNAME},@function\n{KNAME}:")
    prologue(a, cfg)
    a(f"s_cmp_ge_u32 s{S_WAVE}, 4")
    a("s_cbranch_scc1 L_loader")
    compute(a, cfg)
    final_phase(a, cfg)
    if cfg.get("probe"):
        idx = cfg["probe"]
        a(f"""
        s_cmp_ge_u32 s{S_WAVE}, 4
        s_cbranch_scc1 L_noprobe
        {"s_sub_u32 s84, s95, s94" if idx == 89 else f"s_sub_u32 s84, s{86+idx}, s86"}
        {"s_lshr_b32 s84, s84, 2" if idx == 89 else "s_mul_i32 s84, s84, 4"}
        s_memrealtime s[96:97]
        s_waitcnt lgkmcnt(0)
        s_add_u32 s84, s84, s96
        L_probe:
        s_memrealtime s[96:97]
        s_waitcnt lgkmcnt(0)
        s_sub_u32 s96, s96, s84
        s_cmp_lt_i32 s96, 0
        s_cbranch_scc1 L_probe
        L_noprobe:
        """)
    if cfg.get("pad"):
        a(f"""
        s_waitcnt vmcnt(0) lgkmcnt(0)
        L_pad:
        s_memrealtime s[96:97]
        s_waitcnt lgkmcnt(0)
        s_sub_u32 s96, s96, s98
        s_cmp_lt_u32 s96, {cfg['pad']}
        s_cbranch_scc1 L_pad
        """)
    a("s_endpgm")
    a("L_loader:")
    loader(a, cfg)
    stamp(a, cfg, 9)
    a("s_branch L_final")
    a("L_end:")
    a("s_endpgm")
    out += a.text()
    out += f""".section .rodata,"a"
.p2align 6
.amdhsa_kernel {KNAME}
  .amdhsa_next_free_vgpr {NVGPR}
  .amdhsa_next_free_sgpr 102
  .amdhsa_accum_offset {NVGPR}
  .amdhsa_group_segment_fixed_size 0
  .amdhsa_kernarg_size 64
  .amdhsa_user_sgpr_count 2
  .amdhsa_user_sgpr_kernarg_segment_ptr 1
  .amdhsa_system_sgpr_workgroup_id_x 1
.end_amdhsa_kernel
"""
    return out

if __name__ == "__main__":
    ap = argparse.ArgumentParser()
    ap.add_argument("-o", default="/dev/stdout")
    ap.add_argument("--stamps", type=int, nargs="?", const=1, default=0)
    ap.add_argument("--map", type=int, default=1)
    ap.add_argument("--forceslow", action="store_true")
    ap.add_argument("--pad", type=int, default=0)
    ap.add_argument("--probe", type=int, default=0)
    ap.add_argument("--fastflavor", type=str, default="")
    ap.add_argument("--nopayload", action="store_true")
    ap.add_argument("--wbl2", type=int, default=0)
    ap.add_argument("--mallw", type=int, default=2)
    ap.add_argument("--mallx", type=int, default=1)
    ap.add_argument("--mallpos", type=int, default=1)
    ap.add_argument("--xsched", type=int, default=4)
    ap.add_argument("--ctouch", type=int, default=2)
    ap.add_argument("--twopass", type=int, default=0)
    ap.add_argument("--prio", type=int, default=0)
    ap.add_argument("--pfd", type=int, default=0)
    ap.add_argument("--pfmask", type=int, default=7)
    ap.add_argument("--poll2", type=int, default=1)
    ap.add_argument("--pkgelu", type=int, default=1)
    ap.add_argument("--ldelay", type=int, default=0)
    ap.add_argument("--premall", type=int, default=4)
    args = ap.parse_args()
    if args.probe: args.stamps = 1
    cfg = vars(args)
    open(args.o, "w").write(gen(cfg))
```

```python
import sys, argparse, struct

NAME = "standalone__self_sup_conv_stem_hubert__speech"
KNAME = NAME + "_kernel"

XARR = 17 * 1056
WRING = 4 * XARR
P = 5
NSTG = 4
STAGE = P * 4096
RED = WRING + NSTG * STAGE
MODEW = RED + 256
CNTW = RED + 260
LDS_BYTES = RED + 512
TAPS = [0, 2, 4, 6, 8, 10, 12, 14, 1, 3, 5, 7, 9, 11, 13]
INBOX_GROUP = 16 * 16 * 1024
FLAGS = 16 * INBOX_GROUP
EPOCH = FLAGS + 16 * 2048
ARRIVE = EPOCH + 16 * 128
STAMPS = 8 << 20
POLL_MAX = 200000

def f2h(x): return hex(struct.unpack('<I', struct.pack('<f', x))[0])

class A:
    def __init__(self): self.l = []
    def __call__(self, s):
        for x in s.strip("\n").split("\n"):
            x = x.strip()
            if x: self.l.append(x)
    def text(self):
        out = []
        for x in self.l:
            if x.endswith(":") or x.startswith(".") or x.startswith(";"): out.append(x)
            else: out.append("    " + x)
        return "\n".join(out) + "\n"

S_RAW = 4
S_POLL, S_PAY, S_FLAG = 3, 10, 11
S_X, S_W, S_WS, S_OUT = 12, 16, 20, 48
S_OUTO, S_STO = 24, 25
S_BT, S_NG, S_MT, S_KS, S_MEM, S_GRP, S_WAVE, S_Q = 26, 27, 28, 29, 30, 31, 32, 33
S_XO, S_XQ, S_XM, S_WO, S_WM = 34, 35, 36, 37, 38
S_COL2 = 39
S_T0, S_T1, S_T2, S_T3 = 40, 41, 42, 43
S_SG, S_K, S_MODE, S_XCC = 44, 45, 46, 47
S_E1, S_ARW, S_ARA = 52, 53, 54
S_KA = 64
S_VALID = 80
V_LANE, V_OFFX, V_OFFW = 1, 2, 3
V_XL, V_WL, V_XC, V_XN, V_W, V_MODE = 4, 5, 6, 7, 8, 9
V_T0, V_T1, V_T2, V_T3 = 10, 11, 12, 13
V_STO, V_MW = 14, 15
ACC = 16
XE = 48
XO = 84
WB = 120
V_PF0, V_PF1 = 132, 133
FV_A, FV_C, FV_BETA, FV_R2 = 136, 140, 144, 148
FV_GAM, FV_PAY, FV_ZERO, FV_OUT, FV_RW, FV_RR, FV_L, FV_E = 156, 157, 158, 159, 160, 161, 162, 163
FT = 164
NVGPR = 168
F_Y, F_IN, F_T = 16, 40, 28

def stamp(a, cfg, idx, clk=False):
    if not cfg.get("stamps"): return
    if cfg.get("stamps") == 2 and idx >= 10: return
    a(f"{'s_memtime' if clk else 's_memrealtime'} s[84:85]")
    a("s_waitcnt lgkmcnt(0)")
    a(f"s_mov_b32 s{86+idx}, s84")
def stamp_flush(a, cfg):
    if not cfg.get("stamps") or cfg.get("probe"): return
    a("s_mov_b64 exec, -1")
    a(f"s_lshl_b32 s84, s2, 3")
    a(f"s_add_u32 s84, s84, s{S_WAVE}")
    a(f"s_lshl_b32 s84, s84, 6")
    a(f"s_add_u32 s84, s84, {STAMPS}")
    a(f"v_mov_b32 v0, 0")
    for i in range(16): a(f"v_mov_b32 v{100+i}, s{86+i}")
    for i in range(4):
        a(f"buffer_store_dwordx4 v[{100+4*i}:{103+4*i}], v0, s[{S_WS}:{S_WS+3}], s84 offen offset:{16*i}")

def vr(b, n=4): return f"v[{b}:{b+n-1}]"

def srd(a, base, ptr, nbytes):
    a(f"s_mov_b32 s{base}, s{ptr}")
    a(f"s_and_b32 s{base+1}, s{ptr+1}, 0xffff")
    if isinstance(nbytes, int): a(f"s_mov_b32 s{base+2}, {nbytes}")
    else: a(nbytes)
    a(f"s_mov_b32 s{base+3}, 0x20000")

def dma_x(a, half, par, i):
    arr = (2 * half + par) * XARR
    if i < 4:
        a(f"s_add_u32 m0, s{S_XM}, {arr + i * 4 * 1056}")
        a(f"s_add_u32 s{S_T0}, s{S_XQ}, {i * 65536 + par * 1024 + half * 128}")
    else:
        a(f"s_mov_b32 m0, {arr + 16 * 1056}")
        a(f"s_add_u32 s{S_T0}, s{S_XO}, {16 * 16384 + par * 1024 + half * 128}")
    a(f"buffer_load_dwordx4 v{V_OFFX}, s[{S_X}:{S_X+3}], s{S_T0} offen lds")

def dma_x16(a, half, par):
    arr = 2 * half + par
    lab = f"L_skipx{arr}"
    a(f"s_cmp_eq_u32 s{S_Q}, {arr}")
    a(f"s_cbranch_scc0 {lab}")
    dma_x(a, half, par, 4)
    a(f"{lab}:")

def dma_w(a, n):
    k, nl = divmod(n, 15)
    tap = TAPS[nl]
    slot = ((n // P) % NSTG) * STAGE + (n % P) * 4096
    a(f"s_add_u32 m0, s{S_WM}, {slot}")
    a(f"s_add_u32 s{S_T0}, s{S_WO}, {(tap * 512 + k * 32) * 1024}")
    a(f"buffer_load_dwordx4 v{V_OFFW}, s[{S_W}:{S_W+3}], s{S_T0} offen lds")

def x_imm(par, m): return par * XARR + (m >> 3) * 1056 + (m & 7) * 128

def prologue(a, cfg):
    a(f"""
    s_cmp_ge_u32 s2, 256
    s_cbranch_scc1 L_end
    """)
    stamp(a, cfg, 0)
    if cfg.get("pad"): a("s_memrealtime s[98:99]")
    a(f"s_load_dwordx16 s[{S_KA}:{S_KA+15}], s[0:1], 0")
    a(f"""
    s_getpc_b64 s[4:5]
    L_pc:
    v_lshrrev_b32 v{V_PF0}, 6, v0
    v_and_b32 v{V_PF1}, 7, v0
    v_lshl_add_u32 v{V_PF0}, v{V_PF0}, 3, v{V_PF1}
    v_lshlrev_b32 v{V_PF0}, 7, v{V_PF0}
    s_sub_u32 s4, s4, L_pc-{KNAME}
    s_subb_u32 s5, s5, 0
    v_min_u32 v{V_PF0}, L_end-{KNAME}, v{V_PF0}
    global_load_dword v{V_PF1}, v{V_PF0}, s[4:5]
    v_mov_b32 v{V_T0}, {CNTW}
    v_mov_b32 v{V_T1}, 0
    ds_write_b32 v{V_T0}, v{V_T1}
    """)
    if cfg.get("map", 1) == 1:
        a(f"""
        s_and_b32 s24, s2, 7
        s_lshr_b32 s25, s2, 3
        s_and_b32 s{S_BT}, s24, 1
        s_and_b32 s{S_NG}, s24, 6
        s_lshr_b32 s{S_T0}, s25, 4
        s_add_u32 s{S_NG}, s{S_NG}, s{S_T0}
        """)
    elif cfg.get("map") == 3:
        a(f"""
        s_lshr_b32 s24, s2, 3
        s_and_b32 s{S_NG}, s2, 4
        s_and_b32 s{S_T0}, s24, 3
        s_add_u32 s{S_NG}, s{S_NG}, s{S_T0}
        s_lshr_b32 s{S_BT}, s24, 4
        s_and_b32 s25, s24, 12
        s_and_b32 s{S_T0}, s2, 3
        s_or_b32 s25, s25, s{S_T0}
        """)
    else:
        a(f"""
        s_lshr_b32 s24, s2, 4
        s_and_b32 s25, s2, 15
        s_and_b32 s{S_BT}, s24, 1
        s_lshr_b32 s{S_NG}, s24, 1
        """)
    a(f"""
    s_lshr_b32 s{S_MT}, s25, 2
    s_and_b32 s{S_MT}, s{S_MT}, 3
    s_and_b32 s{S_KS}, s25, 3
    s_and_b32 s{S_MEM}, s25, 15
    s_lshl_b32 s{S_GRP}, s{S_BT}, 3
    s_add_u32 s{S_GRP}, s{S_GRP}, s{S_NG}
    v_lshrrev_b32 v{V_T0}, 6, v0
    v_and_b32 v{V_LANE}, 63, v0
    v_readfirstlane_b32 s{S_WAVE}, v{V_T0}
    v_lshrrev_b32 v{V_T0}, 3, v{V_LANE}          ; lane>>3
    v_and_b32 v{V_T1}, 7, v{V_LANE}              ; lane&7
    v_lshlrev_b32 v{V_OFFX}, 11, v{V_T0}
    v_lshl_add_u32 v{V_OFFX}, v{V_T1}, 4, v{V_OFFX}
    s_and_b32 s{S_Q}, s{S_WAVE}, 3
    s_mul_i32 s{S_XO}, s{S_BT}, 1024000
    s_add_u32 s{S_T2}, s{S_XO}, 1024000
    s_lshl_b32 s{S_T0}, s{S_MT}, 18
    s_add_u32 s{S_XO}, s{S_XO}, s{S_T0}
    s_lshl_b32 s{S_T0}, s{S_KS}, 8
    s_add_u32 s{S_XO}, s{S_XO}, s{S_T0}
    s_lshl_b32 s{S_T0}, s{S_Q}, 14
    s_add_u32 s{S_XQ}, s{S_XO}, s{S_T0}
    s_mul_i32 s{S_XM}, s{S_Q}, 1056
    s_lshl_b32 s{S_WO}, s{S_KS}, 17
    s_lshl_b32 s{S_T0}, s{S_Q}, 13
    s_add_u32 s{S_WO}, s{S_WO}, s{S_T0}
    s_lshl_b32 s{S_T0}, s{S_NG}, 7
    s_add_u32 s{S_WO}, s{S_WO}, s{S_T0}
    s_lshl_b32 s{S_WM}, s{S_Q}, 10
    s_add_u32 s{S_WM}, s{S_WM}, {WRING}
    s_lshl_b32 s{S_T1}, s{S_MEM}, 3
    s_add_u32 s{S_COL2}, s{S_T0}, s{S_T1}
    v_bfe_u32 v{V_T2}, v{V_LANE}, 4, 1
    s_and_b32 s{S_T1}, s{S_Q}, 1
    s_lshl_b32 s{S_T1}, s{S_T1}, 1
    v_or_b32 v{V_T2}, s{S_T1}, v{V_T2}
    v_lshrrev_b32 v{V_T3}, 1, v{V_T1}
    v_xor_b32 v{V_T2}, v{V_T3}, v{V_T2}
    v_lshlrev_b32 v{V_OFFW}, 10, v{V_T0}
    v_lshl_add_u32 v{V_OFFW}, v{V_T2}, 5, v{V_OFFW}
    v_and_b32 v{V_T3}, 1, v{V_LANE}
    v_lshl_add_u32 v{V_OFFW}, v{V_T3}, 4, v{V_OFFW}
    s_lshr_b32 s55, s{S_WAVE}, 2
    s_mul_i32 s56, s55, {XARR}
    s_add_u32 s56, s56, s{S_XM}
    s_lshl_b32 s57, s55, 10
    s_add_u32 s57, s57, s{S_XQ}
    s_mul_i32 s58, s55, {10 * 524288}
    s_add_u32 s58, s58, s{S_WO}
    s_mul_i32 s59, s55, {5 * 524288}
    s_sub_u32 s59, s{S_WO}, s59
    s_mul_i32 s60, s55, {STAGE}
    s_add_u32 s60, s60, s{S_WM}
    s_mov_b32 s{S_X+2}, s{S_T2}
    s_mov_b32 s{S_X+3}, 0x20000
    s_mov_b32 s{S_W+2}, 7864320
    s_mov_b32 s{S_W+3}, 0x20000
    s_waitcnt lgkmcnt(0)
    s_barrier
    s_mov_b32 s{S_X}, s{S_KA}
    s_and_b32 s{S_X+1}, s{S_KA+1}, 0xffff
    s_mov_b32 s{S_W}, s{S_KA+2}
    s_and_b32 s{S_W+1}, s{S_KA+3}, 0xffff
    """)
    stamp(a, cfg, 1)
    if cfg.get("prio"):
        a(f"""
        s_cmp_lt_u32 s{S_WAVE}, 4
        s_cbranch_scc0 L_noprio
        s_setprio 2
        L_noprio:
        """)
    if cfg.get("ldelay"):
        a(f"""
        s_cmp_ge_u32 s{S_WAVE}, 4
        s_cbranch_scc0 L_nodelay
        """)
        late_params(a)
        for r in range(cfg["ldelay"]): a("s_nop 7")
        a("L_nodelay:")
    if cfg.get("premall"):
        nst = cfg["premall"]
        a(f"""
        s_cmp_eq_u32 s{S_WAVE}, 7
        s_cbranch_scc0 L_nopremall
        v_lshrrev_b32 v20, 1, v{V_LANE}
        v_min_u32 v20, {5*nst//2 - 1}, v20
        s_mul_i32 s{S_T0}, s2, {5*nst//2}
        v_add_u32 v20, s{S_T0}, v20
        v_lshrrev_b32 v21, 7, v20
        v_and_b32 v20, 127, v20
        v_lshrrev_b32 v22, 5, v20
        v_and_b32 v20, 31, v20
        v_lshlrev_b32 v20, 10, v20
        v_lshl_or_b32 v20, v22, 17, v20
        v_cmp_le_u32 vcc, 15, v21
        v_subrev_u32 v22, 15, v21
        s_nop 0
        v_cndmask_b32 v22, v21, v22, vcc             ; nl
        v_cndmask_b32 v23, 0, 1, vcc                 ; k-step
        v_lshl_or_b32 v20, v23, 15, v20
        v_lshlrev_b32 v23, 1, v22
        v_cmp_gt_u32 vcc, 8, v22
        v_subrev_u32 v21, 15, v23
        s_nop 0
        v_cndmask_b32 v23, v21, v23, vcc             ; tap
        v_lshl_or_b32 v20, v23, 19, v20
        v_and_b32 v21, 1, v{V_LANE}
        v_lshl_or_b32 v20, v21, 6, v20
        s_movk_i32 s{S_T0}, 384
        buffer_load_dword v134, v20, s[{S_W}:{S_W+3}], s{S_T0} offen
        L_nopremall:
        """)
    for i in range(4):
        a(f"s_add_u32 m0, s56, {i * 4 * 1056}")
        a(f"s_add_u32 s{S_T0}, s57, {i * 65536}")
        a(f"buffer_load_dwordx4 v{V_OFFX}, s[{S_X}:{S_X+3}], s{S_T0} offen lds")
    a(f"""
    s_cmp_eq_u32 s{S_Q}, s55
    s_cbranch_scc0 L_skipx01
    s_mul_i32 s{S_T1}, s55, {XARR}
    s_add_u32 m0, s{S_T1}, {16 * 1056}
    s_lshl_b32 s{S_T1}, s55, 10
    s_add_u32 s{S_T1}, s{S_T1}, s{S_XO}
    s_add_u32 s{S_T0}, s{S_T1}, {16 * 16384}
    buffer_load_dwordx4 v{V_OFFX}, s[{S_X}:{S_X+3}], s{S_T0} offen lds
    L_skipx01:
    """)
    for j in range(5):
        a(f"s_add_u32 m0, s60, {j * 4096}")
        a(f"s_add_u32 s{S_T0}, s{58 if j < 3 else 59}, {TAPS[j] * 524288}")
        a(f"buffer_load_dwordx4 v{V_OFFW}, s[{S_W}:{S_W+3}], s{S_T0} offen lds")

def late_params(a):
    srd(a, S_WS, S_KA + 14, 268435456)
    srd(a, S_OUT, S_KA + 10, 2 * 493 * 512 * 2)
    a(f"s_load_dwordx2 s[{S_RAW}:{S_RAW+1}], s[{S_KA+4}:{S_KA+5}], s{S_COL2}")
    a(f"s_load_dwordx2 s[{S_RAW+2}:{S_RAW+3}], s[{S_KA+6}:{S_KA+7}], s{S_COL2}")
    a(f"s_load_dwordx2 s[{S_RAW+4}:{S_RAW+5}], s[{S_KA+8}:{S_KA+9}], s{S_COL2}")
    a(f"s_lshl_b32 s{S_T1}, s{S_GRP}, 7")
    a(f"s_add_u32 s{S_T1}, s{S_T1}, {EPOCH}")
    a(f"s_load_dword s{S_E1}, s[{S_KA+14}:{S_KA+15}], s{S_T1}")

def mall_prefetch(a, cfg):
    a(f"""
    s_cmp_ge_u32 s{S_Q}, 2
    s_cbranch_scc1 L_mallx
    v_lshrrev_b32 v20, 1, v{V_LANE}
    v_min_u32 v20, 29, v20
    v_lshlrev_b32 v20, 10, v20
    v_and_b32 v21, 1, v{V_LANE}
    v_lshl_or_b32 v20, v21, 6, v20
    s_mul_i32 s{S_T0}, s2, 30720
    s_lshl_b32 s{S_T1}, s{S_Q}, 9
    s_add_u32 s{S_T0}, s{S_T0}, s{S_T1}
    s_add_u32 s{S_T0}, s{S_T0}, 384
    buffer_load_dword v134, v20, s[{S_W}:{S_W+3}], s{S_T0} offen
    s_branch L_nomallpf
    L_mallx:
    v_bfe_u32 v20, v{V_LANE}, 1, 3
    s_lshl_b32 s{S_T0}, s2, 3
    v_add_u32 v20, s{S_T0}, v20
    v_min_u32 v20, 1999, v20
    v_lshlrev_b32 v20, 10, v20
    v_and_b32 v21, 1, v{V_LANE}
    v_lshl_or_b32 v20, v21, 6, v20
    s_and_b32 s{S_T0}, s{S_Q}, 1
    s_lshl_b32 s{S_T0}, s{S_T0}, 9
    s_add_u32 s{S_T0}, s{S_T0}, 384
    v_add_u32 v20, s{S_T0}, v20
    global_load_dword v134, v20, s[{S_KA}:{S_KA+1}]
    L_nomallpf:
    """)

def setup_lanes(a):
    T = FT
    a(f"""
    v_and_b32 v{T}, 3, v{V_LANE}
    v_lshlrev_b32 v{FV_RR}, 5, v{T}
    v_add_u32 v{FV_RR}, {RED}, v{FV_RR}
    v_bfe_u32 v{T}, v{V_LANE}, 2, 2
    v_lshrrev_b32 v{T+1}, 4, v{V_LANE}
    v_cmp_eq_u32 vcc, v{T}, v{T+1}
    v_and_b32 v{T+2}, 1, v{V_LANE}
    v_lshlrev_b32 v{T+2}, 4, v{T+2}
    v_mov_b32 v{T+3}, 0x3f80
    v_lshlrev_b32 v{T+3}, v{T+2}, v{T+3}
    v_cndmask_b32 v{T+3}, 0, v{T+3}, vcc
    v_bfe_u32 v{T}, v{V_LANE}, 1, 1
    v_cmp_eq_u32 vcc, 0, v{T}
    v_mov_b32 v{FV_ZERO}, 0
    v_lshlrev_b32 v{FV_PAY}, 3, v{V_LANE}
    v_cndmask_b32 v{FV_A}, 0, v{T+3}, vcc
    v_cndmask_b32 v{FV_A+1}, v{T+3}, 0, vcc
    v_mov_b32 v{FV_A+2}, v{FV_A}
    v_mov_b32 v{FV_A+3}, v{FV_A+1}
    v_lshrrev_b32 v{T}, 4, v{V_LANE}
    v_and_b32 v{T+1}, 1, v{T}
    v_lshrrev_b32 v{T}, 1, v{T}
    v_lshl_or_b32 v{T}, v{T+1}, 1, v{T}
    v_lshlrev_b32 v{T}, 5, v{T}
    s_lshl_b32 s{S_T0}, s{S_WAVE}, 2
    s_add_u32 s{S_T0}, s{S_T0}, {RED}
    v_add_u32 v{FV_RW}, s{S_T0}, v{T}
    s_lshr_b32 s{S_T1}, s{S_WAVE}, 1
    s_and_b32 s{S_T2}, s{S_MEM}, 12
    s_add_u32 s{S_T2}, s{S_T2}, s{S_T1}
    s_lshl_b32 s{S_T2}, s{S_T2}, 7
    s_lshl_b32 s{S_T3}, s{S_GRP}, 11
    s_add_u32 s{S_T2}, s{S_T2}, s{S_T3}
    s_add_u32 s{S_POLL}, s{S_T2}, {FLAGS}
    s_lshl_b32 s{S_T0}, s{S_GRP}, 18
    s_lshl_b32 s{S_T2}, s{S_MEM}, 14
    s_add_u32 s{S_T0}, s{S_T0}, s{S_T2}
    s_lshl_b32 s{S_T2}, s{S_T1}, 12
    s_add_u32 s{S_T0}, s{S_T0}, s{S_T2}
    s_and_b32 s{S_T2}, s{S_WAVE}, 1
    s_lshl_b32 s{S_T3}, s{S_T2}, 9
    s_add_u32 s{S_PAY}, s{S_T0}, s{S_T3}
    s_lshl_b32 s{S_T1}, s{S_T1}, 7
    s_lshl_b32 s{S_T2}, s{S_T2}, 2
    s_add_u32 s{S_T1}, s{S_T1}, s{S_T2}
    v_bfe_u32 v{FV_L}, v{V_LANE}, 1, 4
    v_lshlrev_b32 v{FV_L}, 3, v{FV_L}
    v_lshrrev_b32 v{T+2}, 5, v{V_LANE}
    v_lshl_add_u32 v{FV_L}, v{T+2}, 1, v{FV_L}
    v_and_b32 v{T+2}, 1, v{V_LANE}
    v_add3_u32 v{FV_L}, v{FV_L}, v{T+2}, s{S_T1}
    s_movk_i32 s{S_T3}, 493
    v_cmp_gt_u32 s[{S_VALID}:{S_VALID+1}], s{S_T3}, v{FV_L}
    v_lshlrev_b32 v{FV_OUT}, 10, v{FV_L}
    s_mul_i32 s{S_OUTO}, s{S_BT}, {493*1024}
    s_add_u32 s{S_OUTO}, s{S_OUTO}, s{S_COL2}
    """)
    for c in range(8): a(f"v_mov_b32 v{FV_R2+c}, 0")

def setup_params(a):
    T = FT
    for c in range(4):
        src = S_RAW + (c >> 1)
        a(f"s_lshl_b32 s{S_T0}, s{src}, 16" if c % 2 == 0 else f"s_and_b32 s{S_T0}, s{src}, 0xffff0000")
        srcb = S_RAW + 4 + (c >> 1)
        a(f"s_lshl_b32 s{S_T1}, s{srcb}, 16" if c % 2 == 0 else f"s_and_b32 s{S_T1}, s{srcb}, 0xffff0000")
        a(f"v_mov_b32 v{FV_C+c}, s{S_T0}")
        a(f"v_mov_b32 v{FV_BETA+c}, s{S_T1}")
    a(f"""
    v_and_b32 v{T}, 3, v{V_LANE}
    v_mov_b32 v{T+1}, s{S_RAW+2}
    v_mov_b32 v{T+2}, s{S_RAW+3}
    v_cmp_gt_u32 vcc, 2, v{T}
    v_and_b32 v{T+3}, 1, v{V_LANE}
    v_lshlrev_b32 v{T+3}, 4, v{T+3}
    v_cndmask_b32 v{T+1}, v{T+2}, v{T+1}, vcc
    v_sub_u32 v{T+3}, 16, v{T+3}
    v_lshlrev_b32 v{T+1}, v{T+3}, v{T+1}
    v_and_b32 v{FV_GAM}, 0xffff0000, v{T+1}
    v_mov_b32 v{FV_E}, s{S_E1}
    """)

def loader(a, cfg):
    def xop(half, par, i): return ("x", half, par, i) if i < 4 else ("x16", half, par)
    def st(s): return [("w", n) for n in range(s * P, (s + 1) * P)]
    XS = cfg.get("xsched", 0)
    E = [xop(1, 0, i) for i in range(5)]; O = [xop(1, 1, i) for i in range(5)]
    if XS == 0:   xs = {2: ([], E[0:2]), 3: ([], E[2:4]), 4: (E[4:5], O[0:1]), 5: ([], O[1:3]), 6: (O[3:5], [])}
    elif XS == 1: xs = {1: ([], E[0:3]), 2: ([], E[3:5] + O[0:1]), 3: ([], O[1:3]), 4: ([], O[3:5])}
    elif XS == 2: xs = {1: ([], E + O)}
    elif XS == 3: xs = {1: ([], E), 2: ([], O[0:2]), 3: ([], O[2:4]), 4: ([], O[4:5])}
    elif XS == 4: xs = {2: ([], E), 3: ([], O)}
    elif XS == 5: xs = {2: ([], E[0:1]), 3: ([], E[1:3]), 4: (E[3:5], []), 5: ([], O[0:2]), 6: (O[2:5], [])}
    elif XS == 6: xs = {3: ([], E[0:3]), 4: (E[3:5], O[0:1]), 5: ([], O[1:3]), 6: (O[3:5], [])}
    def ph(m, mid):
        pre, post = xs.get(m, ([], []))
        return pre + mid + post
    MP = cfg.get("mallpos", 3)
    def mp(m): return [("mallpf",)] if MP == m + 2 and m >= 1 else []
    ST3 = cfg.get("st3late", 0)
    phases = [
        [("done", xop(0, 1, i)) for i in range(5)] + [("done", op) for op in st(1)] + ([("mallpf",)] if MP == 1 else []) + st(2) + [("params",)] + (st(3) if not ST3 else []) + ([("mallpf",)] if MP == 2 else []),
        ph(1, [("arrive",)]) + mp(1),
        (st(3) if ST3 else []) + ph(2, st(4)) + mp(2),
        ph(3, st(5)) + mp(3),
        ph(4, st(6)) + mp(4),
        ph(5, st(7)),
        ph(6, st(8)) + ([("touch",), ("nop_vm",)] if cfg.get("ctouch", 2) == 0 else []),
        st(9) + [("dbgload",)],
        st(10),
        st(11) + ([("touch",), ("nop_vm",)] if cfg.get("ctouch", 2) == 2 else []),
        [("setup",)],
        [("mode",)],
    ]
    PFD = cfg.get("pfd", 0)
    if PFD:
        newp = []
        for m, ph_ in enumerate(phases):
            extra = []
            if m == 0:
                extra = [("pfsetup",)] + [("pf", s_) for s_ in range(4, min(PFD, 12))]
            elif 4 <= m - 1 + PFD <= 11:
                extra = [("pf", m - 1 + PFD)]
            if m == 1: newp.append(extra + ph_)
            elif m >= 9: newp.append(ph_)
            else: newp.append(ph_ + extra)
        phases = newp
    optional = ("x16", "mode", "arrive", "params", "setup", "pfsetup", "pf")
    flat, marks = [], []
    for ph in phases:
        flat += [op[1] if op[0] == "done" else op for op in ph]; marks.append(len(flat))
    def last_required(m):
        req = -1
        for idx, op in enumerate(flat):
            if op[0] == "w" and op[1] // P <= m: req = idx
            if op[0] in ("x", "x16"):
                need = {(0, 1): 1, (1, 0): 5, (1, 1): 7}[(op[1], op[2])]
                if need <= m: req = max(req, idx)
            if op[0] == "dbgload" and m >= 10: req = max(req, idx)
        return req
    for m, ph in enumerate(phases):
        for op in ph:
            if op[0] in ("done", "nop_vm"): continue
            if op[0] == "w": dma_w(a, op[1])
            elif op[0] == "x": dma_x(a, op[1], op[2], op[3])
            elif op[0] == "x16": dma_x16(a, op[1], op[2])
            elif op[0] == "mallpf": mall_prefetch(a, cfg)
            elif op[0] == "params": late_params(a)
            elif op[0] == "pfsetup":
                a(f"""
                s_mul_i32 s{S_T1}, s{S_MT}, 40
                s_mul_i32 s{S_T2}, s{S_Q}, 10
                s_add_u32 s{S_T1}, s{S_T1}, s{S_T2}
                v_min_u32 v20, 9, v{V_LANE}
                v_add_u32 v20, s{S_T1}, v20
                v_lshrrev_b32 v21, 5, v20
                v_and_b32 v20, 31, v20
                v_lshlrev_b32 v20, 10, v20
                s_lshl_b32 s61, s{S_KS}, 17
                s_lshl_b32 s{S_T2}, s{S_NG}, 7
                s_add_u32 s61, s61, s{S_T2}
                s_and_b32 s62, s{S_NG}, {cfg.get("pfmask", 7)}
                """)
                for c in range(3):
                    a(f"""
                    v_add_u32 v22, {5*c}, v21
                    v_lshlrev_b32 v23, 1, v22
                    v_cmp_gt_u32 vcc, 8, v22
                    v_subrev_u32 v25, 15, v23
                    s_nop 0
                    v_cndmask_b32 v23, v25, v23, vcc
                    v_lshl_or_b32 v{26+c}, v23, 19, v20
                    """)
            elif op[0] == "pf":
                s_ = op[1]
                a(f"s_cmp_eq_u32 s62, 3")
                a(f"s_cbranch_scc0 L_nopf{s_}")
                a(f"s_add_u32 s{S_T1}, s61, {(s_ // 3) * 32768}")
                a(f"buffer_load_dword v135, v{26 + s_ % 3}, s[{S_W}:{S_W+3}], s{S_T1} offen")
                a(f"L_nopf{s_}:")
            elif op[0] == "setup":
                setup_lanes(a)
                setup_params(a)
            elif op[0] == "arrive":
                a(f"""
                s_waitcnt lgkmcnt(0)
                s_add_u32 s{S_E1}, s{S_E1}, 1
                s_getreg_b32 s{S_XCC}, hwreg(HW_REG_XCC_ID, 0, 3)
                s_lshl_b32 s{S_ARW}, s{S_E1}, 3
                s_or_b32 s{S_ARW}, s{S_ARW}, s{S_XCC}
                s_lshl_b32 s{S_T2}, s{S_GRP}, 7
                s_add_u32 s{S_ARA}, s{S_T2}, {ARRIVE}
                s_cmp_eq_u32 s{S_Q}, 0
                s_cbranch_scc0 L_noarrive
                s_lshl_b32 s{S_T2}, s{S_MEM}, 2
                s_add_u32 s{S_T2}, s{S_T2}, s{S_ARA}
                v_mov_b32 v{V_T1}, s{S_ARW}
                v_mov_b32 v{V_T2}, 0
                s_mov_b64 exec, 1
                buffer_store_dword v{V_T1}, v{V_T2}, s[{S_WS}:{S_WS+3}], s{S_T2} offen sc1
                s_mov_b64 exec, -1
                L_noarrive:
                """)
            elif op[0] == "touch":
                a(f"""
                v_and_b32 v{V_T1}, 31, v{V_LANE}
                v_lshlrev_b32 v{V_T1}, 7, v{V_T1}
                s_lshl_b32 s{S_T1}, s{S_GRP}, 18
                s_lshl_b32 s{S_T2}, s{S_MEM}, 14
                s_add_u32 s{S_T1}, s{S_T1}, s{S_T2}
                s_lshl_b32 s{S_T2}, s{S_Q}, 12
                s_add_u32 s{S_T1}, s{S_T1}, s{S_T2}
                buffer_load_dword v{V_T0}, v{V_T1}, s[{S_WS}:{S_WS+3}], s{S_T1} offen sc1
                s_mul_i32 s{S_T1}, s{S_BT}, {493*1024}
                s_add_u32 s{S_T1}, s{S_T1}, s{S_COL2}
                v_mov_b32 v20, 0
                buffer_load_dword v21, v20, s[{S_OUT}:{S_OUT+3}], s{S_T1} offen
                """)
            elif op[0] == "dbgload":
                a(f"""
                v_and_b32 v{V_T2}, 15, v{V_LANE}
                v_lshlrev_b32 v{V_T2}, 2, v{V_T2}
                buffer_load_dword v24, v{V_T2}, s[{S_WS}:{S_WS+3}], s{S_ARA} offen sc1
                """)
            elif op[0] == "mode":
                a(f"""
                s_mov_b32 s{S_K}, 0
                s_lshr_b32 s{S_T3}, s{S_ARW}, 3
                L_cntpoll:
                v_lshrrev_b32 v25, 3, v24
                v_cmp_eq_u32 vcc, s{S_T3}, v25
                s_nop 4
                s_cmp_eq_u64 vcc, exec
                s_cbranch_scc1 L_cntok
                s_add_u32 s{S_K}, s{S_K}, 1
                s_cmp_ge_u32 s{S_K}, {POLL_MAX}
                s_cbranch_scc1 L_cntok
                s_sleep 2
                buffer_load_dword v24, v{V_T2}, s[{S_WS}:{S_WS+3}], s{S_ARA} offen sc1
                s_waitcnt vmcnt(0)
                s_branch L_cntpoll
                L_cntok:
                v_cmp_eq_u32 vcc, s{S_ARW}, v24
                s_nop 4
                s_cmp_eq_u64 vcc, exec
                s_cselect_b32 s{S_MODE}, {0 if cfg.get('forceslow') else 1}, 0
                v_mov_b32 v{V_T1}, s{S_MODE}
                v_mov_b32 v{V_T2}, {MODEW}
                s_mov_b64 exec, 1
                ds_write_b32 v{V_T2}, v{V_T1}
                s_mov_b64 exec, -1
                s_waitcnt lgkmcnt(0)
                """)
        pos = marks[m]
        req = last_required(m)
        if m == 0:
            stamp(a, cfg, 2)
            continue
        assert req < pos
        n_after = sum(1 for op in flat[req + 1:pos] if op[0] not in optional)
        a(f"s_waitcnt vmcnt({n_after})")
        if m in (1, 3, 6, 9, 11): stamp(a, cfg, {1: 4, 3: 5, 6: 6, 9: 7, 11: 8}[m])
        a("s_barrier")

EXTRAS = {4: [(1, 0), (1, 1), (1, 2)], 5: [(1, 3), (1, 4), (1, 5)], 6: [(1, 6), (1, 7)],
          10: [(0, 0), (0, 1), (0, 2)], 11: [(0, 3), (0, 4), (0, 5)], 12: [(0, 6), (0, 7)]}

def tap_code(a, n):
    par = 0 if n < 8 else 1
    p = n if n < 8 else n - 8
    bank = XE if par == 0 else XO
    wbuf = WB + 4 * (n % 3)
    wnext = WB + 4 * ((n + 1) % 3)
    prev_extras = len(EXTRAS.get(n - 1, []))
    pre = []
    if n in (4, 9, 14):
        pre = [f"s_add_u32 s{S_SG}, s{S_SG}, {STAGE}",
               f"s_cmp_eq_u32 s{S_SG}, {NSTG*STAGE}",
               f"s_cselect_b32 s{S_SG}, 0, s{S_SG}",
               f"v_add_u32 v{V_W}, s{S_SG}, v{V_WL}"]
    reads = []
    if n == 10: reads.append(f"ds_read_b32 v{V_MODE}, v{V_MW}")
    last_p = 6 if par == 0 else 5
    if p <= last_p:
        m = p + 8
        reads.append(f"ds_read_b128 {vr(bank + 4*(m % 9))}, v{V_XC} offset:{x_imm(par, m)}")
    toff = ((n + 1) % P) * 4096
    reads.append(f"ds_read_b64_tr_b16 {vr(wnext,2)}, v{V_W} offset:{toff}")
    reads.append(f"ds_read_b64_tr_b16 {vr(wnext+2,2)}, v{V_W} offset:{toff + 512}")
    for (epar, m) in EXTRAS.get(n, []):
        if epar == 1: reads.append(f"ds_read_b128 {vr(XO + 4*m)}, v{V_XC} offset:{x_imm(1, m)}")
        else: reads.append(f"ds_read_b128 {vr(XE + 4*m)}, v{V_XN} offset:{x_imm(0, m)}")
    post = []
    if n == 14:
        post = [f"s_add_u32 s{S_K}, s{S_K}, 1",
                f"v_mov_b32 v{V_XC}, v{V_XN}",
                f"s_add_u32 s{S_T1}, s{S_K}, 1",
                f"s_lshr_b32 s{S_T2}, s{S_T1}, 1",
                f"s_mul_i32 s{S_T2}, s{S_T2}, {2*XARR}",
                f"s_and_b32 s{S_T1}, s{S_T1}, 1",
                f"s_lshl_b32 s{S_T1}, s{S_T1}, 6",
                f"s_add_u32 s{S_T1}, s{S_T1}, s{S_T2}",
                f"v_add_u32 v{V_XN}, s{S_T1}, v{V_XL}"]
    for x in pre: a(x)
    a(f"s_waitcnt lgkmcnt({prev_extras})")
    ri = 0
    for t in range(8):
        m = p + t
        a(f"v_mfma_f32_16x16x32_bf16 {vr(ACC + 4*t)}, {vr(wbuf)}, {vr(bank + 4*(m % 9))}, {vr(ACC + 4*t)}")
        if t == 0 and n in (4, 9, 14): a("s_barrier")
        if t < 7 and ri < len(reads):
            a(reads[ri]); ri += 1
        if n == 14 and t >= 2:
            for x in post[(t - 2) * 2:(t - 2) * 2 + 2]: a(x)
        if n == 13 and t == 6: a(f"s_cmp_eq_u32 s{S_K}, 3")
    assert ri == len(reads)

def compute(a, cfg):
    late_params(a)
    a(f"""
    v_and_b32 v{V_T0}, 15, v{V_LANE}             ; i / j
    v_lshrrev_b32 v{V_T1}, 4, v{V_LANE}          ; g
    v_mul_u32_u24 v{V_XL}, 1056, v{V_T0}
    v_lshl_add_u32 v{V_XL}, v{V_T1}, 4, v{V_XL}
    v_lshrrev_b32 v{V_T2}, 2, v{V_T0}
    v_lshl_add_u32 v{V_T2}, v{V_T1}, 3, v{V_T2}
    v_lshlrev_b32 v{V_WL}, 7, v{V_T2}
    v_bfe_u32 v{V_T2}, v{V_T0}, 3, 1
    v_and_b32 v{V_T3}, 1, v{V_T1}
    v_lshl_or_b32 v{V_T2}, v{V_T3}, 1, v{V_T2}
    v_xor_b32 v{V_T2}, s{S_Q}, v{V_T2}
    v_lshl_add_u32 v{V_WL}, v{V_T2}, 5, v{V_WL}
    v_and_b32 v{V_T3}, 3, v{V_T0}
    v_lshl_add_u32 v{V_WL}, v{V_T3}, 3, v{V_WL}
    v_add_u32 v{V_WL}, {WRING}, v{V_WL}
    v_mov_b32 v{V_XC}, v{V_XL}
    v_add_u32 v{V_XN}, 64, v{V_XL}
    v_mov_b32 v{V_W}, v{V_WL}
    v_mov_b32 v{V_MW}, {MODEW}
    s_mov_b32 s{S_SG}, 0
    s_mov_b32 s{S_K}, 0
    v_lshlrev_b32 v{V_T1}, 14, v{V_T1}
    v_lshl_add_u32 v{V_STO}, v{V_T0}, 4, v{V_T1}
    s_lshl_b32 s{S_T0}, s{S_Q}, 16
    v_add_u32 v{V_STO}, s{S_T0}, v{V_STO}
    s_lshl_b32 s{S_T0}, s{S_GRP}, 18
    s_lshl_b32 s{S_T1}, s{S_MEM}, 10
    s_add_u32 s{S_STO}, s{S_T0}, s{S_T1}
    s_lshl_b32 s{S_T1}, s{S_Q}, 2
    s_add_u32 s{S_T1}, s{S_T1}, s{S_MT}
    s_lshl_b32 s{S_T1}, s{S_T1}, 7
    s_lshl_b32 s{S_T2}, s{S_KS}, 2
    s_add_u32 s{S_T1}, s{S_T1}, s{S_T2}
    s_lshl_b32 s{S_T2}, s{S_GRP}, 11
    s_add_u32 s{S_T1}, s{S_T1}, s{S_T2}
    s_add_u32 s{S_FLAG}, s{S_T1}, {FLAGS}
    """)
    for r in range(32): a(f"v_mov_b32 v{ACC + r}, 0")
    setup_lanes(a)
    a("s_waitcnt lgkmcnt(0)")
    a(f"s_add_u32 s{S_E1}, s{S_E1}, 1")
    setup_params(a)
    stamp(a, cfg, 2)
    a("s_waitcnt vmcnt(0)")
    stamp(a, cfg, 3)
    a(f"""
    v_mov_b32 v{V_T0}, {CNTW}
    v_mov_b32 v{V_T1}, 1
    s_mov_b64 exec, 1
    ds_add_u32 v{V_T0}, v{V_T1}
    s_mov_b64 exec, -1
    L_b0spin:
    ds_read_b32 v{V_T1}, v{V_T0}
    s_waitcnt lgkmcnt(0)
    v_readfirstlane_b32 s{S_T0}, v{V_T1}
    s_cmp_ge_u32 s{S_T0}, 4
    s_cbranch_scc0 L_b0spin
    """)
    if cfg.get("ctouch", 2) == 1:
        a(f"""
        v_and_b32 v{V_T1}, 31, v{V_LANE}
        v_lshlrev_b32 v{V_T1}, 7, v{V_T1}
        s_lshl_b32 s{S_T1}, s{S_GRP}, 18
        s_lshl_b32 s{S_T2}, s{S_MEM}, 14
        s_add_u32 s{S_T1}, s{S_T1}, s{S_T2}
        s_lshl_b32 s{S_T2}, s{S_Q}, 12
        s_add_u32 s{S_T1}, s{S_T1}, s{S_T2}
        buffer_load_dword v134, v{V_T1}, s[{S_WS}:{S_WS+3}], s{S_T1} offen sc1
        buffer_load_dword v135, v{FV_ZERO}, s[{S_OUT}:{S_OUT+3}], s{S_OUTO} offen
        """)
    if cfg.get("prio") == 1: a("s_setprio 0")
    stamp(a, cfg, 4)
    stamp(a, cfg, 8, True)
    a(f"ds_read_b64_tr_b16 {vr(WB,2)}, v{V_W}")
    a(f"ds_read_b64_tr_b16 {vr(WB+2,2)}, v{V_W} offset:512")
    for m in range(8):
        a(f"ds_read_b128 {vr(XE + 4*m)}, v{V_XC} offset:{x_imm(0, m)}")
    a("L_kloop:")
    for n in range(14): tap_code(a, n)
    a("s_cbranch_scc1 L_lasttap")
    tap_code(a, 14)
    if cfg.get("stamps") == 2:
        a(f"""
        s_memtime s[84:85]
        s_waitcnt lgkmcnt(0)
        s_cmp_eq_u32 s{S_K}, 1
        s_cselect_b32 s96, s84, s96
        s_cmp_eq_u32 s{S_K}, 2
        s_cselect_b32 s97, s84, s97
        s_cmp_eq_u32 s{S_K}, 3
        s_cselect_b32 s98, s84, s98
        """)
    a("s_branch L_kloop")
    a("L_lasttap:")
    n = 14; p = 6; bank = XO; wbuf = WB + 4 * (n % 3)
    T = XE
    def cvt(s):
        out = []
        for e in range(2):
            t = 2 * s + e
            out.append(f"v_cvt_pk_bf16_f32 v{T + 4*s + 2*e}, v{ACC + 4*t}, v{ACC + 4*t + 1}")
            out.append(f"v_cvt_pk_bf16_f32 v{T + 4*s + 2*e + 1}, v{ACC + 4*t + 2}, v{ACC + 4*t + 3}")
        return out
    def store(s, sc):
        if cfg.get("nopayload"): return "s_nop 0"
        return f"buffer_store_dwordx4 {vr(T + 4*s)}, v{V_STO}, s[{S_WS}:{S_WS+3}], s{S_STO} offen offset:{s*256}{sc}"
    a("s_waitcnt lgkmcnt(0)")
    a(f"v_readfirstlane_b32 s{S_MODE}, v{V_MODE}")
    mf = [f"v_mfma_f32_16x16x32_bf16 {vr(ACC + 4*t)}, {vr(wbuf)}, {vr(bank + 4*((p + t) % 9))}, {vr(ACC + 4*t)}" for t in range(8)]
    a(mf[0]); a("s_nop 0"); a(mf[1]); a("s_nop 0"); a(mf[2]); a(f"s_cmp_eq_u32 s{S_MODE}, 1"); a(mf[3])
    a("s_cbranch_scc1 L_fast")
    for lab, sc in (("", " sc1"), ("L_fast:", cfg.get("fastflavor", ""))):
        if lab: a(lab)
        a(mf[4]); a("s_nop 0"); a(mf[5]); a("s_nop 0"); a(mf[6]); a("s_nop 0")
        c0 = cvt(0); a(c0[0]); a(mf[7])
        for x in c0[1:]: a(x)
        a(store(0, sc))
        for x in cvt(1): a(x)
        a(store(1, sc))
        for x in cvt(2): a(x)
        a(store(2, sc))
        for x in cvt(3): a(x)
        a(store(3, sc))
        stamp(a, cfg, 9, True)
        stamp(a, cfg, 5)
        a("s_waitcnt vmcnt(0)")
        a("s_mov_b64 exec, 1")
        a(f"buffer_store_dword v{FV_E}, v{FV_ZERO}, s[{S_WS}:{S_WS+3}], s{S_FLAG} offen{' sc1' if sc == ' sc1' else ''}")
        a("s_mov_b64 exec, -1")
        stamp(a, cfg, 7)
        if not lab: a("s_branch L_final")

def fold_reduce(a, r, ldsoff):
    a(f"""
    s_nop 1
    v_permlane32_swap_b32 v{r}, v{r+1}
    v_permlane32_swap_b32 v{r+2}, v{r+3}
    v_add_f32 v{r}, v{r}, v{r+1}
    v_add_f32 v{r+2}, v{r+2}, v{r+3}
    s_nop 1
    v_permlane16_swap_b32 v{r}, v{r+2}
    v_add_f32 v{r}, v{r}, v{r+2}
    """)
    for sh in (8, 4, 2, 1):
        a("s_nop 1")
        a(f"v_add_f32_dpp v{r}, v{r}, v{r} row_ror:{sh} row_mask:0xf bank_mask:0xf")
    a(f"""
    s_mov_b32 exec_lo, 0x00010001
    s_mov_b32 exec_hi, 0x00010001
    ds_write_b32 v{FV_RW}, v{r} offset:{ldsoff}
    s_mov_b64 exec, -1
    s_waitcnt lgkmcnt(0)
    s_barrier
    ds_read_b128 {vr(r)}, v{FV_RR} offset:{ldsoff}
    ds_read_b128 {vr(r+4)}, v{FV_RR} offset:{ldsoff + 16}
    s_waitcnt lgkmcnt(0)
    v_pk_add_f32 {vr(r,2)}, {vr(r,2)}, {vr(r+2,2)}
    v_pk_add_f32 {vr(r+4,2)}, {vr(r+4,2)}, {vr(r+6,2)}
    v_pk_add_f32 {vr(r,2)}, {vr(r,2)}, {vr(r+4,2)}
    v_add_f32 v{r}, v{r}, v{r+1}
    """)

def final_phase(a, cfg):
    a("L_final:")
    if cfg.get("poll2"):
        def chk(r):
            return f"""
            v_xor_b32 v{r}, s{S_E1}, v{r}
            v_xor_b32 v{r+1}, s{S_E1}, v{r+1}
            v_xor_b32 v{r+2}, s{S_E1}, v{r+2}
            v_xor_b32 v{r+3}, s{S_E1}, v{r+3}
            v_or3_b32 v{r}, v{r}, v{r+1}, v{r+2}
            v_or_b32 v{r}, v{r}, v{r+3}
            s_add_u32 s{S_K}, s{S_K}, 1
            v_readfirstlane_b32 s{S_T1}, v{r}
            s_cmp_eq_u32 s{S_T1}, 0
            s_cbranch_scc1 L_flagok
            """
        ld = lambda r: f"buffer_load_dwordx4 v[{r}:{r+3}], v{FV_ZERO}, s[{S_WS}:{S_WS+3}], s{S_POLL} offen sc1"
        a(f"s_mov_b32 s{S_K}, 0")
        a(ld(20))
        a("L_flagpoll:")
        a(ld(24)); a("s_waitcnt vmcnt(1)"); a(chk(20))
        a(ld(20)); a("s_waitcnt vmcnt(1)"); a(chk(24))
        a(f"""
        s_cmp_ge_u32 s{S_K}, {POLL_MAX}
        s_cbranch_scc0 L_flagpoll
        L_flagok:
        """)
    else:
        a(f"""
        s_mov_b32 s{S_K}, 0
        L_flagpoll:
        buffer_load_dwordx4 v[20:23], v{FV_ZERO}, s[{S_WS}:{S_WS+3}], s{S_POLL} offen sc1
        s_waitcnt vmcnt(0)
        v_xor_b32 v20, s{S_E1}, v20
        v_xor_b32 v21, s{S_E1}, v21
        v_xor_b32 v22, s{S_E1}, v22
        v_xor_b32 v23, s{S_E1}, v23
        v_or3_b32 v20, v20, v21, v22
        v_or_b32 v20, v20, v23
        s_add_u32 s{S_K}, s{S_K}, 1
        v_readfirstlane_b32 s{S_T1}, v20
        s_cmp_eq_u32 s{S_T1}, 0
        s_cbranch_scc1 L_flagok
        s_cmp_ge_u32 s{S_K}, {POLL_MAX}
        s_cbranch_scc1 L_flagok
        s_branch L_flagpoll
        L_flagok:
        """)
    stamp(a, cfg, 10)
    for ks in range(4):
        a(f"buffer_load_dwordx2 {vr(F_IN + 2*ks, 2)}, v{FV_PAY}, s[{S_WS}:{S_WS+3}], s{S_PAY} offen offset:{ks*1024} sc1")
    a("s_waitcnt vmcnt(2)")
    a(f"v_mfma_f32_16x16x32_bf16 {vr(F_Y)}, {vr(FV_A)}, {vr(F_IN)}, {vr(FV_C)}")
    a("s_waitcnt vmcnt(0)")
    stamp(a, cfg, 11)
    a(f"v_mfma_f32_16x16x32_bf16 {vr(F_Y)}, {vr(FV_A)}, {vr(F_IN+4)}, {vr(F_Y)}")
    if cfg.get("wbl2"):
        mask = {1: 15, 2: 3, 3: 0}[cfg["wbl2"]]
        a(f"""
        s_and_b32 s{S_T0}, s{S_MEM}, {mask}
        s_or_b32 s{S_T0}, s{S_T0}, s{S_WAVE}
        s_cmp_eq_u32 s{S_T0}, 0
        s_cbranch_scc0 L_nowb
        buffer_wbl2 sc1
        L_nowb:
        """)
    R = F_T
    Q = FV_R2
    a("s_nop 7")
    if cfg.get("twopass"):
        for c in range(4): a(f"v_cndmask_b32 v{R+c}, 0, v{F_Y+c}, s[{S_VALID}:{S_VALID+1}]")
        fold_reduce(a, R, 0)
        a(f"v_mul_f32 v{R}, {f2h(1/493)}, v{R}")
        a("s_nop 1")
        for c in range(4):
            a(f"v_subrev_f32_dpp v{F_Y+c}, v{R}, v{F_Y+c} quad_perm:[{c},{c},{c},{c}] row_mask:0xf bank_mask:0xf")
        a(f"s_mov_b64 exec, s[{S_VALID}:{S_VALID+1}]")
        for c in range(4): a(f"v_mul_f32 v{FV_R2+c}, v{F_Y+c}, v{F_Y+c}")
        a("s_mov_b64 exec, -1")
        fold_reduce(a, FV_R2, 128)
        a(f"v_mov_b32 v{R+1}, {f2h(1e-5)}")
        a(f"v_fmac_f32 v{R+1}, {f2h(1/493)}, v{FV_R2}")
    else:
        for c in range(4): a(f"v_cndmask_b32 v{R+c}, 0, v{F_Y+c}, s[{S_VALID}:{S_VALID+1}]")
        for c in range(4): a(f"v_mul_f32 v{Q+c}, v{R+c}, v{R+c}")
        a(f"""
        v_permlane32_swap_b32 v{R}, v{R+1}
        v_permlane32_swap_b32 v{R+2}, v{R+3}
        v_permlane32_swap_b32 v{Q}, v{Q+1}
        v_permlane32_swap_b32 v{Q+2}, v{Q+3}
        v_add_f32 v{R}, v{R}, v{R+1}
        v_add_f32 v{R+2}, v{R+2}, v{R+3}
        v_add_f32 v{Q}, v{Q}, v{Q+1}
        v_add_f32 v{Q+2}, v{Q+2}, v{Q+3}
        s_nop 0
        v_permlane16_swap_b32 v{R}, v{R+2}
        v_permlane16_swap_b32 v{Q}, v{Q+2}
        v_add_f32 v{R}, v{R}, v{R+2}
        v_add_f32 v{Q}, v{Q}, v{Q+2}
        """)
        for sh in (8, 4, 2, 1):
            a("s_nop 0")
            a(f"v_add_f32_dpp v{R}, v{R}, v{R} row_ror:{sh} row_mask:0xf bank_mask:0xf")
            a(f"v_add_f32_dpp v{Q}, v{Q}, v{Q} row_ror:{sh} row_mask:0xf bank_mask:0xf")
        a(f"""
        s_mov_b32 exec_lo, 0x00010001
        s_mov_b32 exec_hi, 0x00010001
        ds_write_b32 v{FV_RW}, v{R}
        ds_write_b32 v{FV_RW}, v{Q} offset:128
        s_mov_b64 exec, -1
        s_waitcnt lgkmcnt(0)
        s_barrier
        ds_read_b128 {vr(R)}, v{FV_RR}
        ds_read_b128 {vr(R+4)}, v{FV_RR} offset:16
        ds_read_b128 {vr(Q)}, v{FV_RR} offset:128
        ds_read_b128 {vr(Q+4)}, v{FV_RR} offset:144
        s_waitcnt lgkmcnt(2)
        v_pk_add_f32 {vr(R,2)}, {vr(R,2)}, {vr(R+2,2)}
        v_pk_add_f32 {vr(R+4,2)}, {vr(R+4,2)}, {vr(R+6,2)}
        s_waitcnt lgkmcnt(0)
        v_pk_add_f32 {vr(Q,2)}, {vr(Q,2)}, {vr(Q+2,2)}
        v_pk_add_f32 {vr(Q+4,2)}, {vr(Q+4,2)}, {vr(Q+6,2)}
        v_pk_add_f32 {vr(R,2)}, {vr(R,2)}, {vr(R+4,2)}
        v_pk_add_f32 {vr(Q,2)}, {vr(Q,2)}, {vr(Q+4,2)}
        v_add_f32 v{R}, v{R}, v{R+1}
        v_add_f32 v{Q}, v{Q}, v{Q+1}
        v_mul_f32 v{R}, {f2h(1/493)}, v{R}                 ; mean
        v_mul_f32 v{Q}, {f2h(1/493)}, v{Q}                 ; E[y^2]
        v_mul_f32 v{R+2}, v{R}, v{R}                       ; mean^2
        v_sub_f32 v{Q}, v{Q}, v{R+2}                       ; variance
        v_mul_f32 v{R+3}, {f2h(256.0)}, v{Q}
        v_cmp_gt_f32 vcc, v{R+2}, v{R+3}
        """)
        for c in range(4):
            a(f"v_subrev_f32_dpp v{F_Y+c}, v{R}, v{F_Y+c} quad_perm:[{c},{c},{c},{c}] row_mask:0xf bank_mask:0xf")
        a(f"""
        s_cmp_lg_u64 vcc, 0
        s_cbranch_scc0 L_varok
        """)
        for c in range(4): a(f"v_mul_f32 v{Q+c}, v{F_Y+c}, v{F_Y+c}")
        for c in range(4): a(f"v_cndmask_b32 v{Q+c}, 0, v{Q+c}, s[{S_VALID}:{S_VALID+1}]")
        fold_reduce(a, Q, 384)
        a(f"v_mul_f32 v{Q}, {f2h(1/493)}, v{Q}")
        a("L_varok:")
        a(f"v_add_f32 v{R+1}, {f2h(1e-5)}, v{Q}")
    a(f"v_rsq_f32 v{R+1}, v{R+1}")
    a("s_nop 0")
    a(f"v_mul_f32 v{R+1}, v{R+1}, v{FV_GAM}")
    a("s_nop 1")
    for c in range(4):
        a(f"v_fmac_f32_dpp v{FV_BETA+c}, v{R+1}, v{F_Y+c} quad_perm:[{c},{c},{c},{c}] row_mask:0xf bank_mask:0xf")
    X = FV_BETA
    c1 = 2.302208198144325
    a(f"s_mov_b32 s{S_T0}, {f2h(c1*0.044715)}")
    a(f"v_mov_b32 v{R}, {f2h(c1)}")
    Z = R + 2
    if cfg.get("pkgelu"):
        a(f"v_mov_b32 v{R+1}, v{R}")
        a(f"v_mov_b32 v{R+6}, s{S_T0}")
        a(f"v_mov_b32 v{R+7}, s{S_T0}")
        for c in (0, 2): a(f"v_pk_mul_f32 {vr(Z+c,2)}, {vr(X+c,2)}, {vr(X+c,2)}")
        for c in (0, 2): a(f"v_pk_fma_f32 {vr(Z+c,2)}, {vr(Z+c,2)}, {vr(R+6,2)}, {vr(R,2)}")
        for c in (0, 2): a(f"v_pk_mul_f32 {vr(Z+c,2)}, {vr(X+c,2)}, {vr(Z+c,2)}")
        for c in range(4): a(f"v_exp_f32 v{Z+c}, -v{Z+c}")
        a("s_nop 0")
        for c in range(4): a(f"v_add_f32 v{Z+c}, 1.0, v{Z+c}")
        for c in range(4): a(f"v_rcp_f32 v{Z+c}, v{Z+c}")
        a("s_nop 0")
        for c in (0, 2): a(f"v_pk_mul_f32 {vr(X+c,2)}, {vr(X+c,2)}, {vr(Z+c,2)}")
    else:
        for c in range(4): a(f"v_mul_f32 v{Z+c}, v{X+c}, v{X+c}")
        for c in range(4): a(f"v_fma_f32 v{Z+c}, v{Z+c}, s{S_T0}, v{R}")
        for c in range(4): a(f"v_mul_f32 v{Z+c}, v{X+c}, v{Z+c}")
        for c in range(4): a(f"v_exp_f32 v{Z+c}, -v{Z+c}")
        a("s_nop 0")
        for c in range(4): a(f"v_add_f32 v{Z+c}, 1.0, v{Z+c}")
        for c in range(4): a(f"v_rcp_f32 v{Z+c}, v{Z+c}")
        a("s_nop 0")
        for c in range(4): a(f"v_mul_f32 v{X+c}, v{X+c}, v{Z+c}")
    a(f"v_cvt_pk_bf16_f32 v{Z}, v{X}, v{X+1}")
    a(f"v_cvt_pk_bf16_f32 v{Z+1}, v{X+2}, v{X+3}")
    a(f"s_mov_b64 exec, s[{S_VALID}:{S_VALID+1}]")
    a(f"buffer_store_dwordx2 {vr(Z,2)}, v{FV_OUT}, s[{S_OUT}:{S_OUT+3}], s{S_OUTO} offen")
    a(f"""
    s_or_b32 s{S_T0}, s{S_MEM}, s{S_WAVE}
    s_cmp_eq_u32 s{S_T0}, 0
    s_cbranch_scc0 L_noepoch
    s_lshl_b32 s{S_T1}, s{S_GRP}, 7
    s_add_u32 s{S_T1}, s{S_T1}, {EPOCH}
    s_mov_b64 exec, 1
    buffer_store_dword v{FV_E}, v{FV_ZERO}, s[{S_WS}:{S_WS+3}], s{S_T1} offen
    L_noepoch:
    """)
    stamp(a, cfg, 12)
    if cfg.get("stamps"): a("s_waitcnt vmcnt(0)")
    stamp(a, cfg, 13)
    stamp_flush(a, cfg)

HEADER = open("cdna_kernels/" + NAME + ".s.ref").read().split("; Override")[0]

def gen(cfg):
    a = A()
    out = HEADER
    out += "; Fused kernel: implicit-GEMM conv (split-K 4 over channels) -> in-launch all-to-all of bf16 partials -> GroupNorm over time -> GELU\n"
    out += f"; @launch grid=(256,1,1) block=(512,1,1) lds={LDS_BYTES}\n"
    a('.amdgcn_target "amdgcn-amd-amdhsa--gfx950"')
    a(".text")
    a(f".globl {KNAME}\n.p2align 8\n.type {KNAME},@function\n{KNAME}:")
    prologue(a, cfg)
    a(f"s_cmp_ge_u32 s{S_WAVE}, 4")
    a("s_cbranch_scc1 L_loader")
    compute(a, cfg)
    final_phase(a, cfg)
    if cfg.get("probe"):
        idx = cfg["probe"]
        a(f"""
        s_cmp_ge_u32 s{S_WAVE}, 4
        s_cbranch_scc1 L_noprobe
        {"s_sub_u32 s84, s95, s94" if idx == 89 else f"s_sub_u32 s84, s{86+idx}, s86"}
        {"s_lshr_b32 s84, s84, 2" if idx == 89 else "s_mul_i32 s84, s84, 4"}
        s_memrealtime s[96:97]
        s_waitcnt lgkmcnt(0)
        s_add_u32 s84, s84, s96
        L_probe:
        s_memrealtime s[96:97]
        s_waitcnt lgkmcnt(0)
        s_sub_u32 s96, s96, s84
        s_cmp_lt_i32 s96, 0
        s_cbranch_scc1 L_probe
        L_noprobe:
        """)
    if cfg.get("pad"):
        a(f"""
        s_waitcnt vmcnt(0) lgkmcnt(0)
        L_pad:
        s_memrealtime s[96:97]
        s_waitcnt lgkmcnt(0)
        s_sub_u32 s96, s96, s98
        s_cmp_lt_u32 s96, {cfg['pad']}
        s_cbranch_scc1 L_pad
        """)
    a("s_endpgm")
    a("L_loader:")
    loader(a, cfg)
    stamp(a, cfg, 9)
    a("s_branch L_final")
    a("L_end:")
    a("s_endpgm")
    out += a.text()
    out += f""".section .rodata,"a"
.p2align 6
.amdhsa_kernel {KNAME}
  .amdhsa_next_free_vgpr {NVGPR}
  .amdhsa_next_free_sgpr 102
  .amdhsa_accum_offset {NVGPR}
  .amdhsa_group_segment_fixed_size 0
  .amdhsa_kernarg_size 64
  .amdhsa_user_sgpr_count 2
  .amdhsa_user_sgpr_kernarg_segment_ptr 1
  .amdhsa_system_sgpr_workgroup_id_x 1
.end_amdhsa_kernel
"""
    return out

if __name__ == "__main__":
    ap = argparse.ArgumentParser()
    ap.add_argument("-o", default="/dev/stdout")
    ap.add_argument("--stamps", type=int, nargs="?", const=1, default=0)
    ap.add_argument("--map", type=int, default=1)
    ap.add_argument("--forceslow", action="store_true")
    ap.add_argument("--pad", type=int, default=0)
    ap.add_argument("--probe", type=int, default=0)
    ap.add_argument("--fastflavor", type=str, default="")
    ap.add_argument("--nopayload", action="store_true")
    ap.add_argument("--wbl2", type=int, default=0)
    ap.add_argument("--mallw", type=int, default=2)
    ap.add_argument("--mallx", type=int, default=1)
    ap.add_argument("--mallpos", type=int, default=3)
    ap.add_argument("--xsched", type=int, default=0)
    ap.add_argument("--st3late", type=int, default=0)
    ap.add_argument("--ctouch", type=int, default=2)
    ap.add_argument("--twopass", type=int, default=0)
    ap.add_argument("--prio", type=int, default=0)
    ap.add_argument("--pfd", type=int, default=0)
    ap.add_argument("--pfmask", type=int, default=7)
    ap.add_argument("--poll2", type=int, default=1)
    ap.add_argument("--pkgelu", type=int, default=1)
    ap.add_argument("--ldelay", type=int, default=0)
    ap.add_argument("--premall", type=int, default=4)
    args = ap.parse_args()
    if args.probe: args.stamps = 1
    cfg = vars(args)
    open(args.o, "w").write(gen(cfg))
```

```python
import sys, argparse, struct

NAME = "standalone__self_sup_conv_stem_hubert__speech"
KNAME = NAME + "_kernel"

XARR = 17 * 1056
WRING = 4 * XARR
P = 5
NSTG = 4
STAGE = P * 4096
RED = WRING + NSTG * STAGE
MODEW = RED + 256
CNTW = RED + 260
LDS_BYTES = RED + 512
TAPS = [0, 2, 4, 6, 8, 10, 12, 14, 1, 3, 5, 7, 9, 11, 13]
INBOX_GROUP = 16 * 16 * 1024
FLAGS = 16 * INBOX_GROUP
EPOCH = FLAGS + 16 * 2048
ARRIVE = EPOCH + 16 * 128
STAMPS = 8 << 20
POLL_MAX = 200000

def f2h(x): return hex(struct.unpack('<I', struct.pack('<f', x))[0])

class A:
    def __init__(self): self.l = []
    def __call__(self, s):
        for x in s.strip("\n").split("\n"):
            x = x.strip()
            if x: self.l.append(x)
    def text(self):
        out = []
        for x in self.l:
            if x.endswith(":") or x.startswith(".") or x.startswith(";"): out.append(x)
            else: out.append("    " + x)
        return "\n".join(out) + "\n"

S_RAW = 4
S_POLL, S_PAY, S_FLAG = 3, 10, 11
S_X, S_W, S_WS, S_OUT = 12, 16, 20, 48
S_OUTO, S_STO = 24, 25
S_BT, S_NG, S_MT, S_KS, S_MEM, S_GRP, S_WAVE, S_Q = 26, 27, 28, 29, 30, 31, 32, 33
S_XO, S_XQ, S_XM, S_WO, S_WM = 34, 35, 36, 37, 38
S_COL2 = 39
S_T0, S_T1, S_T2, S_T3 = 40, 41, 42, 43
S_SG, S_K, S_MODE, S_XCC = 44, 45, 46, 47
S_E1, S_ARW, S_ARA = 52, 53, 54
S_KA = 64
S_VALID = 80
V_LANE, V_OFFX, V_OFFW = 1, 2, 3
V_XL, V_WL, V_XC, V_XN, V_W, V_MODE = 4, 5, 6, 7, 8, 9
V_T0, V_T1, V_T2, V_T3 = 10, 11, 12, 13
V_STO, V_MW = 14, 15
ACC = 16
XE = 48
XO = 84
WB = 120
V_PF0, V_PF1 = 132, 133
FV_A, FV_C, FV_BETA, FV_R2 = 136, 140, 144, 148
FV_GAM, FV_PAY, FV_ZERO, FV_OUT, FV_RW, FV_RR, FV_L, FV_E = 156, 157, 158, 159, 160, 161, 162, 163
FT = 164
NVGPR = 168
F_Y, F_IN, F_T = 16, 40, 28

def stamp(a, cfg, idx, clk=False):
    if not cfg.get("stamps"): return
    if cfg.get("stamps") == 2 and idx >= 10: return
    a(f"{'s_memtime' if clk else 's_memrealtime'} s[84:85]")
    a("s_waitcnt lgkmcnt(0)")
    a(f"s_mov_b32 s{86+idx}, s84")
def stamp_flush(a, cfg):
    if not cfg.get("stamps") or cfg.get("probe"): return
    a("s_mov_b64 exec, -1")
    a(f"s_lshl_b32 s84, s2, 3")
    a(f"s_add_u32 s84, s84, s{S_WAVE}")
    a(f"s_lshl_b32 s84, s84, 6")
    a(f"s_add_u32 s84, s84, {STAMPS}")
    a(f"v_mov_b32 v0, 0")
    for i in range(16): a(f"v_mov_b32 v{100+i}, s{86+i}")
    for i in range(4):
        a(f"buffer_store_dwordx4 v[{100+4*i}:{103+4*i}], v0, s[{S_WS}:{S_WS+3}], s84 offen offset:{16*i}")

def vr(b, n=4): return f"v[{b}:{b+n-1}]"

def srd(a, base, ptr, nbytes):
    a(f"s_mov_b32 s{base}, s{ptr}")
    a(f"s_and_b32 s{base+1}, s{ptr+1}, 0xffff")
    if isinstance(nbytes, int): a(f"s_mov_b32 s{base+2}, {nbytes}")
    else: a(nbytes)
    a(f"s_mov_b32 s{base+3}, 0x20000")

def dma_x(a, half, par, i):
    arr = (2 * half + par) * XARR
    if i < 4:
        a(f"s_add_u32 m0, s{S_XM}, {arr + i * 4 * 1056}")
        a(f"s_add_u32 s{S_T0}, s{S_XQ}, {i * 65536 + par * 1024 + half * 128}")
    else:
        a(f"s_mov_b32 m0, {arr + 16 * 1056}")
        a(f"s_add_u32 s{S_T0}, s{S_XO}, {16 * 16384 + par * 1024 + half * 128}")
    a(f"buffer_load_dwordx4 v{V_OFFX}, s[{S_X}:{S_X+3}], s{S_T0} offen lds")

def dma_x16(a, half, par):
    arr = 2 * half + par
    lab = f"L_skipx{arr}"
    a(f"s_cmp_eq_u32 s{S_Q}, {arr}")
    a(f"s_cbranch_scc0 {lab}")
    dma_x(a, half, par, 4)
    a(f"{lab}:")

def dma_w(a, n):
    k, nl = divmod(n, 15)
    tap = TAPS[nl]
    slot = ((n // P) % NSTG) * STAGE + (n % P) * 4096
    a(f"s_add_u32 m0, s{S_WM}, {slot}")
    a(f"s_add_u32 s{S_T0}, s{S_WO}, {(tap * 512 + k * 32) * 1024}")
    a(f"buffer_load_dwordx4 v{V_OFFW}, s[{S_W}:{S_W+3}], s{S_T0} offen lds")

def x_imm(par, m): return par * XARR + (m >> 3) * 1056 + (m & 7) * 128

def prologue(a, cfg):
    a(f"""
    s_cmp_ge_u32 s2, 256
    s_cbranch_scc1 L_end
    """)
    stamp(a, cfg, 0)
    if cfg.get("pad"): a("s_memrealtime s[98:99]")
    a(f"s_load_dwordx16 s[{S_KA}:{S_KA+15}], s[0:1], 0")
    if not cfg.get("nocodepf"):
        a(f"""
        s_getpc_b64 s[4:5]
        L_pc:
        v_lshrrev_b32 v{V_PF0}, 6, v0
        v_and_b32 v{V_PF1}, 7, v0
        v_lshl_add_u32 v{V_PF0}, v{V_PF0}, 3, v{V_PF1}
        v_lshlrev_b32 v{V_PF0}, 7, v{V_PF0}
        s_sub_u32 s4, s4, L_pc-{KNAME}
        s_subb_u32 s5, s5, 0
        v_min_u32 v{V_PF0}, L_end-{KNAME}, v{V_PF0}
        global_load_dword v{V_PF1}, v{V_PF0}, s[4:5]
        """)
    a(f"""
    v_mov_b32 v{V_T0}, {CNTW}
    v_mov_b32 v{V_T1}, 0
    ds_write_b32 v{V_T0}, v{V_T1}
    """)
    if cfg.get("map", 1) == 1:
        a(f"""
        s_and_b32 s24, s2, 7
        s_lshr_b32 s25, s2, 3
        s_and_b32 s{S_BT}, s24, 1
        s_and_b32 s{S_NG}, s24, 6
        s_lshr_b32 s{S_T0}, s25, 4
        s_add_u32 s{S_NG}, s{S_NG}, s{S_T0}
        """)
    elif cfg.get("map") == 3:
        a(f"""
        s_lshr_b32 s24, s2, 3
        s_and_b32 s{S_NG}, s2, 4
        s_and_b32 s{S_T0}, s24, 3
        s_add_u32 s{S_NG}, s{S_NG}, s{S_T0}
        s_lshr_b32 s{S_BT}, s24, 4
        s_and_b32 s25, s24, 12
        s_and_b32 s{S_T0}, s2, 3
        s_or_b32 s25, s25, s{S_T0}
        """)
    else:
        a(f"""
        s_lshr_b32 s24, s2, 4
        s_and_b32 s25, s2, 15
        s_and_b32 s{S_BT}, s24, 1
        s_lshr_b32 s{S_NG}, s24, 1
        """)
    a(f"""
    s_lshr_b32 s{S_MT}, s25, 2
    s_and_b32 s{S_MT}, s{S_MT}, 3
    s_and_b32 s{S_KS}, s25, 3
    s_and_b32 s{S_MEM}, s25, 15
    s_lshl_b32 s{S_GRP}, s{S_BT}, 3
    s_add_u32 s{S_GRP}, s{S_GRP}, s{S_NG}
    v_lshrrev_b32 v{V_T0}, 6, v0
    v_and_b32 v{V_LANE}, 63, v0
    v_readfirstlane_b32 s{S_WAVE}, v{V_T0}
    v_lshrrev_b32 v{V_T0}, 3, v{V_LANE}          ; lane>>3
    v_and_b32 v{V_T1}, 7, v{V_LANE}              ; lane&7
    v_lshlrev_b32 v{V_OFFX}, 11, v{V_T0}
    v_lshl_add_u32 v{V_OFFX}, v{V_T1}, 4, v{V_OFFX}
    s_and_b32 s{S_Q}, s{S_WAVE}, 3
    s_mul_i32 s{S_XO}, s{S_BT}, 1024000
    s_add_u32 s{S_T2}, s{S_XO}, 1024000
    s_lshl_b32 s{S_T0}, s{S_MT}, 18
    s_add_u32 s{S_XO}, s{S_XO}, s{S_T0}
    s_lshl_b32 s{S_T0}, s{S_KS}, 8
    s_add_u32 s{S_XO}, s{S_XO}, s{S_T0}
    s_lshl_b32 s{S_T0}, s{S_Q}, 14
    s_add_u32 s{S_XQ}, s{S_XO}, s{S_T0}
    s_mul_i32 s{S_XM}, s{S_Q}, 1056
    s_lshl_b32 s{S_WO}, s{S_KS}, 17
    s_lshl_b32 s{S_T0}, s{S_Q}, 13
    s_add_u32 s{S_WO}, s{S_WO}, s{S_T0}
    s_lshl_b32 s{S_T0}, s{S_NG}, 7
    s_add_u32 s{S_WO}, s{S_WO}, s{S_T0}
    s_lshl_b32 s{S_WM}, s{S_Q}, 10
    s_add_u32 s{S_WM}, s{S_WM}, {WRING}
    s_lshl_b32 s{S_T1}, s{S_MEM}, 3
    s_add_u32 s{S_COL2}, s{S_T0}, s{S_T1}
    v_bfe_u32 v{V_T2}, v{V_LANE}, 4, 1
    s_and_b32 s{S_T1}, s{S_Q}, 1
    s_lshl_b32 s{S_T1}, s{S_T1}, 1
    v_or_b32 v{V_T2}, s{S_T1}, v{V_T2}
    v_lshrrev_b32 v{V_T3}, 1, v{V_T1}
    v_xor_b32 v{V_T2}, v{V_T3}, v{V_T2}
    v_lshlrev_b32 v{V_OFFW}, 10, v{V_T0}
    v_lshl_add_u32 v{V_OFFW}, v{V_T2}, 5, v{V_OFFW}
    v_and_b32 v{V_T3}, 1, v{V_LANE}
    v_lshl_add_u32 v{V_OFFW}, v{V_T3}, 4, v{V_OFFW}
    s_lshr_b32 s55, s{S_WAVE}, 2
    s_mul_i32 s56, s55, {XARR}
    s_add_u32 s56, s56, s{S_XM}
    s_lshl_b32 s57, s55, 10
    s_add_u32 s57, s57, s{S_XQ}
    s_mul_i32 s58, s55, {10 * 524288}
    s_add_u32 s58, s58, s{S_WO}
    s_mul_i32 s59, s55, {5 * 524288}
    s_sub_u32 s59, s{S_WO}, s59
    s_mul_i32 s60, s55, {STAGE}
    s_add_u32 s60, s60, s{S_WM}
    s_mov_b32 s{S_X+2}, s{S_T2}
    s_mov_b32 s{S_X+3}, 0x20000
    s_mov_b32 s{S_W+2}, 7864320
    s_mov_b32 s{S_W+3}, 0x20000
    s_waitcnt lgkmcnt(0)
    s_barrier
    s_mov_b32 s{S_X}, s{S_KA}
    s_and_b32 s{S_X+1}, s{S_KA+1}, 0xffff
    s_mov_b32 s{S_W}, s{S_KA+2}
    s_and_b32 s{S_W+1}, s{S_KA+3}, 0xffff
    """)
    stamp(a, cfg, 1)
    if cfg.get("prio"):
        a(f"""
        s_cmp_lt_u32 s{S_WAVE}, 4
        s_cbranch_scc0 L_noprio
        s_setprio 2
        L_noprio:
        """)
    if cfg.get("ldelay"):
        a(f"""
        s_cmp_ge_u32 s{S_WAVE}, 4
        s_cbranch_scc0 L_nodelay
        """)
        late_params(a)
        for r in range(cfg["ldelay"]): a("s_nop 7")
        a("L_nodelay:")
    if cfg.get("premall"):
        nst = cfg["premall"]
        a(f"""
        s_cmp_eq_u32 s{S_WAVE}, 7
        s_cbranch_scc0 L_nopremall
        v_lshrrev_b32 v20, 1, v{V_LANE}
        v_min_u32 v20, {5*nst//2 - 1}, v20
        s_mul_i32 s{S_T0}, s2, {5*nst//2}
        v_add_u32 v20, s{S_T0}, v20
        v_lshrrev_b32 v21, 7, v20
        v_and_b32 v20, 127, v20
        v_lshrrev_b32 v22, 5, v20
        v_and_b32 v20, 31, v20
        v_lshlrev_b32 v20, 10, v20
        v_lshl_or_b32 v20, v22, 17, v20
        v_cmp_le_u32 vcc, 15, v21
        v_subrev_u32 v22, 15, v21
        s_nop 0
        v_cndmask_b32 v22, v21, v22, vcc             ; nl
        v_cndmask_b32 v23, 0, 1, vcc                 ; k-step
        v_lshl_or_b32 v20, v23, 15, v20
        v_lshlrev_b32 v23, 1, v22
        v_cmp_gt_u32 vcc, 8, v22
        v_subrev_u32 v21, 15, v23
        s_nop 0
        v_cndmask_b32 v23, v21, v23, vcc             ; tap
        v_lshl_or_b32 v20, v23, 19, v20
        v_and_b32 v21, 1, v{V_LANE}
        v_lshl_or_b32 v20, v21, 6, v20
        s_movk_i32 s{S_T0}, 384
        buffer_load_dword v134, v20, s[{S_W}:{S_W+3}], s{S_T0} offen
        L_nopremall:
        """)
    for i in range(4):
        a(f"s_add_u32 m0, s56, {i * 4 * 1056}")
        a(f"s_add_u32 s{S_T0}, s57, {i * 65536}")
        a(f"buffer_load_dwordx4 v{V_OFFX}, s[{S_X}:{S_X+3}], s{S_T0} offen lds")
    a(f"""
    s_cmp_eq_u32 s{S_Q}, s55
    s_cbranch_scc0 L_skipx01
    s_mul_i32 s{S_T1}, s55, {XARR}
    s_add_u32 m0, s{S_T1}, {16 * 1056}
    s_lshl_b32 s{S_T1}, s55, 10
    s_add_u32 s{S_T1}, s{S_T1}, s{S_XO}
    s_add_u32 s{S_T0}, s{S_T1}, {16 * 16384}
    buffer_load_dwordx4 v{V_OFFX}, s[{S_X}:{S_X+3}], s{S_T0} offen lds
    L_skipx01:
    """)
    for j in range(5):
        a(f"s_add_u32 m0, s60, {j * 4096}")
        a(f"s_add_u32 s{S_T0}, s{58 if j < 3 else 59}, {TAPS[j] * 524288}")
        a(f"buffer_load_dwordx4 v{V_OFFW}, s[{S_W}:{S_W+3}], s{S_T0} offen lds")

def late_params(a):
    srd(a, S_WS, S_KA + 14, 268435456)
    srd(a, S_OUT, S_KA + 10, 2 * 493 * 512 * 2)
    a(f"s_load_dwordx2 s[{S_RAW}:{S_RAW+1}], s[{S_KA+4}:{S_KA+5}], s{S_COL2}")
    a(f"s_load_dwordx2 s[{S_RAW+2}:{S_RAW+3}], s[{S_KA+6}:{S_KA+7}], s{S_COL2}")
    a(f"s_load_dwordx2 s[{S_RAW+4}:{S_RAW+5}], s[{S_KA+8}:{S_KA+9}], s{S_COL2}")
    a(f"s_lshl_b32 s{S_T1}, s{S_GRP}, 7")
    a(f"s_add_u32 s{S_T1}, s{S_T1}, {EPOCH}")
    a(f"s_load_dword s{S_E1}, s[{S_KA+14}:{S_KA+15}], s{S_T1}")

def mall_prefetch(a, cfg):
    a(f"""
    s_cmp_ge_u32 s{S_Q}, 2
    s_cbranch_scc1 L_mallx
    v_lshrrev_b32 v20, 1, v{V_LANE}
    v_min_u32 v20, 29, v20
    v_lshlrev_b32 v20, 10, v20
    v_and_b32 v21, 1, v{V_LANE}
    v_lshl_or_b32 v20, v21, 6, v20
    s_mul_i32 s{S_T0}, s2, 30720
    s_lshl_b32 s{S_T1}, s{S_Q}, 9
    s_add_u32 s{S_T0}, s{S_T0}, s{S_T1}
    s_add_u32 s{S_T0}, s{S_T0}, 384
    buffer_load_dword v134, v20, s[{S_W}:{S_W+3}], s{S_T0} offen
    s_branch L_nomallpf
    L_mallx:
    v_bfe_u32 v20, v{V_LANE}, 1, 3
    s_lshl_b32 s{S_T0}, s2, 3
    v_add_u32 v20, s{S_T0}, v20
    v_min_u32 v20, 1999, v20
    v_lshlrev_b32 v20, 10, v20
    v_and_b32 v21, 1, v{V_LANE}
    v_lshl_or_b32 v20, v21, 6, v20
    s_and_b32 s{S_T0}, s{S_Q}, 1
    s_lshl_b32 s{S_T0}, s{S_T0}, 9
    s_add_u32 s{S_T0}, s{S_T0}, 384
    v_add_u32 v20, s{S_T0}, v20
    global_load_dword v134, v20, s[{S_KA}:{S_KA+1}]
    L_nomallpf:
    """)

def setup_lanes(a):
    T = FT
    a(f"""
    v_and_b32 v{T}, 3, v{V_LANE}
    v_lshlrev_b32 v{FV_RR}, 5, v{T}
    v_add_u32 v{FV_RR}, {RED}, v{FV_RR}
    v_bfe_u32 v{T}, v{V_LANE}, 2, 2
    v_lshrrev_b32 v{T+1}, 4, v{V_LANE}
    v_cmp_eq_u32 vcc, v{T}, v{T+1}
    v_and_b32 v{T+2}, 1, v{V_LANE}
    v_lshlrev_b32 v{T+2}, 4, v{T+2}
    v_mov_b32 v{T+3}, 0x3f80
    v_lshlrev_b32 v{T+3}, v{T+2}, v{T+3}
    v_cndmask_b32 v{T+3}, 0, v{T+3}, vcc
    v_bfe_u32 v{T}, v{V_LANE}, 1, 1
    v_cmp_eq_u32 vcc, 0, v{T}
    v_mov_b32 v{FV_ZERO}, 0
    v_lshlrev_b32 v{FV_PAY}, 3, v{V_LANE}
    v_cndmask_b32 v{FV_A}, 0, v{T+3}, vcc
    v_cndmask_b32 v{FV_A+1}, v{T+3}, 0, vcc
    v_mov_b32 v{FV_A+2}, v{FV_A}
    v_mov_b32 v{FV_A+3}, v{FV_A+1}
    v_lshrrev_b32 v{T}, 4, v{V_LANE}
    v_and_b32 v{T+1}, 1, v{T}
    v_lshrrev_b32 v{T}, 1, v{T}
    v_lshl_or_b32 v{T}, v{T+1}, 1, v{T}
    v_lshlrev_b32 v{T}, 5, v{T}
    s_lshl_b32 s{S_T0}, s{S_WAVE}, 2
    s_add_u32 s{S_T0}, s{S_T0}, {RED}
    v_add_u32 v{FV_RW}, s{S_T0}, v{T}
    s_lshr_b32 s{S_T1}, s{S_WAVE}, 1
    s_and_b32 s{S_T2}, s{S_MEM}, 12
    s_add_u32 s{S_T2}, s{S_T2}, s{S_T1}
    s_lshl_b32 s{S_T2}, s{S_T2}, 7
    s_lshl_b32 s{S_T3}, s{S_GRP}, 11
    s_add_u32 s{S_T2}, s{S_T2}, s{S_T3}
    s_add_u32 s{S_POLL}, s{S_T2}, {FLAGS}
    s_lshl_b32 s{S_T0}, s{S_GRP}, 18
    s_lshl_b32 s{S_T2}, s{S_MEM}, 14
    s_add_u32 s{S_T0}, s{S_T0}, s{S_T2}
    s_lshl_b32 s{S_T2}, s{S_T1}, 12
    s_add_u32 s{S_T0}, s{S_T0}, s{S_T2}
    s_and_b32 s{S_T2}, s{S_WAVE}, 1
    s_lshl_b32 s{S_T3}, s{S_T2}, 9
    s_add_u32 s{S_PAY}, s{S_T0}, s{S_T3}
    s_lshl_b32 s{S_T1}, s{S_T1}, 7
    s_lshl_b32 s{S_T2}, s{S_T2}, 2
    s_add_u32 s{S_T1}, s{S_T1}, s{S_T2}
    v_bfe_u32 v{FV_L}, v{V_LANE}, 1, 4
    v_lshlrev_b32 v{FV_L}, 3, v{FV_L}
    v_lshrrev_b32 v{T+2}, 5, v{V_LANE}
    v_lshl_add_u32 v{FV_L}, v{T+2}, 1, v{FV_L}
    v_and_b32 v{T+2}, 1, v{V_LANE}
    v_add3_u32 v{FV_L}, v{FV_L}, v{T+2}, s{S_T1}
    s_movk_i32 s{S_T3}, 493
    v_cmp_gt_u32 s[{S_VALID}:{S_VALID+1}], s{S_T3}, v{FV_L}
    v_lshlrev_b32 v{FV_OUT}, 10, v{FV_L}
    s_mul_i32 s{S_OUTO}, s{S_BT}, {493*1024}
    s_add_u32 s{S_OUTO}, s{S_OUTO}, s{S_COL2}
    """)
    for c in range(8): a(f"v_mov_b32 v{FV_R2+c}, 0")

def setup_params(a):
    T = FT
    for c in range(4):
        src = S_RAW + (c >> 1)
        a(f"s_lshl_b32 s{S_T0}, s{src}, 16" if c % 2 == 0 else f"s_and_b32 s{S_T0}, s{src}, 0xffff0000")
        srcb = S_RAW + 4 + (c >> 1)
        a(f"s_lshl_b32 s{S_T1}, s{srcb}, 16" if c % 2 == 0 else f"s_and_b32 s{S_T1}, s{srcb}, 0xffff0000")
        a(f"v_mov_b32 v{FV_C+c}, s{S_T0}")
        a(f"v_mov_b32 v{FV_BETA+c}, s{S_T1}")
    a(f"""
    v_and_b32 v{T}, 3, v{V_LANE}
    v_mov_b32 v{T+1}, s{S_RAW+2}
    v_mov_b32 v{T+2}, s{S_RAW+3}
    v_cmp_gt_u32 vcc, 2, v{T}
    v_and_b32 v{T+3}, 1, v{V_LANE}
    v_lshlrev_b32 v{T+3}, 4, v{T+3}
    v_cndmask_b32 v{T+1}, v{T+2}, v{T+1}, vcc
    v_sub_u32 v{T+3}, 16, v{T+3}
    v_lshlrev_b32 v{T+1}, v{T+3}, v{T+1}
    v_and_b32 v{FV_GAM}, 0xffff0000, v{T+1}
    v_mov_b32 v{FV_E}, s{S_E1}
    """)

def loader(a, cfg):
    def xop(half, par, i): return ("x", half, par, i) if i < 4 else ("x16", half, par)
    def st(s): return [("w", n) for n in range(s * P, (s + 1) * P)]
    XS = cfg.get("xsched", 0)
    E = [xop(1, 0, i) for i in range(5)]; O = [xop(1, 1, i) for i in range(5)]
    if XS == 0:   xs = {2: ([], E[0:2]), 3: ([], E[2:4]), 4: (E[4:5], O[0:1]), 5: ([], O[1:3]), 6: (O[3:5], [])}
    elif XS == 1: xs = {1: ([], E[0:3]), 2: ([], E[3:5] + O[0:1]), 3: ([], O[1:3]), 4: ([], O[3:5])}
    elif XS == 2: xs = {1: ([], E + O)}
    elif XS == 3: xs = {1: ([], E), 2: ([], O[0:2]), 3: ([], O[2:4]), 4: ([], O[4:5])}
    elif XS == 4: xs = {2: ([], E), 3: ([], O)}
    elif XS == 5: xs = {2: ([], E[0:1]), 3: ([], E[1:3]), 4: (E[3:5], []), 5: ([], O[0:2]), 6: (O[2:5], [])}
    elif XS == 6: xs = {3: ([], E[0:3]), 4: (E[3:5], O[0:1]), 5: ([], O[1:3]), 6: (O[3:5], [])}
    def ph(m, mid):
        pre, post = xs.get(m, ([], []))
        return pre + mid + post
    MP = cfg.get("mallpos", 2)
    def mp(m): return [("mallpf",)] if MP == m + 2 and m >= 1 else []
    ST3 = cfg.get("st3late", 0)
    phases = [
        [("done", xop(0, 1, i)) for i in range(5)] + [("done", op) for op in st(1)] + ([("mallpf",)] if MP == 1 else []) + st(2) + [("params",)] + (st(3) if not ST3 else []) + ([("mallpf",)] if MP == 2 else []),
        ph(1, [("arrive",)]) + mp(1),
        (st(3) if ST3 else []) + ph(2, st(4)) + mp(2),
        ph(3, st(5)) + mp(3),
        ph(4, st(6)) + mp(4),
        ph(5, st(7)),
        ph(6, st(8)) + ([("touch",), ("nop_vm",)] if cfg.get("ctouch", 2) == 0 else []),
        st(9) + [("dbgload",)],
        st(10),
        st(11) + ([("touch",), ("nop_vm",)] if cfg.get("ctouch", 2) == 2 else []),
        [("setup",)],
        [("mode",)],
    ]
    PFD = cfg.get("pfd", 0)
    if PFD:
        newp = []
        for m, ph_ in enumerate(phases):
            extra = []
            if m == 0:
                extra = [("pfsetup",)] + [("pf", s_) for s_ in range(4, min(PFD, 12))]
            elif 4 <= m - 1 + PFD <= 11:
                extra = [("pf", m - 1 + PFD)]
            if m == 1: newp.append(extra + ph_)
            elif m >= 9: newp.append(ph_)
            else: newp.append(ph_ + extra)
        phases = newp
    optional = ("x16", "mode", "arrive", "params", "setup", "pfsetup", "pf")
    flat, marks = [], []
    for ph in phases:
        flat += [op[1] if op[0] == "done" else op for op in ph]; marks.append(len(flat))
    def last_required(m):
        req = -1
        for idx, op in enumerate(flat):
            if op[0] == "w" and op[1] // P <= m: req = idx
            if op[0] in ("x", "x16"):
                need = {(0, 1): 1, (1, 0): 5, (1, 1): 7}[(op[1], op[2])]
                if need <= m: req = max(req, idx)
            if op[0] == "dbgload" and m >= 10: req = max(req, idx)
        return req
    for m, ph in enumerate(phases):
        for op in ph:
            if op[0] in ("done", "nop_vm"): continue
            if op[0] == "w": dma_w(a, op[1])
            elif op[0] == "x": dma_x(a, op[1], op[2], op[3])
            elif op[0] == "x16": dma_x16(a, op[1], op[2])
            elif op[0] == "mallpf": mall_prefetch(a, cfg)
            elif op[0] == "params": late_params(a)
            elif op[0] == "pfsetup":
                a(f"""
                s_mul_i32 s{S_T1}, s{S_MT}, 40
                s_mul_i32 s{S_T2}, s{S_Q}, 10
                s_add_u32 s{S_T1}, s{S_T1}, s{S_T2}
                v_min_u32 v20, 9, v{V_LANE}
                v_add_u32 v20, s{S_T1}, v20
                v_lshrrev_b32 v21, 5, v20
                v_and_b32 v20, 31, v20
                v_lshlrev_b32 v20, 10, v20
                s_lshl_b32 s61, s{S_KS}, 17
                s_lshl_b32 s{S_T2}, s{S_NG}, 7
                s_add_u32 s61, s61, s{S_T2}
                s_and_b32 s62, s{S_NG}, {cfg.get("pfmask", 7)}
                """)
                for c in range(3):
                    a(f"""
                    v_add_u32 v22, {5*c}, v21
                    v_lshlrev_b32 v23, 1, v22
                    v_cmp_gt_u32 vcc, 8, v22
                    v_subrev_u32 v25, 15, v23
                    s_nop 0
                    v_cndmask_b32 v23, v25, v23, vcc
                    v_lshl_or_b32 v{26+c}, v23, 19, v20
                    """)
            elif op[0] == "pf":
                s_ = op[1]
                a(f"s_cmp_eq_u32 s62, 3")
                a(f"s_cbranch_scc0 L_nopf{s_}")
                a(f"s_add_u32 s{S_T1}, s61, {(s_ // 3) * 32768}")
                a(f"buffer_load_dword v135, v{26 + s_ % 3}, s[{S_W}:{S_W+3}], s{S_T1} offen")
                a(f"L_nopf{s_}:")
            elif op[0] == "setup":
                setup_lanes(a)
                setup_params(a)
            elif op[0] == "arrive":
                a(f"""
                s_waitcnt lgkmcnt(0)
                s_add_u32 s{S_E1}, s{S_E1}, 1
                s_getreg_b32 s{S_XCC}, hwreg(HW_REG_XCC_ID, 0, 3)
                s_lshl_b32 s{S_ARW}, s{S_E1}, 3
                s_or_b32 s{S_ARW}, s{S_ARW}, s{S_XCC}
                s_lshl_b32 s{S_T2}, s{S_GRP}, 7
                s_add_u32 s{S_ARA}, s{S_T2}, {ARRIVE}
                s_cmp_eq_u32 s{S_Q}, 0
                s_cbranch_scc0 L_noarrive
                s_lshl_b32 s{S_T2}, s{S_MEM}, 2
                s_add_u32 s{S_T2}, s{S_T2}, s{S_ARA}
                v_mov_b32 v{V_T1}, s{S_ARW}
                v_mov_b32 v{V_T2}, 0
                s_mov_b64 exec, 1
                buffer_store_dword v{V_T1}, v{V_T2}, s[{S_WS}:{S_WS+3}], s{S_T2} offen sc1
                s_mov_b64 exec, -1
                L_noarrive:
                """)
            elif op[0] == "touch":
                a(f"""
                v_and_b32 v{V_T1}, 31, v{V_LANE}
                v_lshlrev_b32 v{V_T1}, 7, v{V_T1}
                s_lshl_b32 s{S_T1}, s{S_GRP}, 18
                s_lshl_b32 s{S_T2}, s{S_MEM}, 14
                s_add_u32 s{S_T1}, s{S_T1}, s{S_T2}
                s_lshl_b32 s{S_T2}, s{S_Q}, 12
                s_add_u32 s{S_T1}, s{S_T1}, s{S_T2}
                buffer_load_dword v{V_T0}, v{V_T1}, s[{S_WS}:{S_WS+3}], s{S_T1} offen sc1
                s_mul_i32 s{S_T1}, s{S_BT}, {493*1024}
                s_add_u32 s{S_T1}, s{S_T1}, s{S_COL2}
                v_mov_b32 v20, 0
                buffer_load_dword v21, v20, s[{S_OUT}:{S_OUT+3}], s{S_T1} offen
                """)
            elif op[0] == "dbgload":
                a(f"""
                v_and_b32 v{V_T2}, 15, v{V_LANE}
                v_lshlrev_b32 v{V_T2}, 2, v{V_T2}
                buffer_load_dword v24, v{V_T2}, s[{S_WS}:{S_WS+3}], s{S_ARA} offen sc1
                """)
            elif op[0] == "mode":
                a(f"""
                s_mov_b32 s{S_K}, 0
                s_lshr_b32 s{S_T3}, s{S_ARW}, 3
                L_cntpoll:
                v_lshrrev_b32 v25, 3, v24
                v_cmp_eq_u32 vcc, s{S_T3}, v25
                s_nop 4
                s_cmp_eq_u64 vcc, exec
                s_cbranch_scc1 L_cntok
                s_add_u32 s{S_K}, s{S_K}, 1
                s_cmp_ge_u32 s{S_K}, {POLL_MAX}
                s_cbranch_scc1 L_cntok
                s_sleep 2
                buffer_load_dword v24, v{V_T2}, s[{S_WS}:{S_WS+3}], s{S_ARA} offen sc1
                s_waitcnt vmcnt(0)
                s_branch L_cntpoll
                L_cntok:
                v_cmp_eq_u32 vcc, s{S_ARW}, v24
                s_nop 4
                s_cmp_eq_u64 vcc, exec
                s_cselect_b32 s{S_MODE}, {0 if cfg.get('forceslow') else 1}, 0
                v_mov_b32 v{V_T1}, s{S_MODE}
                v_mov_b32 v{V_T2}, {MODEW}
                s_mov_b64 exec, 1
                ds_write_b32 v{V_T2}, v{V_T1}
                s_mov_b64 exec, -1
                s_waitcnt lgkmcnt(0)
                """)
        pos = marks[m]
        req = last_required(m)
        if m == 0:
            stamp(a, cfg, 2)
            continue
        assert req < pos
        n_after = sum(1 for op in flat[req + 1:pos] if op[0] not in optional)
        a(f"s_waitcnt vmcnt({n_after})")
        if m in (1, 3, 6, 9, 11): stamp(a, cfg, {1: 4, 3: 5, 6: 6, 9: 7, 11: 8}[m])
        a("s_barrier")

EXTRAS = {4: [(1, 0), (1, 1), (1, 2)], 5: [(1, 3), (1, 4), (1, 5)], 6: [(1, 6), (1, 7)],
          10: [(0, 0), (0, 1), (0, 2)], 11: [(0, 3), (0, 4), (0, 5)], 12: [(0, 6), (0, 7)]}

def tap_code(a, n):
    par = 0 if n < 8 else 1
    p = n if n < 8 else n - 8
    bank = XE if par == 0 else XO
    wbuf = WB + 4 * (n % 3)
    wnext = WB + 4 * ((n + 1) % 3)
    prev_extras = len(EXTRAS.get(n - 1, []))
    pre = []
    if n in (4, 9, 14):
        pre = [f"s_add_u32 s{S_SG}, s{S_SG}, {STAGE}",
               f"s_cmp_eq_u32 s{S_SG}, {NSTG*STAGE}",
               f"s_cselect_b32 s{S_SG}, 0, s{S_SG}",
               f"v_add_u32 v{V_W}, s{S_SG}, v{V_WL}"]
    reads = []
    if n == 10: reads.append(f"ds_read_b32 v{V_MODE}, v{V_MW}")
    last_p = 6 if par == 0 else 5
    if p <= last_p:
        m = p + 8
        reads.append(f"ds_read_b128 {vr(bank + 4*(m % 9))}, v{V_XC} offset:{x_imm(par, m)}")
    toff = ((n + 1) % P) * 4096
    reads.append(f"ds_read_b64_tr_b16 {vr(wnext,2)}, v{V_W} offset:{toff}")
    reads.append(f"ds_read_b64_tr_b16 {vr(wnext+2,2)}, v{V_W} offset:{toff + 512}")
    for (epar, m) in EXTRAS.get(n, []):
        if epar == 1: reads.append(f"ds_read_b128 {vr(XO + 4*m)}, v{V_XC} offset:{x_imm(1, m)}")
        else: reads.append(f"ds_read_b128 {vr(XE + 4*m)}, v{V_XN} offset:{x_imm(0, m)}")
    post = []
    if n == 14:
        post = [f"s_add_u32 s{S_K}, s{S_K}, 1",
                f"v_mov_b32 v{V_XC}, v{V_XN}",
                f"s_add_u32 s{S_T1}, s{S_K}, 1",
                f"s_lshr_b32 s{S_T2}, s{S_T1}, 1",
                f"s_mul_i32 s{S_T2}, s{S_T2}, {2*XARR}",
                f"s_and_b32 s{S_T1}, s{S_T1}, 1",
                f"s_lshl_b32 s{S_T1}, s{S_T1}, 6",
                f"s_add_u32 s{S_T1}, s{S_T1}, s{S_T2}",
                f"v_add_u32 v{V_XN}, s{S_T1}, v{V_XL}"]
    for x in pre: a(x)
    a(f"s_waitcnt lgkmcnt({prev_extras})")
    ri = 0
    for t in range(8):
        m = p + t
        a(f"v_mfma_f32_16x16x32_bf16 {vr(ACC + 4*t)}, {vr(wbuf)}, {vr(bank + 4*(m % 9))}, {vr(ACC + 4*t)}")
        if t == 0 and n in (4, 9, 14): a("s_barrier")
        if t < 7 and ri < len(reads):
            a(reads[ri]); ri += 1
        if n == 14 and t >= 2:
            for x in post[(t - 2) * 2:(t - 2) * 2 + 2]: a(x)
        if n == 13 and t == 6: a(f"s_cmp_eq_u32 s{S_K}, 3")
    assert ri == len(reads)

def compute(a, cfg):
    late_params(a)
    a(f"""
    v_and_b32 v{V_T0}, 15, v{V_LANE}             ; i / j
    v_lshrrev_b32 v{V_T1}, 4, v{V_LANE}          ; g
    v_mul_u32_u24 v{V_XL}, 1056, v{V_T0}
    v_lshl_add_u32 v{V_XL}, v{V_T1}, 4, v{V_XL}
    v_lshrrev_b32 v{V_T2}, 2, v{V_T0}
    v_lshl_add_u32 v{V_T2}, v{V_T1}, 3, v{V_T2}
    v_lshlrev_b32 v{V_WL}, 7, v{V_T2}
    v_bfe_u32 v{V_T2}, v{V_T0}, 3, 1
    v_and_b32 v{V_T3}, 1, v{V_T1}
    v_lshl_or_b32 v{V_T2}, v{V_T3}, 1, v{V_T2}
    v_xor_b32 v{V_T2}, s{S_Q}, v{V_T2}
    v_lshl_add_u32 v{V_WL}, v{V_T2}, 5, v{V_WL}
    v_and_b32 v{V_T3}, 3, v{V_T0}
    v_lshl_add_u32 v{V_WL}, v{V_T3}, 3, v{V_WL}
    v_add_u32 v{V_WL}, {WRING}, v{V_WL}
    v_mov_b32 v{V_XC}, v{V_XL}
    v_add_u32 v{V_XN}, 64, v{V_XL}
    v_mov_b32 v{V_W}, v{V_WL}
    v_mov_b32 v{V_MW}, {MODEW}
    s_mov_b32 s{S_SG}, 0
    s_mov_b32 s{S_K}, 0
    v_lshlrev_b32 v{V_T1}, 14, v{V_T1}
    v_lshl_add_u32 v{V_STO}, v{V_T0}, 4, v{V_T1}
    s_lshl_b32 s{S_T0}, s{S_Q}, 16
    v_add_u32 v{V_STO}, s{S_T0}, v{V_STO}
    s_lshl_b32 s{S_T0}, s{S_GRP}, 18
    s_lshl_b32 s{S_T1}, s{S_MEM}, 10
    s_add_u32 s{S_STO}, s{S_T0}, s{S_T1}
    s_lshl_b32 s{S_T1}, s{S_Q}, 2
    s_add_u32 s{S_T1}, s{S_T1}, s{S_MT}
    s_lshl_b32 s{S_T1}, s{S_T1}, 7
    s_lshl_b32 s{S_T2}, s{S_KS}, 2
    s_add_u32 s{S_T1}, s{S_T1}, s{S_T2}
    s_lshl_b32 s{S_T2}, s{S_GRP}, 11
    s_add_u32 s{S_T1}, s{S_T1}, s{S_T2}
    s_add_u32 s{S_FLAG}, s{S_T1}, {FLAGS}
    """)
    for r in range(32): a(f"v_mov_b32 v{ACC + r}, 0")
    setup_lanes(a)
    a("s_waitcnt lgkmcnt(0)")
    a(f"s_add_u32 s{S_E1}, s{S_E1}, 1")
    setup_params(a)
    stamp(a, cfg, 2)
    a("s_waitcnt vmcnt(0)")
    stamp(a, cfg, 3)
    a(f"""
    v_mov_b32 v{V_T0}, {CNTW}
    v_mov_b32 v{V_T1}, 1
    s_mov_b64 exec, 1
    ds_add_u32 v{V_T0}, v{V_T1}
    s_mov_b64 exec, -1
    L_b0spin:
    ds_read_b32 v{V_T1}, v{V_T0}
    s_waitcnt lgkmcnt(0)
    v_readfirstlane_b32 s{S_T0}, v{V_T1}
    s_cmp_ge_u32 s{S_T0}, 4
    s_cbranch_scc0 L_b0spin
    """)
    if cfg.get("ctouch", 2) == 1:
        a(f"""
        v_and_b32 v{V_T1}, 31, v{V_LANE}
        v_lshlrev_b32 v{V_T1}, 7, v{V_T1}
        s_lshl_b32 s{S_T1}, s{S_GRP}, 18
        s_lshl_b32 s{S_T2}, s{S_MEM}, 14
        s_add_u32 s{S_T1}, s{S_T1}, s{S_T2}
        s_lshl_b32 s{S_T2}, s{S_Q}, 12
        s_add_u32 s{S_T1}, s{S_T1}, s{S_T2}
        buffer_load_dword v134, v{V_T1}, s[{S_WS}:{S_WS+3}], s{S_T1} offen sc1
        buffer_load_dword v135, v{FV_ZERO}, s[{S_OUT}:{S_OUT+3}], s{S_OUTO} offen
        """)
    if cfg.get("prio") == 1: a("s_setprio 0")
    stamp(a, cfg, 4)
    stamp(a, cfg, 8, True)
    a(f"ds_read_b64_tr_b16 {vr(WB,2)}, v{V_W}")
    a(f"ds_read_b64_tr_b16 {vr(WB+2,2)}, v{V_W} offset:512")
    for m in range(8):
        a(f"ds_read_b128 {vr(XE + 4*m)}, v{V_XC} offset:{x_imm(0, m)}")
    a("L_kloop:")
    for n in range(14): tap_code(a, n)
    a("s_cbranch_scc1 L_lasttap")
    tap_code(a, 14)
    if cfg.get("stamps") == 2:
        a(f"""
        s_memtime s[84:85]
        s_waitcnt lgkmcnt(0)
        s_cmp_eq_u32 s{S_K}, 1
        s_cselect_b32 s96, s84, s96
        s_cmp_eq_u32 s{S_K}, 2
        s_cselect_b32 s97, s84, s97
        s_cmp_eq_u32 s{S_K}, 3
        s_cselect_b32 s98, s84, s98
        """)
    a("s_branch L_kloop")
    a("L_lasttap:")
    n = 14; p = 6; bank = XO; wbuf = WB + 4 * (n % 3)
    T = XE
    def cvt(s):
        out = []
        for e in range(2):
            t = 2 * s + e
            out.append(f"v_cvt_pk_bf16_f32 v{T + 4*s + 2*e}, v{ACC + 4*t}, v{ACC + 4*t + 1}")
            out.append(f"v_cvt_pk_bf16_f32 v{T + 4*s + 2*e + 1}, v{ACC + 4*t + 2}, v{ACC + 4*t + 3}")
        return out
    def store(s, sc):
        if cfg.get("nopayload"): return "s_nop 0"
        return f"buffer_store_dwordx4 {vr(T + 4*s)}, v{V_STO}, s[{S_WS}:{S_WS+3}], s{S_STO} offen offset:{s*256}{sc}"
    a("s_waitcnt lgkmcnt(0)")
    a(f"v_readfirstlane_b32 s{S_MODE}, v{V_MODE}")
    mf = [f"v_mfma_f32_16x16x32_bf16 {vr(ACC + 4*t)}, {vr(wbuf)}, {vr(bank + 4*((p + t) % 9))}, {vr(ACC + 4*t)}" for t in range(8)]
    a(mf[0]); a("s_nop 0"); a(mf[1]); a("s_nop 0"); a(mf[2]); a(f"s_cmp_eq_u32 s{S_MODE}, 1"); a(mf[3])
    a("s_cbranch_scc1 L_fast")
    for lab, sc in (("", " sc1"), ("L_fast:", cfg.get("fastflavor", ""))):
        if lab: a(lab)
        a(mf[4]); a("s_nop 0"); a(mf[5]); a("s_nop 0"); a(mf[6]); a("s_nop 0")
        c0 = cvt(0); a(c0[0]); a(mf[7])
        for x in c0[1:]: a(x)
        a(store(0, sc))
        for x in cvt(1): a(x)
        a(store(1, sc))
        for x in cvt(2): a(x)
        a(store(2, sc))
        for x in cvt(3): a(x)
        a(store(3, sc))
        stamp(a, cfg, 9, True)
        stamp(a, cfg, 5)
        a("s_waitcnt vmcnt(0)")
        a("s_mov_b64 exec, 1")
        a(f"buffer_store_dword v{FV_E}, v{FV_ZERO}, s[{S_WS}:{S_WS+3}], s{S_FLAG} offen{' sc1' if sc == ' sc1' else ''}")
        a("s_mov_b64 exec, -1")
        stamp(a, cfg, 7)
        if not lab: a("s_branch L_final")

def fold_reduce(a, r, ldsoff):
    a(f"""
    s_nop 1
    v_permlane32_swap_b32 v{r}, v{r+1}
    v_permlane32_swap_b32 v{r+2}, v{r+3}
    v_add_f32 v{r}, v{r}, v{r+1}
    v_add_f32 v{r+2}, v{r+2}, v{r+3}
    s_nop 1
    v_permlane16_swap_b32 v{r}, v{r+2}
    v_add_f32 v{r}, v{r}, v{r+2}
    """)
    for sh in (8, 4, 2, 1):
        a("s_nop 1")
        a(f"v_add_f32_dpp v{r}, v{r}, v{r} row_ror:{sh} row_mask:0xf bank_mask:0xf")
    a(f"""
    s_mov_b32 exec_lo, 0x00010001
    s_mov_b32 exec_hi, 0x00010001
    ds_write_b32 v{FV_RW}, v{r} offset:{ldsoff}
    s_mov_b64 exec, -1
    s_waitcnt lgkmcnt(0)
    s_barrier
    ds_read_b128 {vr(r)}, v{FV_RR} offset:{ldsoff}
    ds_read_b128 {vr(r+4)}, v{FV_RR} offset:{ldsoff + 16}
    s_waitcnt lgkmcnt(0)
    v_pk_add_f32 {vr(r,2)}, {vr(r,2)}, {vr(r+2,2)}
    v_pk_add_f32 {vr(r+4,2)}, {vr(r+4,2)}, {vr(r+6,2)}
    v_pk_add_f32 {vr(r,2)}, {vr(r,2)}, {vr(r+4,2)}
    v_add_f32 v{r}, v{r}, v{r+1}
    """)

def final_phase(a, cfg):
    a("L_final:")
    if cfg.get("poll2"):
        def chk(r):
            return f"""
            v_xor_b32 v{r}, s{S_E1}, v{r}
            v_xor_b32 v{r+1}, s{S_E1}, v{r+1}
            v_xor_b32 v{r+2}, s{S_E1}, v{r+2}
            v_xor_b32 v{r+3}, s{S_E1}, v{r+3}
            v_or3_b32 v{r}, v{r}, v{r+1}, v{r+2}
            v_or_b32 v{r}, v{r}, v{r+3}
            s_add_u32 s{S_K}, s{S_K}, 1
            v_readfirstlane_b32 s{S_T1}, v{r}
            s_cmp_eq_u32 s{S_T1}, 0
            s_cbranch_scc1 L_flagok
            """
        ld = lambda r: f"buffer_load_dwordx4 v[{r}:{r+3}], v{FV_ZERO}, s[{S_WS}:{S_WS+3}], s{S_POLL} offen sc1"
        a(f"s_mov_b32 s{S_K}, 0")
        a(ld(20))
        a("L_flagpoll:")
        a(ld(24)); a("s_waitcnt vmcnt(1)"); a(chk(20))
        a(ld(20)); a("s_waitcnt vmcnt(1)"); a(chk(24))
        a(f"""
        s_cmp_ge_u32 s{S_K}, {POLL_MAX}
        s_cbranch_scc0 L_flagpoll
        L_flagok:
        """)
    else:
        a(f"""
        s_mov_b32 s{S_K}, 0
        L_flagpoll:
        buffer_load_dwordx4 v[20:23], v{FV_ZERO}, s[{S_WS}:{S_WS+3}], s{S_POLL} offen sc1
        s_waitcnt vmcnt(0)
        v_xor_b32 v20, s{S_E1}, v20
        v_xor_b32 v21, s{S_E1}, v21
        v_xor_b32 v22, s{S_E1}, v22
        v_xor_b32 v23, s{S_E1}, v23
        v_or3_b32 v20, v20, v21, v22
        v_or_b32 v20, v20, v23
        s_add_u32 s{S_K}, s{S_K}, 1
        v_readfirstlane_b32 s{S_T1}, v20
        s_cmp_eq_u32 s{S_T1}, 0
        s_cbranch_scc1 L_flagok
        s_cmp_ge_u32 s{S_K}, {POLL_MAX}
        s_cbranch_scc1 L_flagok
        s_branch L_flagpoll
        L_flagok:
        """)
    stamp(a, cfg, 10)
    for ks in range(4):
        a(f"buffer_load_dwordx2 {vr(F_IN + 2*ks, 2)}, v{FV_PAY}, s[{S_WS}:{S_WS+3}], s{S_PAY} offen offset:{ks*1024} sc1")
    a("s_waitcnt vmcnt(2)")
    a(f"v_mfma_f32_16x16x32_bf16 {vr(F_Y)}, {vr(FV_A)}, {vr(F_IN)}, {vr(FV_C)}")
    a("s_waitcnt vmcnt(0)")
    stamp(a, cfg, 11)
    a(f"v_mfma_f32_16x16x32_bf16 {vr(F_Y)}, {vr(FV_A)}, {vr(F_IN+4)}, {vr(F_Y)}")
    if cfg.get("wbl2"):
        mask = {1: 15, 2: 3, 3: 0}[cfg["wbl2"]]
        a(f"""
        s_and_b32 s{S_T0}, s{S_MEM}, {mask}
        s_or_b32 s{S_T0}, s{S_T0}, s{S_WAVE}
        s_cmp_eq_u32 s{S_T0}, 0
        s_cbranch_scc0 L_nowb
        buffer_wbl2 sc1
        L_nowb:
        """)
    R = F_T
    Q = FV_R2
    a("s_nop 7")
    if cfg.get("twopass"):
        for c in range(4): a(f"v_cndmask_b32 v{R+c}, 0, v{F_Y+c}, s[{S_VALID}:{S_VALID+1}]")
        fold_reduce(a, R, 0)
        a(f"v_mul_f32 v{R}, {f2h(1/493)}, v{R}")
        a("s_nop 1")
        for c in range(4):
            a(f"v_subrev_f32_dpp v{F_Y+c}, v{R}, v{F_Y+c} quad_perm:[{c},{c},{c},{c}] row_mask:0xf bank_mask:0xf")
        a(f"s_mov_b64 exec, s[{S_VALID}:{S_VALID+1}]")
        for c in range(4): a(f"v_mul_f32 v{FV_R2+c}, v{F_Y+c}, v{F_Y+c}")
        a("s_mov_b64 exec, -1")
        fold_reduce(a, FV_R2, 128)
        a(f"v_mov_b32 v{R+1}, {f2h(1e-5)}")
        a(f"v_fmac_f32 v{R+1}, {f2h(1/493)}, v{FV_R2}")
    else:
        for c in range(4): a(f"v_cndmask_b32 v{R+c}, 0, v{F_Y+c}, s[{S_VALID}:{S_VALID+1}]")
        for c in range(4): a(f"v_mul_f32 v{Q+c}, v{R+c}, v{R+c}")
        a(f"""
        v_permlane32_swap_b32 v{R}, v{R+1}
        v_permlane32_swap_b32 v{R+2}, v{R+3}
        v_permlane32_swap_b32 v{Q}, v{Q+1}
        v_permlane32_swap_b32 v{Q+2}, v{Q+3}
        v_add_f32 v{R}, v{R}, v{R+1}
        v_add_f32 v{R+2}, v{R+2}, v{R+3}
        v_add_f32 v{Q}, v{Q}, v{Q+1}
        v_add_f32 v{Q+2}, v{Q+2}, v{Q+3}
        s_nop 0
        v_permlane16_swap_b32 v{R}, v{R+2}
        v_permlane16_swap_b32 v{Q}, v{Q+2}
        v_add_f32 v{R}, v{R}, v{R+2}
        v_add_f32 v{Q}, v{Q}, v{Q+2}
        """)
        for sh in (8, 4, 2, 1):
            a("s_nop 0")
            a(f"v_add_f32_dpp v{R}, v{R}, v{R} row_ror:{sh} row_mask:0xf bank_mask:0xf")
            a(f"v_add_f32_dpp v{Q}, v{Q}, v{Q} row_ror:{sh} row_mask:0xf bank_mask:0xf")
        a(f"""
        s_mov_b32 exec_lo, 0x00010001
        s_mov_b32 exec_hi, 0x00010001
        ds_write_b32 v{FV_RW}, v{R}
        ds_write_b32 v{FV_RW}, v{Q} offset:128
        s_mov_b64 exec, -1
        s_waitcnt lgkmcnt(0)
        s_barrier
        ds_read_b128 {vr(R)}, v{FV_RR}
        ds_read_b128 {vr(R+4)}, v{FV_RR} offset:16
        ds_read_b128 {vr(Q)}, v{FV_RR} offset:128
        ds_read_b128 {vr(Q+4)}, v{FV_RR} offset:144
        s_waitcnt lgkmcnt(2)
        v_pk_add_f32 {vr(R,2)}, {vr(R,2)}, {vr(R+2,2)}
        v_pk_add_f32 {vr(R+4,2)}, {vr(R+4,2)}, {vr(R+6,2)}
        s_waitcnt lgkmcnt(0)
        v_pk_add_f32 {vr(Q,2)}, {vr(Q,2)}, {vr(Q+2,2)}
        v_pk_add_f32 {vr(Q+4,2)}, {vr(Q+4,2)}, {vr(Q+6,2)}
        v_pk_add_f32 {vr(R,2)}, {vr(R,2)}, {vr(R+4,2)}
        v_pk_add_f32 {vr(Q,2)}, {vr(Q,2)}, {vr(Q+4,2)}
        v_add_f32 v{R}, v{R}, v{R+1}
        v_add_f32 v{Q}, v{Q}, v{Q+1}
        v_mul_f32 v{R}, {f2h(1/493)}, v{R}                 ; mean
        v_mul_f32 v{Q}, {f2h(1/493)}, v{Q}                 ; E[y^2]
        v_mul_f32 v{R+2}, v{R}, v{R}                       ; mean^2
        v_sub_f32 v{Q}, v{Q}, v{R+2}                       ; variance
        v_mul_f32 v{R+3}, {f2h(256.0)}, v{Q}
        v_cmp_gt_f32 vcc, v{R+2}, v{R+3}
        """)
        for c in range(4):
            a(f"v_subrev_f32_dpp v{F_Y+c}, v{R}, v{F_Y+c} quad_perm:[{c},{c},{c},{c}] row_mask:0xf bank_mask:0xf")
        a(f"""
        s_cmp_lg_u64 vcc, 0
        s_cbranch_scc0 L_varok
        """)
        for c in range(4): a(f"v_mul_f32 v{Q+c}, v{F_Y+c}, v{F_Y+c}")
        for c in range(4): a(f"v_cndmask_b32 v{Q+c}, 0, v{Q+c}, s[{S_VALID}:{S_VALID+1}]")
        fold_reduce(a, Q, 384)
        a(f"v_mul_f32 v{Q}, {f2h(1/493)}, v{Q}")
        a("L_varok:")
        a(f"v_add_f32 v{R+1}, {f2h(1e-5)}, v{Q}")
    a(f"v_rsq_f32 v{R+1}, v{R+1}")
    a("s_nop 0")
    a(f"v_mul_f32 v{R+1}, v{R+1}, v{FV_GAM}")
    a("s_nop 1")
    for c in range(4):
        a(f"v_fmac_f32_dpp v{FV_BETA+c}, v{R+1}, v{F_Y+c} quad_perm:[{c},{c},{c},{c}] row_mask:0xf bank_mask:0xf")
    X = FV_BETA
    c1 = 2.302208198144325
    a(f"s_mov_b32 s{S_T0}, {f2h(c1*0.044715)}")
    a(f"v_mov_b32 v{R}, {f2h(c1)}")
    Z = R + 2
    if cfg.get("pkgelu"):
        a(f"v_mov_b32 v{R+1}, v{R}")
        a(f"v_mov_b32 v{R+6}, s{S_T0}")
        a(f"v_mov_b32 v{R+7}, s{S_T0}")
        for c in (0, 2): a(f"v_pk_mul_f32 {vr(Z+c,2)}, {vr(X+c,2)}, {vr(X+c,2)}")
        for c in (0, 2): a(f"v_pk_fma_f32 {vr(Z+c,2)}, {vr(Z+c,2)}, {vr(R+6,2)}, {vr(R,2)}")
        for c in (0, 2): a(f"v_pk_mul_f32 {vr(Z+c,2)}, {vr(X+c,2)}, {vr(Z+c,2)}")
        for c in range(4): a(f"v_exp_f32 v{Z+c}, -v{Z+c}")
        a("s_nop 0")
        for c in range(4): a(f"v_add_f32 v{Z+c}, 1.0, v{Z+c}")
        for c in range(4): a(f"v_rcp_f32 v{Z+c}, v{Z+c}")
        a("s_nop 0")
        for c in (0, 2): a(f"v_pk_mul_f32 {vr(X+c,2)}, {vr(X+c,2)}, {vr(Z+c,2)}")
    else:
        for c in range(4): a(f"v_mul_f32 v{Z+c}, v{X+c}, v{X+c}")
        for c in range(4): a(f"v_fma_f32 v{Z+c}, v{Z+c}, s{S_T0}, v{R}")
        for c in range(4): a(f"v_mul_f32 v{Z+c}, v{X+c}, v{Z+c}")
        for c in range(4): a(f"v_exp_f32 v{Z+c}, -v{Z+c}")
        a("s_nop 0")
        for c in range(4): a(f"v_add_f32 v{Z+c}, 1.0, v{Z+c}")
        for c in range(4): a(f"v_rcp_f32 v{Z+c}, v{Z+c}")
        a("s_nop 0")
        for c in range(4): a(f"v_mul_f32 v{X+c}, v{X+c}, v{Z+c}")
    a(f"v_cvt_pk_bf16_f32 v{Z}, v{X}, v{X+1}")
    a(f"v_cvt_pk_bf16_f32 v{Z+1}, v{X+2}, v{X+3}")
    a(f"s_mov_b64 exec, s[{S_VALID}:{S_VALID+1}]")
    a(f"buffer_store_dwordx2 {vr(Z,2)}, v{FV_OUT}, s[{S_OUT}:{S_OUT+3}], s{S_OUTO} offen")
    a(f"""
    s_or_b32 s{S_T0}, s{S_MEM}, s{S_WAVE}
    s_cmp_eq_u32 s{S_T0}, 0
    s_cbranch_scc0 L_noepoch
    s_lshl_b32 s{S_T1}, s{S_GRP}, 7
    s_add_u32 s{S_T1}, s{S_T1}, {EPOCH}
    s_mov_b64 exec, 1
    buffer_store_dword v{FV_E}, v{FV_ZERO}, s[{S_WS}:{S_WS+3}], s{S_T1} offen
    L_noepoch:
    """)
    stamp(a, cfg, 12)
    if cfg.get("stamps"): a("s_waitcnt vmcnt(0)")
    stamp(a, cfg, 13)
    stamp_flush(a, cfg)

HEADER = open("cdna_kernels/" + NAME + ".s.ref").read().split("; Override")[0]

def gen(cfg):
    a = A()
    out = HEADER
    out += "; Fused kernel: implicit-GEMM conv (split-K 4 over channels) -> in-launch all-to-all of bf16 partials -> GroupNorm over time -> GELU\n"
    out += f"; @launch grid=(256,1,1) block=(512,1,1) lds={LDS_BYTES}\n"
    a('.amdgcn_target "amdgcn-amd-amdhsa--gfx950"')
    a(".text")
    a(f".globl {KNAME}\n.p2align 8\n.type {KNAME},@function\n{KNAME}:")
    prologue(a, cfg)
    a(f"s_cmp_ge_u32 s{S_WAVE}, 4")
    a("s_cbranch_scc1 L_loader")
    compute(a, cfg)
    final_phase(a, cfg)
    if cfg.get("probe"):
        idx = cfg["probe"]
        a(f"""
        s_cmp_ge_u32 s{S_WAVE}, 4
        s_cbranch_scc1 L_noprobe
        {"s_sub_u32 s84, s95, s94" if idx == 89 else f"s_sub_u32 s84, s{86+idx}, s86"}
        {"s_lshr_b32 s84, s84, 2" if idx == 89 else "s_mul_i32 s84, s84, 4"}
        s_memrealtime s[96:97]
        s_waitcnt lgkmcnt(0)
        s_add_u32 s84, s84, s96
        L_probe:
        s_memrealtime s[96:97]
        s_waitcnt lgkmcnt(0)
        s_sub_u32 s96, s96, s84
        s_cmp_lt_i32 s96, 0
        s_cbranch_scc1 L_probe
        L_noprobe:
        """)
    if cfg.get("pad"):
        a(f"""
        s_waitcnt vmcnt(0) lgkmcnt(0)
        L_pad:
        s_memrealtime s[96:97]
        s_waitcnt lgkmcnt(0)
        s_sub_u32 s96, s96, s98
        s_cmp_lt_u32 s96, {cfg['pad']}
        s_cbranch_scc1 L_pad
        """)
    a("s_endpgm")
    a("L_loader:")
    loader(a, cfg)
    stamp(a, cfg, 9)
    a("s_branch L_final")
    a("L_end:")
    a("s_endpgm")
    out += a.text()
    out += f""".section .rodata,"a"
.p2align 6
.amdhsa_kernel {KNAME}
  .amdhsa_next_free_vgpr {NVGPR}
  .amdhsa_next_free_sgpr 102
  .amdhsa_accum_offset {NVGPR}
  .amdhsa_group_segment_fixed_size 0
  .amdhsa_kernarg_size 64
  .amdhsa_user_sgpr_count 2
  .amdhsa_user_sgpr_kernarg_segment_ptr 1
  .amdhsa_system_sgpr_workgroup_id_x 1
.end_amdhsa_kernel
"""
    return out

if __name__ == "__main__":
    ap = argparse.ArgumentParser()
    ap.add_argument("-o", default="/dev/stdout")
    ap.add_argument("--stamps", type=int, nargs="?", const=1, default=0)
    ap.add_argument("--map", type=int, default=1)
    ap.add_argument("--forceslow", action="store_true")
    ap.add_argument("--pad", type=int, default=0)
    ap.add_argument("--probe", type=int, default=0)
    ap.add_argument("--fastflavor", type=str, default="")
    ap.add_argument("--nopayload", action="store_true")
    ap.add_argument("--wbl2", type=int, default=0)
    ap.add_argument("--mallw", type=int, default=2)
    ap.add_argument("--mallx", type=int, default=1)
    ap.add_argument("--mallpos", type=int, default=2)
    ap.add_argument("--xsched", type=int, default=4)
    ap.add_argument("--st3late", type=int, default=0)
    ap.add_argument("--ctouch", type=int, default=2)
    ap.add_argument("--twopass", type=int, default=0)
    ap.add_argument("--prio", type=int, default=0)
    ap.add_argument("--nocodepf", type=int, default=0)
    ap.add_argument("--pfd", type=int, default=0)
    ap.add_argument("--pfmask", type=int, default=7)
    ap.add_argument("--poll2", type=int, default=1)
    ap.add_argument("--pkgelu", type=int, default=1)
    ap.add_argument("--ldelay", type=int, default=0)
    ap.add_argument("--premall", type=int, default=4)
    args = ap.parse_args()
    if args.probe: args.stamps = 1
    cfg = vars(args)
    open(args.o, "w").write(gen(cfg))
```

```python
import sys, argparse, struct

NAME = "standalone__self_sup_conv_stem_hubert__speech"
KNAME = NAME + "_kernel"

XARR = 17 * 1056
WRING = 4 * XARR
P = 5
NSTG = 4
STAGE = P * 4096
RED = WRING + NSTG * STAGE
MODEW = RED + 256
CNTW = RED + 260
LDS_BYTES = RED + 512
TAPS = [0, 2, 4, 6, 8, 10, 12, 14, 1, 3, 5, 7, 9, 11, 13]
INBOX_GROUP = 16 * 16 * 1024
FLAGS = 16 * INBOX_GROUP
EPOCH = FLAGS + 16 * 2048
ARRIVE = EPOCH + 16 * 128
STAMPS = 8 << 20
POLL_MAX = 200000

def f2h(x): return hex(struct.unpack('<I', struct.pack('<f', x))[0])

class A:
    def __init__(self): self.l = []
    def __call__(self, s):
        for x in s.strip("\n").split("\n"):
            x = x.strip()
            if x: self.l.append(x)
    def text(self):
        out = []
        for x in self.l:
            if x.endswith(":") or x.startswith(".") or x.startswith(";"): out.append(x)
            else: out.append("    " + x)
        return "\n".join(out) + "\n"

S_RAW = 4
S_POLL, S_PAY, S_FLAG = 3, 10, 11
S_X, S_W, S_WS, S_OUT = 12, 16, 20, 48
S_OUTO, S_STO = 24, 25
S_BT, S_NG, S_MT, S_KS, S_MEM, S_GRP, S_WAVE, S_Q = 26, 27, 28, 29, 30, 31, 32, 33
S_XO, S_XQ, S_XM, S_WO, S_WM = 34, 35, 36, 37, 38
S_COL2 = 39
S_T0, S_T1, S_T2, S_T3 = 40, 41, 42, 43
S_SG, S_K, S_MODE, S_XCC = 44, 45, 46, 47
S_E1, S_ARW, S_ARA = 52, 53, 54
S_KA = 64
S_VALID = 80
V_LANE, V_OFFX, V_OFFW = 1, 2, 3
V_XL, V_WL, V_XC, V_XN, V_W, V_MODE = 4, 5, 6, 7, 8, 9
V_T0, V_T1, V_T2, V_T3 = 10, 11, 12, 13
V_STO, V_MW = 14, 15
ACC = 16
XE = 48
XO = 84
WB = 120
V_PF0, V_PF1 = 132, 133
FV_A, FV_C, FV_BETA, FV_R2 = 136, 140, 144, 148
FV_GAM, FV_PAY, FV_ZERO, FV_OUT, FV_RW, FV_RR, FV_L, FV_E = 156, 157, 158, 159, 160, 161, 162, 163
FT = 164
FV_K1, FV_K2, FV_ONE = 168, 170, 172
NVGPR = 176
F_Y, F_IN, F_T = 16, 40, 28

def stamp(a, cfg, idx, clk=False):
    if not cfg.get("stamps"): return
    if cfg.get("stamps") == 2 and idx >= 10: return
    a(f"{'s_memtime' if clk else 's_memrealtime'} s[84:85]")
    a("s_waitcnt lgkmcnt(0)")
    a(f"s_mov_b32 s{86+idx}, s84")
def stamp_flush(a, cfg):
    if not cfg.get("stamps") or cfg.get("probe"): return
    a("s_mov_b64 exec, -1")
    a(f"s_lshl_b32 s84, s2, 3")
    a(f"s_add_u32 s84, s84, s{S_WAVE}")
    a(f"s_lshl_b32 s84, s84, 6")
    a(f"s_add_u32 s84, s84, {STAMPS}")
    a(f"v_mov_b32 v0, 0")
    for i in range(16): a(f"v_mov_b32 v{100+i}, s{86+i}")
    for i in range(4):
        a(f"buffer_store_dwordx4 v[{100+4*i}:{103+4*i}], v0, s[{S_WS}:{S_WS+3}], s84 offen offset:{16*i}")

def vr(b, n=4): return f"v[{b}:{b+n-1}]"

def srd(a, base, ptr, nbytes):
    a(f"s_mov_b32 s{base}, s{ptr}")
    a(f"s_and_b32 s{base+1}, s{ptr+1}, 0xffff")
    if isinstance(nbytes, int): a(f"s_mov_b32 s{base+2}, {nbytes}")
    else: a(nbytes)
    a(f"s_mov_b32 s{base+3}, 0x20000")

def dma_x(a, half, par, i):
    arr = (2 * half + par) * XARR
    if i < 4:
        a(f"s_add_u32 m0, s{S_XM}, {arr + i * 4 * 1056}")
        a(f"s_add_u32 s{S_T0}, s{S_XQ}, {i * 65536 + par * 1024 + half * 128}")
    else:
        a(f"s_mov_b32 m0, {arr + 16 * 1056}")
        a(f"s_add_u32 s{S_T0}, s{S_XO}, {16 * 16384 + par * 1024 + half * 128}")
    a(f"buffer_load_dwordx4 v{V_OFFX}, s[{S_X}:{S_X+3}], s{S_T0} offen lds")

def dma_x16(a, half, par):
    arr = 2 * half + par
    lab = f"L_skipx{arr}"
    a(f"s_cmp_eq_u32 s{S_Q}, {arr}")
    a(f"s_cbranch_scc0 {lab}")
    dma_x(a, half, par, 4)
    a(f"{lab}:")

def dma_w(a, n):
    k, nl = divmod(n, 15)
    tap = TAPS[nl]
    slot = ((n // P) % NSTG) * STAGE + (n % P) * 4096
    a(f"s_add_u32 m0, s{S_WM}, {slot}")
    a(f"s_add_u32 s{S_T0}, s{S_WO}, {(tap * 512 + k * 32) * 1024}")
    a(f"buffer_load_dwordx4 v{V_OFFW}, s[{S_W}:{S_W+3}], s{S_T0} offen lds")

def x_imm(par, m): return par * XARR + (m >> 3) * 1056 + (m & 7) * 128

def prologue(a, cfg):
    a(f"""
    s_cmp_ge_u32 s2, 256
    s_cbranch_scc1 L_end
    """)
    stamp(a, cfg, 0)
    if cfg.get("pad"): a("s_memrealtime s[98:99]")
    a(f"s_load_dwordx16 s[{S_KA}:{S_KA+15}], s[0:1], 0")
    if not cfg.get("nocodepf"):
        a(f"""
        s_getpc_b64 s[4:5]
        L_pc:
        v_lshrrev_b32 v{V_PF0}, 6, v0
        v_and_b32 v{V_PF1}, 7, v0
        v_lshl_add_u32 v{V_PF0}, v{V_PF0}, 3, v{V_PF1}
        v_lshlrev_b32 v{V_PF0}, 7, v{V_PF0}
        s_sub_u32 s4, s4, L_pc-{KNAME}
        s_subb_u32 s5, s5, 0
        v_min_u32 v{V_PF0}, L_end-{KNAME}, v{V_PF0}
        global_load_dword v{V_PF1}, v{V_PF0}, s[4:5]
        """)
    a(f"""
    v_mov_b32 v{V_T0}, {CNTW}
    v_mov_b32 v{V_T1}, 0
    ds_write_b32 v{V_T0}, v{V_T1}
    """)
    if cfg.get("map", 1) == 1:
        a(f"""
        s_and_b32 s24, s2, 7
        s_lshr_b32 s25, s2, 3
        s_and_b32 s{S_BT}, s24, 1
        s_and_b32 s{S_NG}, s24, 6
        s_lshr_b32 s{S_T0}, s25, 4
        s_add_u32 s{S_NG}, s{S_NG}, s{S_T0}
        """)
    elif cfg.get("map") == 3:
        a(f"""
        s_lshr_b32 s24, s2, 3
        s_and_b32 s{S_NG}, s2, 4
        s_and_b32 s{S_T0}, s24, 3
        s_add_u32 s{S_NG}, s{S_NG}, s{S_T0}
        s_lshr_b32 s{S_BT}, s24, 4
        s_and_b32 s25, s24, 12
        s_and_b32 s{S_T0}, s2, 3
        s_or_b32 s25, s25, s{S_T0}
        """)
    else:
        a(f"""
        s_lshr_b32 s24, s2, 4
        s_and_b32 s25, s2, 15
        s_and_b32 s{S_BT}, s24, 1
        s_lshr_b32 s{S_NG}, s24, 1
        """)
    a(f"""
    s_lshr_b32 s{S_MT}, s25, 2
    s_and_b32 s{S_MT}, s{S_MT}, 3
    s_and_b32 s{S_KS}, s25, 3
    s_and_b32 s{S_MEM}, s25, 15
    s_lshl_b32 s{S_GRP}, s{S_BT}, 3
    s_add_u32 s{S_GRP}, s{S_GRP}, s{S_NG}
    v_lshrrev_b32 v{V_T0}, 6, v0
    v_and_b32 v{V_LANE}, 63, v0
    v_readfirstlane_b32 s{S_WAVE}, v{V_T0}
    v_lshrrev_b32 v{V_T0}, 3, v{V_LANE}          ; lane>>3
    v_and_b32 v{V_T1}, 7, v{V_LANE}              ; lane&7
    v_lshlrev_b32 v{V_OFFX}, 11, v{V_T0}
    v_lshl_add_u32 v{V_OFFX}, v{V_T1}, 4, v{V_OFFX}
    s_and_b32 s{S_Q}, s{S_WAVE}, 3
    s_mul_i32 s{S_XO}, s{S_BT}, 1024000
    s_add_u32 s{S_T2}, s{S_XO}, 1024000
    s_lshl_b32 s{S_T0}, s{S_MT}, 18
    s_add_u32 s{S_XO}, s{S_XO}, s{S_T0}
    s_lshl_b32 s{S_T0}, s{S_KS}, 8
    s_add_u32 s{S_XO}, s{S_XO}, s{S_T0}
    s_lshl_b32 s{S_T0}, s{S_Q}, 14
    s_add_u32 s{S_XQ}, s{S_XO}, s{S_T0}
    s_mul_i32 s{S_XM}, s{S_Q}, 1056
    s_lshl_b32 s{S_WO}, s{S_KS}, 17
    s_lshl_b32 s{S_T0}, s{S_Q}, 13
    s_add_u32 s{S_WO}, s{S_WO}, s{S_T0}
    s_lshl_b32 s{S_T0}, s{S_NG}, 7
    s_add_u32 s{S_WO}, s{S_WO}, s{S_T0}
    s_lshl_b32 s{S_WM}, s{S_Q}, 10
    s_add_u32 s{S_WM}, s{S_WM}, {WRING}
    s_lshl_b32 s{S_T1}, s{S_MEM}, 3
    s_add_u32 s{S_COL2}, s{S_T0}, s{S_T1}
    v_bfe_u32 v{V_T2}, v{V_LANE}, 4, 1
    s_and_b32 s{S_T1}, s{S_Q}, 1
    s_lshl_b32 s{S_T1}, s{S_T1}, 1
    v_or_b32 v{V_T2}, s{S_T1}, v{V_T2}
    v_lshrrev_b32 v{V_T3}, 1, v{V_T1}
    v_xor_b32 v{V_T2}, v{V_T3}, v{V_T2}
    v_lshlrev_b32 v{V_OFFW}, 10, v{V_T0}
    v_lshl_add_u32 v{V_OFFW}, v{V_T2}, 5, v{V_OFFW}
    v_and_b32 v{V_T3}, 1, v{V_LANE}
    v_lshl_add_u32 v{V_OFFW}, v{V_T3}, 4, v{V_OFFW}
    s_lshr_b32 s55, s{S_WAVE}, 2
    s_mul_i32 s56, s55, {XARR}
    s_add_u32 s56, s56, s{S_XM}
    s_lshl_b32 s57, s55, 10
    s_add_u32 s57, s57, s{S_XQ}
    s_mul_i32 s58, s55, {10 * 524288}
    s_add_u32 s58, s58, s{S_WO}
    s_mul_i32 s59, s55, {5 * 524288}
    s_sub_u32 s59, s{S_WO}, s59
    s_mul_i32 s60, s55, {STAGE}
    s_add_u32 s60, s60, s{S_WM}
    s_mov_b32 s{S_X+2}, s{S_T2}
    s_mov_b32 s{S_X+3}, 0x20000
    s_mov_b32 s{S_W+2}, 7864320
    s_mov_b32 s{S_W+3}, 0x20000
    s_waitcnt lgkmcnt(0)
    s_barrier
    s_mov_b32 s{S_X}, s{S_KA}
    s_and_b32 s{S_X+1}, s{S_KA+1}, 0xffff
    s_mov_b32 s{S_W}, s{S_KA+2}
    s_and_b32 s{S_W+1}, s{S_KA+3}, 0xffff
    """)
    stamp(a, cfg, 1)
    if cfg.get("prio"):
        a(f"""
        s_cmp_lt_u32 s{S_WAVE}, 4
        s_cbranch_scc0 L_noprio
        s_setprio 2
        L_noprio:
        """)
    if cfg.get("ldelay"):
        a(f"""
        s_cmp_ge_u32 s{S_WAVE}, 4
        s_cbranch_scc0 L_nodelay
        """)
        late_params(a)
        for r in range(cfg["ldelay"]): a("s_nop 7")
        a("L_nodelay:")
    if cfg.get("premall"):
        nst = cfg["premall"]
        a(f"""
        s_cmp_eq_u32 s{S_WAVE}, 7
        s_cbranch_scc0 L_nopremall
        v_lshrrev_b32 v20, 1, v{V_LANE}
        v_min_u32 v20, {5*nst//2 - 1}, v20
        s_mul_i32 s{S_T0}, s2, {5*nst//2}
        v_add_u32 v20, s{S_T0}, v20
        v_lshrrev_b32 v21, 7, v20
        v_and_b32 v20, 127, v20
        v_lshrrev_b32 v22, 5, v20
        v_and_b32 v20, 31, v20
        v_lshlrev_b32 v20, 10, v20
        v_lshl_or_b32 v20, v22, 17, v20
        v_cmp_le_u32 vcc, 15, v21
        v_subrev_u32 v22, 15, v21
        s_nop 0
        v_cndmask_b32 v22, v21, v22, vcc             ; nl
        v_cndmask_b32 v23, 0, 1, vcc                 ; k-step
        v_lshl_or_b32 v20, v23, 15, v20
        v_lshlrev_b32 v23, 1, v22
        v_cmp_gt_u32 vcc, 8, v22
        v_subrev_u32 v21, 15, v23
        s_nop 0
        v_cndmask_b32 v23, v21, v23, vcc             ; tap
        v_lshl_or_b32 v20, v23, 19, v20
        v_and_b32 v21, 1, v{V_LANE}
        v_lshl_or_b32 v20, v21, 6, v20
        s_movk_i32 s{S_T0}, 384
        buffer_load_dword v134, v20, s[{S_W}:{S_W+3}], s{S_T0} offen
        L_nopremall:
        """)
    for i in range(4):
        a(f"s_add_u32 m0, s56, {i * 4 * 1056}")
        a(f"s_add_u32 s{S_T0}, s57, {i * 65536}")
        a(f"buffer_load_dwordx4 v{V_OFFX}, s[{S_X}:{S_X+3}], s{S_T0} offen lds")
    a(f"""
    s_cmp_eq_u32 s{S_Q}, s55
    s_cbranch_scc0 L_skipx01
    s_mul_i32 s{S_T1}, s55, {XARR}
    s_add_u32 m0, s{S_T1}, {16 * 1056}
    s_lshl_b32 s{S_T1}, s55, 10
    s_add_u32 s{S_T1}, s{S_T1}, s{S_XO}
    s_add_u32 s{S_T0}, s{S_T1}, {16 * 16384}
    buffer_load_dwordx4 v{V_OFFX}, s[{S_X}:{S_X+3}], s{S_T0} offen lds
    L_skipx01:
    """)
    for j in range(5):
        a(f"s_add_u32 m0, s60, {j * 4096}")
        a(f"s_add_u32 s{S_T0}, s{58 if j < 3 else 59}, {TAPS[j] * 524288}")
        a(f"buffer_load_dwordx4 v{V_OFFW}, s[{S_W}:{S_W+3}], s{S_T0} offen lds")

def late_params(a):
    srd(a, S_WS, S_KA + 14, 268435456)
    srd(a, S_OUT, S_KA + 10, 2 * 493 * 512 * 2)
    a(f"s_load_dwordx2 s[{S_RAW}:{S_RAW+1}], s[{S_KA+4}:{S_KA+5}], s{S_COL2}")
    a(f"s_load_dwordx2 s[{S_RAW+2}:{S_RAW+3}], s[{S_KA+6}:{S_KA+7}], s{S_COL2}")
    a(f"s_load_dwordx2 s[{S_RAW+4}:{S_RAW+5}], s[{S_KA+8}:{S_KA+9}], s{S_COL2}")
    a(f"s_lshl_b32 s{S_T1}, s{S_GRP}, 7")
    a(f"s_add_u32 s{S_T1}, s{S_T1}, {EPOCH}")
    a(f"s_load_dword s{S_E1}, s[{S_KA+14}:{S_KA+15}], s{S_T1}")

def mall_prefetch(a, cfg):
    a(f"""
    s_cmp_ge_u32 s{S_Q}, 2
    s_cbranch_scc1 L_mallx
    v_lshrrev_b32 v20, 1, v{V_LANE}
    v_min_u32 v20, 29, v20
    v_lshlrev_b32 v20, 10, v20
    v_and_b32 v21, 1, v{V_LANE}
    v_lshl_or_b32 v20, v21, 6, v20
    s_mul_i32 s{S_T0}, s2, 30720
    s_lshl_b32 s{S_T1}, s{S_Q}, 9
    s_add_u32 s{S_T0}, s{S_T0}, s{S_T1}
    s_add_u32 s{S_T0}, s{S_T0}, 384
    buffer_load_dword v134, v20, s[{S_W}:{S_W+3}], s{S_T0} offen
    s_branch L_nomallpf
    L_mallx:
    v_bfe_u32 v20, v{V_LANE}, 1, 3
    s_lshl_b32 s{S_T0}, s2, 3
    v_add_u32 v20, s{S_T0}, v20
    v_min_u32 v20, 1999, v20
    v_lshlrev_b32 v20, 10, v20
    v_and_b32 v21, 1, v{V_LANE}
    v_lshl_or_b32 v20, v21, 6, v20
    s_and_b32 s{S_T0}, s{S_Q}, 1
    s_lshl_b32 s{S_T0}, s{S_T0}, 9
    s_add_u32 s{S_T0}, s{S_T0}, 384
    v_add_u32 v20, s{S_T0}, v20
    global_load_dword v134, v20, s[{S_KA}:{S_KA+1}]
    L_nomallpf:
    """)

def setup_lanes(a):
    T = FT
    a(f"""
    v_and_b32 v{T}, 3, v{V_LANE}
    v_lshlrev_b32 v{FV_RR}, 5, v{T}
    v_add_u32 v{FV_RR}, {RED}, v{FV_RR}
    v_bfe_u32 v{T}, v{V_LANE}, 2, 2
    v_lshrrev_b32 v{T+1}, 4, v{V_LANE}
    v_cmp_eq_u32 vcc, v{T}, v{T+1}
    v_and_b32 v{T+2}, 1, v{V_LANE}
    v_lshlrev_b32 v{T+2}, 4, v{T+2}
    v_mov_b32 v{T+3}, 0x3f80
    v_lshlrev_b32 v{T+3}, v{T+2}, v{T+3}
    v_cndmask_b32 v{T+3}, 0, v{T+3}, vcc
    v_bfe_u32 v{T}, v{V_LANE}, 1, 1
    v_cmp_eq_u32 vcc, 0, v{T}
    v_mov_b32 v{FV_ZERO}, 0
    v_lshlrev_b32 v{FV_PAY}, 3, v{V_LANE}
    v_cndmask_b32 v{FV_A}, 0, v{T+3}, vcc
    v_cndmask_b32 v{FV_A+1}, v{T+3}, 0, vcc
    v_mov_b32 v{FV_A+2}, v{FV_A}
    v_mov_b32 v{FV_A+3}, v{FV_A+1}
    v_lshrrev_b32 v{T}, 4, v{V_LANE}
    v_and_b32 v{T+1}, 1, v{T}
    v_lshrrev_b32 v{T}, 1, v{T}
    v_lshl_or_b32 v{T}, v{T+1}, 1, v{T}
    v_lshlrev_b32 v{T}, 5, v{T}
    s_lshl_b32 s{S_T0}, s{S_WAVE}, 2
    s_add_u32 s{S_T0}, s{S_T0}, {RED}
    v_add_u32 v{FV_RW}, s{S_T0}, v{T}
    s_lshr_b32 s{S_T1}, s{S_WAVE}, 1
    s_and_b32 s{S_T2}, s{S_MEM}, 12
    s_add_u32 s{S_T2}, s{S_T2}, s{S_T1}
    s_lshl_b32 s{S_T2}, s{S_T2}, 7
    s_lshl_b32 s{S_T3}, s{S_GRP}, 11
    s_add_u32 s{S_T2}, s{S_T2}, s{S_T3}
    s_add_u32 s{S_POLL}, s{S_T2}, {FLAGS}
    s_lshl_b32 s{S_T0}, s{S_GRP}, 18
    s_lshl_b32 s{S_T2}, s{S_MEM}, 14
    s_add_u32 s{S_T0}, s{S_T0}, s{S_T2}
    s_lshl_b32 s{S_T2}, s{S_T1}, 12
    s_add_u32 s{S_T0}, s{S_T0}, s{S_T2}
    s_and_b32 s{S_T2}, s{S_WAVE}, 1
    s_lshl_b32 s{S_T3}, s{S_T2}, 9
    s_add_u32 s{S_PAY}, s{S_T0}, s{S_T3}
    s_lshl_b32 s{S_T1}, s{S_T1}, 7
    s_lshl_b32 s{S_T2}, s{S_T2}, 2
    s_add_u32 s{S_T1}, s{S_T1}, s{S_T2}
    v_bfe_u32 v{FV_L}, v{V_LANE}, 1, 4
    v_lshlrev_b32 v{FV_L}, 3, v{FV_L}
    v_lshrrev_b32 v{T+2}, 5, v{V_LANE}
    v_lshl_add_u32 v{FV_L}, v{T+2}, 1, v{FV_L}
    v_and_b32 v{T+2}, 1, v{V_LANE}
    v_add3_u32 v{FV_L}, v{FV_L}, v{T+2}, s{S_T1}
    s_movk_i32 s{S_T3}, 493
    v_cmp_gt_u32 s[{S_VALID}:{S_VALID+1}], s{S_T3}, v{FV_L}
    v_lshlrev_b32 v{FV_OUT}, 10, v{FV_L}
    s_mul_i32 s{S_OUTO}, s{S_BT}, {493*1024}
    s_add_u32 s{S_OUTO}, s{S_OUTO}, s{S_COL2}
    """)
    c1 = 2.302208198144325
    for r in range(2):
        a(f"v_mov_b32 v{FV_K1+r}, {f2h(c1)}")
        a(f"v_mov_b32 v{FV_K2+r}, {f2h(c1*0.044715)}")
        a(f"v_mov_b32 v{FV_ONE+r}, 1.0")

def setup_params(a):
    T = FT
    for c in range(4):
        src = S_RAW + (c >> 1)
        a(f"s_lshl_b32 s{S_T0}, s{src}, 16" if c % 2 == 0 else f"s_and_b32 s{S_T0}, s{src}, 0xffff0000")
        srcb = S_RAW + 4 + (c >> 1)
        a(f"s_lshl_b32 s{S_T1}, s{srcb}, 16" if c % 2 == 0 else f"s_and_b32 s{S_T1}, s{srcb}, 0xffff0000")
        a(f"v_mov_b32 v{FV_C+c}, s{S_T0}")
        a(f"v_mov_b32 v{FV_BETA+c}, s{S_T1}")
    a(f"""
    v_and_b32 v{T}, 3, v{V_LANE}
    v_mov_b32 v{T+1}, s{S_RAW+2}
    v_mov_b32 v{T+2}, s{S_RAW+3}
    v_cmp_gt_u32 vcc, 2, v{T}
    v_and_b32 v{T+3}, 1, v{V_LANE}
    v_lshlrev_b32 v{T+3}, 4, v{T+3}
    v_cndmask_b32 v{T+1}, v{T+2}, v{T+1}, vcc
    v_sub_u32 v{T+3}, 16, v{T+3}
    v_lshlrev_b32 v{T+1}, v{T+3}, v{T+1}
    v_and_b32 v{FV_GAM}, 0xffff0000, v{T+1}
    v_mov_b32 v{FV_E}, s{S_E1}
    """)

def loader(a, cfg):
    def xop(half, par, i): return ("x", half, par, i) if i < 4 else ("x16", half, par)
    def st(s): return [("w", n) for n in range(s * P, (s + 1) * P)]
    XS = cfg.get("xsched", 0)
    E = [xop(1, 0, i) for i in range(5)]; O = [xop(1, 1, i) for i in range(5)]
    if XS == 0:   xs = {2: ([], E[0:2]), 3: ([], E[2:4]), 4: (E[4:5], O[0:1]), 5: ([], O[1:3]), 6: (O[3:5], [])}
    elif XS == 1: xs = {1: ([], E[0:3]), 2: ([], E[3:5] + O[0:1]), 3: ([], O[1:3]), 4: ([], O[3:5])}
    elif XS == 2: xs = {1: ([], E + O)}
    elif XS == 3: xs = {1: ([], E), 2: ([], O[0:2]), 3: ([], O[2:4]), 4: ([], O[4:5])}
    elif XS == 4: xs = {2: ([], E), 3: ([], O)}
    elif XS == 5: xs = {2: ([], E[0:1]), 3: ([], E[1:3]), 4: (E[3:5], []), 5: ([], O[0:2]), 6: (O[2:5], [])}
    elif XS == 6: xs = {3: ([], E[0:3]), 4: (E[3:5], O[0:1]), 5: ([], O[1:3]), 6: (O[3:5], [])}
    def ph(m, mid):
        pre, post = xs.get(m, ([], []))
        return pre + mid + post
    MP = cfg.get("mallpos", 2)
    def mp(m): return [("mallpf",)] if MP == m + 2 and m >= 1 else []
    ST3 = cfg.get("st3late", 0)
    phases = [
        [("done", xop(0, 1, i)) for i in range(5)] + [("done", op) for op in st(1)] + ([("mallpf",)] if MP == 1 else []) + st(2) + [("params",)] + (st(3) if not ST3 else []) + ([("mallpf",)] if MP == 2 else []),
        ph(1, [("arrive",)]) + mp(1),
        (st(3) if ST3 else []) + ph(2, st(4)) + mp(2),
        ph(3, st(5)) + mp(3),
        ph(4, st(6)) + mp(4),
        ph(5, st(7)),
        ph(6, st(8)) + ([("touch",), ("nop_vm",)] if cfg.get("ctouch", 2) == 0 else []),
        st(9) + [("dbgload",)],
        st(10),
        st(11) + ([("touch",), ("nop_vm",)] if cfg.get("ctouch", 2) == 2 else []),
        [("setup",)],
        [("mode",)],
    ]
    PFD = cfg.get("pfd", 0)
    if PFD:
        newp = []
        for m, ph_ in enumerate(phases):
            extra = []
            if m == 0:
                extra = [("pfsetup",)] + [("pf", s_) for s_ in range(4, min(PFD, 12))]
            elif 4 <= m - 1 + PFD <= 11:
                extra = [("pf", m - 1 + PFD)]
            if m == 1: newp.append(extra + ph_)
            elif m >= 9: newp.append(ph_)
            else: newp.append(ph_ + extra)
        phases = newp
    optional = ("x16", "mode", "arrive", "params", "setup", "pfsetup", "pf")
    flat, marks = [], []
    for ph in phases:
        flat += [op[1] if op[0] == "done" else op for op in ph]; marks.append(len(flat))
    def last_required(m):
        req = -1
        for idx, op in enumerate(flat):
            if op[0] == "w" and op[1] // P <= m: req = idx
            if op[0] in ("x", "x16"):
                need = {(0, 1): 1, (1, 0): 5, (1, 1): 7}[(op[1], op[2])]
                if need <= m: req = max(req, idx)
            if op[0] == "dbgload" and m >= 10: req = max(req, idx)
        return req
    for m, ph in enumerate(phases):
        for op in ph:
            if op[0] in ("done", "nop_vm"): continue
            if op[0] == "w": dma_w(a, op[1])
            elif op[0] == "x": dma_x(a, op[1], op[2], op[3])
            elif op[0] == "x16": dma_x16(a, op[1], op[2])
            elif op[0] == "mallpf": mall_prefetch(a, cfg)
            elif op[0] == "params": late_params(a)
            elif op[0] == "pfsetup":
                a(f"""
                s_mul_i32 s{S_T1}, s{S_MT}, 40
                s_mul_i32 s{S_T2}, s{S_Q}, 10
                s_add_u32 s{S_T1}, s{S_T1}, s{S_T2}
                v_min_u32 v20, 9, v{V_LANE}
                v_add_u32 v20, s{S_T1}, v20
                v_lshrrev_b32 v21, 5, v20
                v_and_b32 v20, 31, v20
                v_lshlrev_b32 v20, 10, v20
                s_lshl_b32 s61, s{S_KS}, 17
                s_lshl_b32 s{S_T2}, s{S_NG}, 7
                s_add_u32 s61, s61, s{S_T2}
                s_and_b32 s62, s{S_NG}, {cfg.get("pfmask", 7)}
                """)
                for c in range(3):
                    a(f"""
                    v_add_u32 v22, {5*c}, v21
                    v_lshlrev_b32 v23, 1, v22
                    v_cmp_gt_u32 vcc, 8, v22
                    v_subrev_u32 v25, 15, v23
                    s_nop 0
                    v_cndmask_b32 v23, v25, v23, vcc
                    v_lshl_or_b32 v{26+c}, v23, 19, v20
                    """)
            elif op[0] == "pf":
                s_ = op[1]
                a(f"s_cmp_eq_u32 s62, 3")
                a(f"s_cbranch_scc0 L_nopf{s_}")
                a(f"s_add_u32 s{S_T1}, s61, {(s_ // 3) * 32768}")
                a(f"buffer_load_dword v135, v{26 + s_ % 3}, s[{S_W}:{S_W+3}], s{S_T1} offen")
                a(f"L_nopf{s_}:")
            elif op[0] == "setup":
                setup_lanes(a)
                setup_params(a)
            elif op[0] == "arrive":
                a(f"""
                s_waitcnt lgkmcnt(0)
                s_add_u32 s{S_E1}, s{S_E1}, 1
                s_getreg_b32 s{S_XCC}, hwreg(HW_REG_XCC_ID, 0, 3)
                s_lshl_b32 s{S_ARW}, s{S_E1}, 3
                s_or_b32 s{S_ARW}, s{S_ARW}, s{S_XCC}
                s_lshl_b32 s{S_T2}, s{S_GRP}, 7
                s_add_u32 s{S_ARA}, s{S_T2}, {ARRIVE}
                s_cmp_eq_u32 s{S_Q}, 0
                s_cbranch_scc0 L_noarrive
                s_lshl_b32 s{S_T2}, s{S_MEM}, 2
                s_add_u32 s{S_T2}, s{S_T2}, s{S_ARA}
                v_mov_b32 v{V_T1}, s{S_ARW}
                v_mov_b32 v{V_T2}, 0
                s_mov_b64 exec, 1
                buffer_store_dword v{V_T1}, v{V_T2}, s[{S_WS}:{S_WS+3}], s{S_T2} offen sc1
                s_mov_b64 exec, -1
                L_noarrive:
                """)
            elif op[0] == "touch":
                a(f"""
                v_and_b32 v{V_T1}, 31, v{V_LANE}
                v_lshlrev_b32 v{V_T1}, 7, v{V_T1}
                s_lshl_b32 s{S_T1}, s{S_GRP}, 18
                s_lshl_b32 s{S_T2}, s{S_MEM}, 14
                s_add_u32 s{S_T1}, s{S_T1}, s{S_T2}
                s_lshl_b32 s{S_T2}, s{S_Q}, 12
                s_add_u32 s{S_T1}, s{S_T1}, s{S_T2}
                buffer_load_dword v{V_T0}, v{V_T1}, s[{S_WS}:{S_WS+3}], s{S_T1} offen sc1
                s_mul_i32 s{S_T1}, s{S_BT}, {493*1024}
                s_add_u32 s{S_T1}, s{S_T1}, s{S_COL2}
                v_mov_b32 v20, 0
                buffer_load_dword v21, v20, s[{S_OUT}:{S_OUT+3}], s{S_T1} offen
                """)
            elif op[0] == "dbgload":
                a(f"""
                v_and_b32 v{V_T2}, 15, v{V_LANE}
                v_lshlrev_b32 v{V_T2}, 2, v{V_T2}
                buffer_load_dword v24, v{V_T2}, s[{S_WS}:{S_WS+3}], s{S_ARA} offen sc1
                """)
            elif op[0] == "mode":
                a(f"""
                s_mov_b32 s{S_K}, 0
                s_lshr_b32 s{S_T3}, s{S_ARW}, 3
                L_cntpoll:
                v_lshrrev_b32 v25, 3, v24
                v_cmp_eq_u32 vcc, s{S_T3}, v25
                s_nop 4
                s_cmp_eq_u64 vcc, exec
                s_cbranch_scc1 L_cntok
                s_add_u32 s{S_K}, s{S_K}, 1
                s_cmp_ge_u32 s{S_K}, {POLL_MAX}
                s_cbranch_scc1 L_cntok
                s_sleep 2
                buffer_load_dword v24, v{V_T2}, s[{S_WS}:{S_WS+3}], s{S_ARA} offen sc1
                s_waitcnt vmcnt(0)
                s_branch L_cntpoll
                L_cntok:
                v_cmp_eq_u32 vcc, s{S_ARW}, v24
                s_nop 4
                s_cmp_eq_u64 vcc, exec
                s_cselect_b32 s{S_MODE}, {0 if cfg.get('forceslow') else 1}, 0
                v_mov_b32 v{V_T1}, s{S_MODE}
                v_mov_b32 v{V_T2}, {MODEW}
                s_mov_b64 exec, 1
                ds_write_b32 v{V_T2}, v{V_T1}
                s_mov_b64 exec, -1
                s_waitcnt lgkmcnt(0)
                """)
        pos = marks[m]
        req = last_required(m)
        if m == 0:
            stamp(a, cfg, 2)
            continue
        assert req < pos
        n_after = sum(1 for op in flat[req + 1:pos] if op[0] not in optional)
        a(f"s_waitcnt vmcnt({n_after})")
        if m in (1, 3, 6, 9, 11): stamp(a, cfg, {1: 4, 3: 5, 6: 6, 9: 7, 11: 8}[m])
        a("s_barrier")

EXTRAS = {4: [(1, 0), (1, 1), (1, 2)], 5: [(1, 3), (1, 4), (1, 5)], 6: [(1, 6), (1, 7)],
          10: [(0, 0), (0, 1), (0, 2)], 11: [(0, 3), (0, 4), (0, 5)], 12: [(0, 6), (0, 7)]}

def tap_code(a, n):
    par = 0 if n < 8 else 1
    p = n if n < 8 else n - 8
    bank = XE if par == 0 else XO
    wbuf = WB + 4 * (n % 3)
    wnext = WB + 4 * ((n + 1) % 3)
    prev_extras = len(EXTRAS.get(n - 1, []))
    pre = []
    if n in (4, 9, 14):
        pre = [f"s_add_u32 s{S_SG}, s{S_SG}, {STAGE}",
               f"s_cmp_eq_u32 s{S_SG}, {NSTG*STAGE}",
               f"s_cselect_b32 s{S_SG}, 0, s{S_SG}",
               f"v_add_u32 v{V_W}, s{S_SG}, v{V_WL}"]
    reads = []
    if n == 10: reads.append(f"ds_read_b32 v{V_MODE}, v{V_MW}")
    last_p = 6 if par == 0 else 5
    if p <= last_p:
        m = p + 8
        reads.append(f"ds_read_b128 {vr(bank + 4*(m % 9))}, v{V_XC} offset:{x_imm(par, m)}")
    toff = ((n + 1) % P) * 4096
    reads.append(f"ds_read_b64_tr_b16 {vr(wnext,2)}, v{V_W} offset:{toff}")
    reads.append(f"ds_read_b64_tr_b16 {vr(wnext+2,2)}, v{V_W} offset:{toff + 512}")
    for (epar, m) in EXTRAS.get(n, []):
        if epar == 1: reads.append(f"ds_read_b128 {vr(XO + 4*m)}, v{V_XC} offset:{x_imm(1, m)}")
        else: reads.append(f"ds_read_b128 {vr(XE + 4*m)}, v{V_XN} offset:{x_imm(0, m)}")
    post = []
    if n == 14:
        post = [f"s_add_u32 s{S_K}, s{S_K}, 1",
                f"v_mov_b32 v{V_XC}, v{V_XN}",
                f"s_add_u32 s{S_T1}, s{S_K}, 1",
                f"s_lshr_b32 s{S_T2}, s{S_T1}, 1",
                f"s_mul_i32 s{S_T2}, s{S_T2}, {2*XARR}",
                f"s_and_b32 s{S_T1}, s{S_T1}, 1",
                f"s_lshl_b32 s{S_T1}, s{S_T1}, 6",
                f"s_add_u32 s{S_T1}, s{S_T1}, s{S_T2}",
                f"v_add_u32 v{V_XN}, s{S_T1}, v{V_XL}"]
    for x in pre: a(x)
    a(f"s_waitcnt lgkmcnt({prev_extras})")
    ri = 0
    for t in range(8):
        m = p + t
        a(f"v_mfma_f32_16x16x32_bf16 {vr(ACC + 4*t)}, {vr(wbuf)}, {vr(bank + 4*(m % 9))}, {vr(ACC + 4*t)}")
        if t == 0 and n in (4, 9, 14): a("s_barrier")
        if t < 7 and ri < len(reads):
            a(reads[ri]); ri += 1
        if n == 14 and t >= 2:
            for x in post[(t - 2) * 2:(t - 2) * 2 + 2]: a(x)
        if n == 13 and t == 6: a(f"s_cmp_eq_u32 s{S_K}, 3")
    assert ri == len(reads)

def compute(a, cfg):
    late_params(a)
    a(f"""
    v_and_b32 v{V_T0}, 15, v{V_LANE}             ; i / j
    v_lshrrev_b32 v{V_T1}, 4, v{V_LANE}          ; g
    v_mul_u32_u24 v{V_XL}, 1056, v{V_T0}
    v_lshl_add_u32 v{V_XL}, v{V_T1}, 4, v{V_XL}
    v_lshrrev_b32 v{V_T2}, 2, v{V_T0}
    v_lshl_add_u32 v{V_T2}, v{V_T1}, 3, v{V_T2}
    v_lshlrev_b32 v{V_WL}, 7, v{V_T2}
    v_bfe_u32 v{V_T2}, v{V_T0}, 3, 1
    v_and_b32 v{V_T3}, 1, v{V_T1}
    v_lshl_or_b32 v{V_T2}, v{V_T3}, 1, v{V_T2}
    v_xor_b32 v{V_T2}, s{S_Q}, v{V_T2}
    v_lshl_add_u32 v{V_WL}, v{V_T2}, 5, v{V_WL}
    v_and_b32 v{V_T3}, 3, v{V_T0}
    v_lshl_add_u32 v{V_WL}, v{V_T3}, 3, v{V_WL}
    v_add_u32 v{V_WL}, {WRING}, v{V_WL}
    v_mov_b32 v{V_XC}, v{V_XL}
    v_add_u32 v{V_XN}, 64, v{V_XL}
    v_mov_b32 v{V_W}, v{V_WL}
    v_mov_b32 v{V_MW}, {MODEW}
    s_mov_b32 s{S_SG}, 0
    s_mov_b32 s{S_K}, 0
    v_lshlrev_b32 v{V_T1}, 14, v{V_T1}
    v_lshl_add_u32 v{V_STO}, v{V_T0}, 4, v{V_T1}
    s_lshl_b32 s{S_T0}, s{S_Q}, 16
    v_add_u32 v{V_STO}, s{S_T0}, v{V_STO}
    s_lshl_b32 s{S_T0}, s{S_GRP}, 18
    s_lshl_b32 s{S_T1}, s{S_MEM}, 10
    s_add_u32 s{S_STO}, s{S_T0}, s{S_T1}
    s_lshl_b32 s{S_T1}, s{S_Q}, 2
    s_add_u32 s{S_T1}, s{S_T1}, s{S_MT}
    s_lshl_b32 s{S_T1}, s{S_T1}, 7
    s_lshl_b32 s{S_T2}, s{S_KS}, 2
    s_add_u32 s{S_T1}, s{S_T1}, s{S_T2}
    s_lshl_b32 s{S_T2}, s{S_GRP}, 11
    s_add_u32 s{S_T1}, s{S_T1}, s{S_T2}
    s_add_u32 s{S_FLAG}, s{S_T1}, {FLAGS}
    """)
    for r in range(32): a(f"v_mov_b32 v{ACC + r}, 0")
    setup_lanes(a)
    a("s_waitcnt lgkmcnt(0)")
    a(f"s_add_u32 s{S_E1}, s{S_E1}, 1")
    setup_params(a)
    stamp(a, cfg, 2)
    a("s_waitcnt vmcnt(0)")
    stamp(a, cfg, 3)
    a(f"""
    v_mov_b32 v{V_T0}, {CNTW}
    v_mov_b32 v{V_T1}, 1
    s_mov_b64 exec, 1
    ds_add_u32 v{V_T0}, v{V_T1}
    s_mov_b64 exec, -1
    L_b0spin:
    ds_read_b32 v{V_T1}, v{V_T0}
    s_waitcnt lgkmcnt(0)
    v_readfirstlane_b32 s{S_T0}, v{V_T1}
    s_cmp_ge_u32 s{S_T0}, 4
    s_cbranch_scc0 L_b0spin
    """)
    if cfg.get("ctouch", 2) == 1:
        a(f"""
        v_and_b32 v{V_T1}, 31, v{V_LANE}
        v_lshlrev_b32 v{V_T1}, 7, v{V_T1}
        s_lshl_b32 s{S_T1}, s{S_GRP}, 18
        s_lshl_b32 s{S_T2}, s{S_MEM}, 14
        s_add_u32 s{S_T1}, s{S_T1}, s{S_T2}
        s_lshl_b32 s{S_T2}, s{S_Q}, 12
        s_add_u32 s{S_T1}, s{S_T1}, s{S_T2}
        buffer_load_dword v134, v{V_T1}, s[{S_WS}:{S_WS+3}], s{S_T1} offen sc1
        buffer_load_dword v135, v{FV_ZERO}, s[{S_OUT}:{S_OUT+3}], s{S_OUTO} offen
        """)
    if cfg.get("prio") == 1: a("s_setprio 0")
    stamp(a, cfg, 4)
    stamp(a, cfg, 8, True)
    a(f"ds_read_b64_tr_b16 {vr(WB,2)}, v{V_W}")
    a(f"ds_read_b64_tr_b16 {vr(WB+2,2)}, v{V_W} offset:512")
    for m in range(8):
        a(f"ds_read_b128 {vr(XE + 4*m)}, v{V_XC} offset:{x_imm(0, m)}")
    a("L_kloop:")
    for n in range(14): tap_code(a, n)
    a("s_cbranch_scc1 L_lasttap")
    tap_code(a, 14)
    if cfg.get("stamps") == 2:
        a(f"""
        s_memtime s[84:85]
        s_waitcnt lgkmcnt(0)
        s_cmp_eq_u32 s{S_K}, 1
        s_cselect_b32 s96, s84, s96
        s_cmp_eq_u32 s{S_K}, 2
        s_cselect_b32 s97, s84, s97
        s_cmp_eq_u32 s{S_K}, 3
        s_cselect_b32 s98, s84, s98
        """)
    a("s_branch L_kloop")
    a("L_lasttap:")
    n = 14; p = 6; bank = XO; wbuf = WB + 4 * (n % 3)
    T = XE
    def cvt(s):
        out = []
        for e in range(2):
            t = 2 * s + e
            out.append(f"v_cvt_pk_bf16_f32 v{T + 4*s + 2*e}, v{ACC + 4*t}, v{ACC + 4*t + 1}")
            out.append(f"v_cvt_pk_bf16_f32 v{T + 4*s + 2*e + 1}, v{ACC + 4*t + 2}, v{ACC + 4*t + 3}")
        return out
    def store(s, sc):
        if cfg.get("nopayload"): return "s_nop 0"
        return f"buffer_store_dwordx4 {vr(T + 4*s)}, v{V_STO}, s[{S_WS}:{S_WS+3}], s{S_STO} offen offset:{s*256}{sc}"
    a("s_waitcnt lgkmcnt(0)")
    a(f"v_readfirstlane_b32 s{S_MODE}, v{V_MODE}")
    mf = [f"v_mfma_f32_16x16x32_bf16 {vr(ACC + 4*t)}, {vr(wbuf)}, {vr(bank + 4*((p + t) % 9))}, {vr(ACC + 4*t)}" for t in range(8)]
    a(mf[0]); a("s_nop 0"); a(mf[1]); a("s_nop 0"); a(mf[2]); a(f"s_cmp_eq_u32 s{S_MODE}, 1"); a(mf[3])
    a("s_cbranch_scc1 L_fast")
    for lab, sc in (("", " sc1"), ("L_fast:", cfg.get("fastflavor", ""))):
        if lab: a(lab)
        a(mf[4]); a("s_nop 0"); a(mf[5]); a("s_nop 0"); a(mf[6]); a("s_nop 0")
        c0 = cvt(0); a(c0[0]); a(mf[7])
        for x in c0[1:]: a(x)
        a(store(0, sc))
        for x in cvt(1): a(x)
        a(store(1, sc))
        for x in cvt(2): a(x)
        a(store(2, sc))
        for x in cvt(3): a(x)
        a(store(3, sc))
        stamp(a, cfg, 9, True)
        stamp(a, cfg, 5)
        a("s_waitcnt vmcnt(0)")
        a("s_mov_b64 exec, 1")
        a(f"buffer_store_dword v{FV_E}, v{FV_ZERO}, s[{S_WS}:{S_WS+3}], s{S_FLAG} offen{' sc1' if sc == ' sc1' else ''}")
        a("s_mov_b64 exec, -1")
        stamp(a, cfg, 7)
        if not lab: a("s_branch L_final")

def fold_reduce(a, r, ldsoff):
    a(f"""
    s_nop 1
    v_permlane32_swap_b32 v{r}, v{r+1}
    v_permlane32_swap_b32 v{r+2}, v{r+3}
    v_add_f32 v{r}, v{r}, v{r+1}
    v_add_f32 v{r+2}, v{r+2}, v{r+3}
    s_nop 1
    v_permlane16_swap_b32 v{r}, v{r+2}
    v_add_f32 v{r}, v{r}, v{r+2}
    """)
    for sh in (8, 4, 2, 1):
        a("s_nop 1")
        a(f"v_add_f32_dpp v{r}, v{r}, v{r} row_ror:{sh} row_mask:0xf bank_mask:0xf")
    a(f"""
    s_mov_b32 exec_lo, 0x00010001
    s_mov_b32 exec_hi, 0x00010001
    ds_write_b32 v{FV_RW}, v{r} offset:{ldsoff}
    s_mov_b64 exec, -1
    s_waitcnt lgkmcnt(0)
    s_barrier
    ds_read_b128 {vr(r)}, v{FV_RR} offset:{ldsoff}
    ds_read_b128 {vr(r+4)}, v{FV_RR} offset:{ldsoff + 16}
    s_waitcnt lgkmcnt(0)
    v_pk_add_f32 {vr(r,2)}, {vr(r,2)}, {vr(r+2,2)}
    v_pk_add_f32 {vr(r+4,2)}, {vr(r+4,2)}, {vr(r+6,2)}
    v_pk_add_f32 {vr(r,2)}, {vr(r,2)}, {vr(r+4,2)}
    v_add_f32 v{r}, v{r}, v{r+1}
    """)

def final_phase(a, cfg):
    a("L_final:")
    if cfg.get("poll2"):
        def chk(r):
            return f"""
            v_xor_b32 v{r}, s{S_E1}, v{r}
            v_xor_b32 v{r+1}, s{S_E1}, v{r+1}
            v_xor_b32 v{r+2}, s{S_E1}, v{r+2}
            v_xor_b32 v{r+3}, s{S_E1}, v{r+3}
            v_or3_b32 v{r}, v{r}, v{r+1}, v{r+2}
            v_or_b32 v{r}, v{r}, v{r+3}
            s_add_u32 s{S_K}, s{S_K}, 1
            v_readfirstlane_b32 s{S_T1}, v{r}
            s_cmp_eq_u32 s{S_T1}, 0
            s_cbranch_scc1 L_flagok
            """
        ld = lambda r: f"buffer_load_dwordx4 v[{r}:{r+3}], v{FV_ZERO}, s[{S_WS}:{S_WS+3}], s{S_POLL} offen sc1"
        a(f"s_mov_b32 s{S_K}, 0")
        a(ld(20))
        a("L_flagpoll:")
        a(ld(24)); a("s_waitcnt vmcnt(1)"); a(chk(20))
        a(ld(20)); a("s_waitcnt vmcnt(1)"); a(chk(24))
        a(f"""
        s_cmp_ge_u32 s{S_K}, {POLL_MAX}
        s_cbranch_scc0 L_flagpoll
        L_flagok:
        """)
    else:
        a(f"""
        s_mov_b32 s{S_K}, 0
        L_flagpoll:
        buffer_load_dwordx4 v[20:23], v{FV_ZERO}, s[{S_WS}:{S_WS+3}], s{S_POLL} offen sc1
        s_waitcnt vmcnt(0)
        v_xor_b32 v20, s{S_E1}, v20
        v_xor_b32 v21, s{S_E1}, v21
        v_xor_b32 v22, s{S_E1}, v22
        v_xor_b32 v23, s{S_E1}, v23
        v_or3_b32 v20, v20, v21, v22
        v_or_b32 v20, v20, v23
        s_add_u32 s{S_K}, s{S_K}, 1
        v_readfirstlane_b32 s{S_T1}, v20
        s_cmp_eq_u32 s{S_T1}, 0
        s_cbranch_scc1 L_flagok
        s_cmp_ge_u32 s{S_K}, {POLL_MAX}
        s_cbranch_scc1 L_flagok
        s_branch L_flagpoll
        L_flagok:
        """)
    stamp(a, cfg, 10)
    for ks in range(4):
        a(f"buffer_load_dwordx2 {vr(F_IN + 2*ks, 2)}, v{FV_PAY}, s[{S_WS}:{S_WS+3}], s{S_PAY} offen offset:{ks*1024} sc1")
    a("s_waitcnt vmcnt(2)")
    a(f"v_mfma_f32_16x16x32_bf16 {vr(F_Y)}, {vr(FV_A)}, {vr(F_IN)}, {vr(FV_C)}")
    a("s_waitcnt vmcnt(0)")
    stamp(a, cfg, 11)
    a(f"v_mfma_f32_16x16x32_bf16 {vr(F_Y)}, {vr(FV_A)}, {vr(F_IN+4)}, {vr(F_Y)}")
    if cfg.get("wbl2"):
        mask = {1: 15, 2: 3, 3: 0}[cfg["wbl2"]]
        a(f"""
        s_and_b32 s{S_T0}, s{S_MEM}, {mask}
        s_or_b32 s{S_T0}, s{S_T0}, s{S_WAVE}
        s_cmp_eq_u32 s{S_T0}, 0
        s_cbranch_scc0 L_nowb
        buffer_wbl2 sc1
        L_nowb:
        """)
    R = F_T
    Q = FV_R2
    a("s_nop 7")
    if cfg.get("twopass"):
        for c in range(4): a(f"v_cndmask_b32 v{R+c}, 0, v{F_Y+c}, s[{S_VALID}:{S_VALID+1}]")
        fold_reduce(a, R, 0)
        a(f"v_mul_f32 v{R}, {f2h(1/493)}, v{R}")
        a("s_nop 1")
        for c in range(4):
            a(f"v_subrev_f32_dpp v{F_Y+c}, v{R}, v{F_Y+c} quad_perm:[{c},{c},{c},{c}] row_mask:0xf bank_mask:0xf")
        a(f"s_mov_b64 exec, s[{S_VALID}:{S_VALID+1}]")
        for c in range(4): a(f"v_mul_f32 v{FV_R2+c}, v{F_Y+c}, v{F_Y+c}")
        a("s_mov_b64 exec, -1")
        fold_reduce(a, FV_R2, 128)
        a(f"v_mov_b32 v{R+1}, {f2h(1e-5)}")
        a(f"v_fmac_f32 v{R+1}, {f2h(1/493)}, v{FV_R2}")
    else:
        for c in range(4): a(f"v_cndmask_b32 v{R+c}, 0, v{F_Y+c}, s[{S_VALID}:{S_VALID+1}]")
        for c in range(4): a(f"v_mul_f32 v{Q+c}, v{R+c}, v{R+c}")
        a(f"""
        v_permlane32_swap_b32 v{R}, v{R+1}
        v_permlane32_swap_b32 v{R+2}, v{R+3}
        v_permlane32_swap_b32 v{Q}, v{Q+1}
        v_permlane32_swap_b32 v{Q+2}, v{Q+3}
        v_add_f32 v{R}, v{R}, v{R+1}
        v_add_f32 v{R+2}, v{R+2}, v{R+3}
        v_add_f32 v{Q}, v{Q}, v{Q+1}
        v_add_f32 v{Q+2}, v{Q+2}, v{Q+3}
        s_nop 0
        v_permlane16_swap_b32 v{R}, v{R+2}
        v_permlane16_swap_b32 v{Q}, v{Q+2}
        v_add_f32 v{R}, v{R}, v{R+2}
        v_add_f32 v{Q}, v{Q}, v{Q+2}
        """)
        for sh in (8, 4, 2, 1):
            a("s_nop 0")
            a(f"v_add_f32_dpp v{R}, v{R}, v{R} row_ror:{sh} row_mask:0xf bank_mask:0xf")
            a(f"v_add_f32_dpp v{Q}, v{Q}, v{Q} row_ror:{sh} row_mask:0xf bank_mask:0xf")
        a(f"""
        s_mov_b32 exec_lo, 0x00010001
        s_mov_b32 exec_hi, 0x00010001
        ds_write_b32 v{FV_RW}, v{R}
        ds_write_b32 v{FV_RW}, v{Q} offset:128
        s_mov_b64 exec, -1
        s_waitcnt lgkmcnt(0)
        s_barrier
        ds_read_b128 {vr(R)}, v{FV_RR}
        ds_read_b128 {vr(R+4)}, v{FV_RR} offset:16
        ds_read_b128 {vr(Q)}, v{FV_RR} offset:128
        ds_read_b128 {vr(Q+4)}, v{FV_RR} offset:144
        s_waitcnt lgkmcnt(2)
        v_pk_add_f32 {vr(R,2)}, {vr(R,2)}, {vr(R+2,2)}
        v_pk_add_f32 {vr(R+4,2)}, {vr(R+4,2)}, {vr(R+6,2)}
        s_waitcnt lgkmcnt(0)
        v_pk_add_f32 {vr(Q,2)}, {vr(Q,2)}, {vr(Q+2,2)}
        v_pk_add_f32 {vr(Q+4,2)}, {vr(Q+4,2)}, {vr(Q+6,2)}
        v_pk_add_f32 {vr(R,2)}, {vr(R,2)}, {vr(R+4,2)}
        v_pk_add_f32 {vr(Q,2)}, {vr(Q,2)}, {vr(Q+4,2)}
        v_add_f32 v{R}, v{R}, v{R+1}
        v_add_f32 v{Q}, v{Q}, v{Q+1}
        v_mul_f32 v{R}, {f2h(1/493)}, v{R}                 ; mean
        v_mul_f32 v{Q}, {f2h(1/493)}, v{Q}                 ; E[y^2]
        v_mul_f32 v{R+2}, v{R}, v{R}                       ; mean^2
        v_sub_f32 v{Q}, v{Q}, v{R+2}                       ; variance
        v_mul_f32 v{R+3}, {f2h(256.0)}, v{Q}
        v_cmp_gt_f32 vcc, v{R+2}, v{R+3}
        """)
        for c in range(4):
            a(f"v_subrev_f32_dpp v{F_Y+c}, v{R}, v{F_Y+c} quad_perm:[{c},{c},{c},{c}] row_mask:0xf bank_mask:0xf")
        a(f"""
        s_cmp_lg_u64 vcc, 0
        s_cbranch_scc0 L_varok
        """)
        for c in range(4): a(f"v_mul_f32 v{Q+c}, v{F_Y+c}, v{F_Y+c}")
        for c in range(4): a(f"v_cndmask_b32 v{Q+c}, 0, v{Q+c}, s[{S_VALID}:{S_VALID+1}]")
        fold_reduce(a, Q, 384)
        a(f"v_mul_f32 v{Q}, {f2h(1/493)}, v{Q}")
        a("L_varok:")
        a(f"v_add_f32 v{R+1}, {f2h(1e-5)}, v{Q}")
    a(f"v_rsq_f32 v{R+1}, v{R+1}")
    a("s_nop 0")
    a(f"v_mul_f32 v{R+1}, v{R+1}, v{FV_GAM}")
    a("s_nop 1")
    for c in range(4):
        a(f"v_fmac_f32_dpp v{FV_BETA+c}, v{R+1}, v{F_Y+c} quad_perm:[{c},{c},{c},{c}] row_mask:0xf bank_mask:0xf")
    X = FV_BETA
    Z = R + 2
    for c in (0, 2): a(f"v_pk_mul_f32 {vr(Z+c,2)}, {vr(X+c,2)}, {vr(X+c,2)}")
    for c in (0, 2): a(f"v_pk_fma_f32 {vr(Z+c,2)}, {vr(Z+c,2)}, {vr(FV_K2,2)}, {vr(FV_K1,2)}")
    for c in (0, 2): a(f"v_pk_mul_f32 {vr(Z+c,2)}, {vr(X+c,2)}, {vr(Z+c,2)}")
    for c in range(4): a(f"v_exp_f32 v{Z+c}, -v{Z+c}")
    a("s_nop 0")
    for c in (0, 2): a(f"v_pk_add_f32 {vr(Z+c,2)}, {vr(Z+c,2)}, {vr(FV_ONE,2)}")
    for c in range(4): a(f"v_rcp_f32 v{Z+c}, v{Z+c}")
    a("s_nop 0")
    for c in (0, 2): a(f"v_pk_mul_f32 {vr(X+c,2)}, {vr(X+c,2)}, {vr(Z+c,2)}")
    a(f"v_cvt_pk_bf16_f32 v{Z}, v{X}, v{X+1}")
    a(f"v_cvt_pk_bf16_f32 v{Z+1}, v{X+2}, v{X+3}")
    a(f"s_mov_b64 exec, s[{S_VALID}:{S_VALID+1}]")
    a(f"buffer_store_dwordx2 {vr(Z,2)}, v{FV_OUT}, s[{S_OUT}:{S_OUT+3}], s{S_OUTO} offen")
    a(f"""
    s_or_b32 s{S_T0}, s{S_MEM}, s{S_WAVE}
    s_cmp_eq_u32 s{S_T0}, 0
    s_cbranch_scc0 L_noepoch
    s_lshl_b32 s{S_T1}, s{S_GRP}, 7
    s_add_u32 s{S_T1}, s{S_T1}, {EPOCH}
    s_mov_b64 exec, 1
    buffer_store_dword v{FV_E}, v{FV_ZERO}, s[{S_WS}:{S_WS+3}], s{S_T1} offen
    L_noepoch:
    """)
    stamp(a, cfg, 12)
    if cfg.get("stamps"): a("s_waitcnt vmcnt(0)")
    stamp(a, cfg, 13)
    stamp_flush(a, cfg)

HEADER = open("cdna_kernels/" + NAME + ".s.ref").read().split("; Override")[0]

def gen(cfg):
    a = A()
    out = HEADER
    out += """;
;  * y[b,l,:] = sum_{tap,c} x[b,2l+tap,c] w[tap,c,:] as an implicit GEMM.  Workgroup = (batch, 64 output columns,
;    partials go through that XCD's L2 (plain stores, L1-bypassing loads), otherwise write-through (sc1) stores.
"""
    out += f"; @launch grid=(256,1,1) block=(512,1,1) lds={LDS_BYTES}\n"
    a('.amdgcn_target "amdgcn-amd-amdhsa--gfx950"')
    a(".text")
    a(f".globl {KNAME}\n.p2align 8\n.type {KNAME},@function\n{KNAME}:")
    prologue(a, cfg)
    a(f"s_cmp_ge_u32 s{S_WAVE}, 4")
    a("s_cbranch_scc1 L_loader")
    compute(a, cfg)
    final_phase(a, cfg)
    if cfg.get("probe"):
        idx = cfg["probe"]
        a(f"""
        s_cmp_ge_u32 s{S_WAVE}, 4
        s_cbranch_scc1 L_noprobe
        {"s_sub_u32 s84, s95, s94" if idx == 89 else f"s_sub_u32 s84, s{86+idx}, s86"}
        {"s_lshr_b32 s84, s84, 2" if idx == 89 else "s_mul_i32 s84, s84, 4"}
        s_memrealtime s[96:97]
        s_waitcnt lgkmcnt(0)
        s_add_u32 s84, s84, s96
        L_probe:
        s_memrealtime s[96:97]
        s_waitcnt lgkmcnt(0)
        s_sub_u32 s96, s96, s84
        s_cmp_lt_i32 s96, 0
        s_cbranch_scc1 L_probe
        L_noprobe:
        """)
    if cfg.get("pad"):
        a(f"""
        s_waitcnt vmcnt(0) lgkmcnt(0)
        L_pad:
        s_memrealtime s[96:97]
        s_waitcnt lgkmcnt(0)
        s_sub_u32 s96, s96, s98
        s_cmp_lt_u32 s96, {cfg['pad']}
        s_cbranch_scc1 L_pad
        """)
    a("s_endpgm")
    a("L_loader:")
    loader(a, cfg)
    stamp(a, cfg, 9)
    a("s_branch L_final")
    a("L_end:")
    a("s_endpgm")
    out += a.text()
    out += f""".section .rodata,"a"
.p2align 6
.amdhsa_kernel {KNAME}
  .amdhsa_next_free_vgpr {NVGPR}
  .amdhsa_next_free_sgpr 102
  .amdhsa_accum_offset {NVGPR}
  .amdhsa_group_segment_fixed_size 0
  .amdhsa_kernarg_size 64
  .amdhsa_user_sgpr_count 2
  .amdhsa_user_sgpr_kernarg_segment_ptr 1
  .amdhsa_system_sgpr_workgroup_id_x 1
.end_amdhsa_kernel
"""
    return out

if __name__ == "__main__":
    ap = argparse.ArgumentParser()
    ap.add_argument("-o", default="/dev/stdout")
    ap.add_argument("--stamps", type=int, nargs="?", const=1, default=0)
    ap.add_argument("--map", type=int, default=1)
    ap.add_argument("--forceslow", action="store_true")
    ap.add_argument("--pad", type=int, default=0)
    ap.add_argument("--probe", type=int, default=0)
    ap.add_argument("--fastflavor", type=str, default="")
    ap.add_argument("--nopayload", action="store_true")
    ap.add_argument("--wbl2", type=int, default=0)
    ap.add_argument("--mallw", type=int, default=2)
    ap.add_argument("--mallx", type=int, default=1)
    ap.add_argument("--mallpos", type=int, default=2)
    ap.add_argument("--xsched", type=int, default=0)
    ap.add_argument("--st3late", type=int, default=0)
    ap.add_argument("--ctouch", type=int, default=2)
    ap.add_argument("--twopass", type=int, default=0)
    ap.add_argument("--prio", type=int, default=0)
    ap.add_argument("--nocodepf", type=int, default=0)
    ap.add_argument("--pfd", type=int, default=0)
    ap.add_argument("--pfmask", type=int, default=7)
    ap.add_argument("--poll2", type=int, default=1)
    ap.add_argument("--pkgelu", type=int, default=1)
    ap.add_argument("--ldelay", type=int, default=0)
    ap.add_argument("--premall", type=int, default=4)
    args = ap.parse_args()
    if args.probe: args.stamps = 1
    cfg = vars(args)
    open(args.o, "w").write(gen(cfg))
```

```python
import sys, argparse, struct

NAME = "standalone__self_sup_conv_stem_hubert__speech"
KNAME = NAME + "_kernel"

XARR = 17 * 1056
WRING = 4 * XARR
P = 5
NSTG = 4
STAGE = P * 4096
RED = WRING + NSTG * STAGE
MODEW = RED + 256
CNTW = RED + 260
LDS_BYTES = RED + 512
TAPS = [0, 2, 4, 6, 8, 10, 12, 14, 1, 3, 5, 7, 9, 11, 13]
INBOX_GROUP = 16 * 16 * 1024
FLAGS = 16 * INBOX_GROUP
EPOCH = FLAGS + 16 * 2048
ARRIVE = EPOCH + 16 * 128
STAMPS = 8 << 20
POLL_MAX = 200000

def f2h(x): return hex(struct.unpack('<I', struct.pack('<f', x))[0])

class A:
    def __init__(self): self.l = []
    def __call__(self, s):
        for x in s.strip("\n").split("\n"):
            x = x.strip()
            if x: self.l.append(x)
    def text(self):
        out = []
        for x in self.l:
            if x.endswith(":") or x.startswith(".") or x.startswith(";"): out.append(x)
            else: out.append("    " + x)
        return "\n".join(out) + "\n"

S_RAW = 4
S_POLL, S_PAY, S_FLAG = 3, 10, 11
S_X, S_W, S_WS, S_OUT = 12, 16, 20, 48
S_OUTO, S_STO = 24, 25
S_BT, S_NG, S_MT, S_KS, S_MEM, S_GRP, S_WAVE, S_Q = 26, 27, 28, 29, 30, 31, 32, 33
S_XO, S_XQ, S_XM, S_WO, S_WM = 34, 35, 36, 37, 38
S_COL2 = 39
S_T0, S_T1, S_T2, S_T3 = 40, 41, 42, 43
S_SG, S_K, S_MODE, S_XCC = 44, 45, 46, 47
S_E1, S_ARW, S_ARA = 52, 53, 54
S_KA = 64
S_VALID = 80
V_LANE, V_OFFX, V_OFFW = 1, 2, 3
V_XL, V_WL, V_XC, V_XN, V_W, V_MODE = 4, 5, 6, 7, 8, 9
V_T0, V_T1, V_T2, V_T3 = 10, 11, 12, 13
V_STO, V_MW = 14, 15
ACC = 16
XE = 48
XO = 84
WB = 120
V_PF0, V_PF1 = 132, 133
FV_A, FV_C, FV_BETA, FV_R2 = 136, 140, 144, 148
FV_GAM, FV_PAY, FV_ZERO, FV_OUT, FV_RW, FV_RR, FV_L, FV_E = 156, 157, 158, 159, 160, 161, 162, 163
FT = 164
FV_K1, FV_K2, FV_ONE = 168, 170, 172
NVGPR = 176
F_Y, F_IN, F_T = 16, 40, 28

def stamp(a, cfg, idx, clk=False):
    if not cfg.get("stamps"): return
    if cfg.get("stamps") == 2 and idx >= 10: return
    a(f"{'s_memtime' if clk else 's_memrealtime'} s[84:85]")
    a("s_waitcnt lgkmcnt(0)")
    a(f"s_mov_b32 s{86+idx}, s84")
def stamp_flush(a, cfg):
    if not cfg.get("stamps") or cfg.get("probe"): return
    a("s_mov_b64 exec, -1")
    a(f"s_lshl_b32 s84, s2, 3")
    a(f"s_add_u32 s84, s84, s{S_WAVE}")
    a(f"s_lshl_b32 s84, s84, 6")
    a(f"s_add_u32 s84, s84, {STAMPS}")
    a(f"v_mov_b32 v0, 0")
    for i in range(16): a(f"v_mov_b32 v{100+i}, s{86+i}")
    for i in range(4):
        a(f"buffer_store_dwordx4 v[{100+4*i}:{103+4*i}], v0, s[{S_WS}:{S_WS+3}], s84 offen offset:{16*i}")

def vr(b, n=4): return f"v[{b}:{b+n-1}]"

def srd(a, base, ptr, nbytes):
    a(f"s_mov_b32 s{base}, s{ptr}")
    a(f"s_and_b32 s{base+1}, s{ptr+1}, 0xffff")
    if isinstance(nbytes, int): a(f"s_mov_b32 s{base+2}, {nbytes}")
    else: a(nbytes)
    a(f"s_mov_b32 s{base+3}, 0x20000")

def dma_x(a, half, par, i):
    arr = (2 * half + par) * XARR
    if i < 4:
        a(f"s_add_u32 m0, s{S_XM}, {arr + i * 4 * 1056}")
        a(f"s_add_u32 s{S_T0}, s{S_XQ}, {i * 65536 + par * 1024 + half * 128}")
    else:
        a(f"s_mov_b32 m0, {arr + 16 * 1056}")
        a(f"s_add_u32 s{S_T0}, s{S_XO}, {16 * 16384 + par * 1024 + half * 128}")
    a(f"buffer_load_dwordx4 v{V_OFFX}, s[{S_X}:{S_X+3}], s{S_T0} offen lds")

def dma_x16(a, half, par):
    arr = 2 * half + par
    lab = f"L_skipx{arr}"
    a(f"s_cmp_eq_u32 s{S_Q}, {arr}")
    a(f"s_cbranch_scc0 {lab}")
    dma_x(a, half, par, 4)
    a(f"{lab}:")

def dma_w(a, n):
    k, nl = divmod(n, 15)
    tap = TAPS[nl]
    slot = ((n // P) % NSTG) * STAGE + (n % P) * 4096
    a(f"s_add_u32 m0, s{S_WM}, {slot}")
    a(f"s_add_u32 s{S_T0}, s{S_WO}, {(tap * 512 + k * 32) * 1024}")
    a(f"buffer_load_dwordx4 v{V_OFFW}, s[{S_W}:{S_W+3}], s{S_T0} offen lds")

def x_imm(par, m): return par * XARR + (m >> 3) * 1056 + (m & 7) * 128

def prologue(a, cfg):
    a(f"""
    s_cmp_ge_u32 s2, 256
    s_cbranch_scc1 L_end
    """)
    stamp(a, cfg, 0)
    if cfg.get("pad"): a("s_memrealtime s[98:99]")
    a(f"s_load_dwordx16 s[{S_KA}:{S_KA+15}], s[0:1], 0")
    if not cfg.get("nocodepf"):
        a(f"""
        s_getpc_b64 s[4:5]
        L_pc:
        v_lshrrev_b32 v{V_PF0}, 6, v0
        v_and_b32 v{V_PF1}, 7, v0
        v_lshl_add_u32 v{V_PF0}, v{V_PF0}, 3, v{V_PF1}
        v_lshlrev_b32 v{V_PF0}, 7, v{V_PF0}
        s_sub_u32 s4, s4, L_pc-{KNAME}
        s_subb_u32 s5, s5, 0
        v_min_u32 v{V_PF0}, L_end-{KNAME}, v{V_PF0}
        global_load_dword v{V_PF1}, v{V_PF0}, s[4:5]
        """)
    a(f"""
    v_mov_b32 v{V_T0}, {CNTW}
    v_mov_b32 v{V_T1}, 0
    ds_write_b32 v{V_T0}, v{V_T1}
    """)
    if cfg.get("map", 1) == 1:
        a(f"""
        s_and_b32 s24, s2, 7
        s_lshr_b32 s25, s2, 3
        s_and_b32 s{S_BT}, s24, 1
        s_and_b32 s{S_NG}, s24, 6
        s_lshr_b32 s{S_T0}, s25, 4
        s_add_u32 s{S_NG}, s{S_NG}, s{S_T0}
        """)
    elif cfg.get("map") == 3:
        a(f"""
        s_lshr_b32 s24, s2, 3
        s_and_b32 s{S_NG}, s2, 4
        s_and_b32 s{S_T0}, s24, 3
        s_add_u32 s{S_NG}, s{S_NG}, s{S_T0}
        s_lshr_b32 s{S_BT}, s24, 4
        s_and_b32 s25, s24, 12
        s_and_b32 s{S_T0}, s2, 3
        s_or_b32 s25, s25, s{S_T0}
        """)
    else:
        a(f"""
        s_lshr_b32 s24, s2, 4
        s_and_b32 s25, s2, 15
        s_and_b32 s{S_BT}, s24, 1
        s_lshr_b32 s{S_NG}, s24, 1
        """)
    a(f"""
    s_lshr_b32 s{S_MT}, s25, 2
    s_and_b32 s{S_MT}, s{S_MT}, 3
    s_and_b32 s{S_KS}, s25, 3
    s_and_b32 s{S_MEM}, s25, 15
    s_lshl_b32 s{S_GRP}, s{S_BT}, 3
    s_add_u32 s{S_GRP}, s{S_GRP}, s{S_NG}
    v_lshrrev_b32 v{V_T0}, 6, v0
    v_and_b32 v{V_LANE}, 63, v0
    v_readfirstlane_b32 s{S_WAVE}, v{V_T0}
    v_lshrrev_b32 v{V_T0}, 3, v{V_LANE}          ; lane>>3
    v_and_b32 v{V_T1}, 7, v{V_LANE}              ; lane&7
    v_lshlrev_b32 v{V_OFFX}, 11, v{V_T0}
    v_lshl_add_u32 v{V_OFFX}, v{V_T1}, 4, v{V_OFFX}
    s_and_b32 s{S_Q}, s{S_WAVE}, 3
    s_mul_i32 s{S_XO}, s{S_BT}, 1024000
    s_add_u32 s{S_T2}, s{S_XO}, 1024000
    s_lshl_b32 s{S_T0}, s{S_MT}, 18
    s_add_u32 s{S_XO}, s{S_XO}, s{S_T0}
    s_lshl_b32 s{S_T0}, s{S_KS}, 8
    s_add_u32 s{S_XO}, s{S_XO}, s{S_T0}
    s_lshl_b32 s{S_T0}, s{S_Q}, 14
    s_add_u32 s{S_XQ}, s{S_XO}, s{S_T0}
    s_mul_i32 s{S_XM}, s{S_Q}, 1056
    s_lshl_b32 s{S_WO}, s{S_KS}, 17
    s_lshl_b32 s{S_T0}, s{S_Q}, 13
    s_add_u32 s{S_WO}, s{S_WO}, s{S_T0}
    s_lshl_b32 s{S_T0}, s{S_NG}, 7
    s_add_u32 s{S_WO}, s{S_WO}, s{S_T0}
    s_lshl_b32 s{S_WM}, s{S_Q}, 10
    s_add_u32 s{S_WM}, s{S_WM}, {WRING}
    s_lshl_b32 s{S_T1}, s{S_MEM}, 3
    s_add_u32 s{S_COL2}, s{S_T0}, s{S_T1}
    v_bfe_u32 v{V_T2}, v{V_LANE}, 4, 1
    s_and_b32 s{S_T1}, s{S_Q}, 1
    s_lshl_b32 s{S_T1}, s{S_T1}, 1
    v_or_b32 v{V_T2}, s{S_T1}, v{V_T2}
    v_lshrrev_b32 v{V_T3}, 1, v{V_T1}
    v_xor_b32 v{V_T2}, v{V_T3}, v{V_T2}
    v_lshlrev_b32 v{V_OFFW}, 10, v{V_T0}
    v_lshl_add_u32 v{V_OFFW}, v{V_T2}, 5, v{V_OFFW}
    v_and_b32 v{V_T3}, 1, v{V_LANE}
    v_lshl_add_u32 v{V_OFFW}, v{V_T3}, 4, v{V_OFFW}
    s_lshr_b32 s55, s{S_WAVE}, 2
    s_mul_i32 s56, s55, {XARR}
    s_add_u32 s56, s56, s{S_XM}
    s_lshl_b32 s57, s55, 10
    s_add_u32 s57, s57, s{S_XQ}
    s_mul_i32 s58, s55, {10 * 524288}
    s_add_u32 s58, s58, s{S_WO}
    s_mul_i32 s59, s55, {5 * 524288}
    s_sub_u32 s59, s{S_WO}, s59
    s_mul_i32 s60, s55, {STAGE}
    s_add_u32 s60, s60, s{S_WM}
    s_mov_b32 s{S_X+2}, s{S_T2}
    s_mov_b32 s{S_X+3}, 0x20000
    s_mov_b32 s{S_W+2}, 7864320
    s_mov_b32 s{S_W+3}, 0x20000
    s_waitcnt lgkmcnt(0)
    s_barrier
    s_mov_b32 s{S_X}, s{S_KA}
    s_and_b32 s{S_X+1}, s{S_KA+1}, 0xffff
    s_mov_b32 s{S_W}, s{S_KA+2}
    s_and_b32 s{S_W+1}, s{S_KA+3}, 0xffff
    """)
    stamp(a, cfg, 1)
    if cfg.get("prio"):
        a(f"""
        s_cmp_lt_u32 s{S_WAVE}, 4
        s_cbranch_scc0 L_noprio
        s_setprio 2
        L_noprio:
        """)
    if cfg.get("ldelay"):
        a(f"""
        s_cmp_ge_u32 s{S_WAVE}, 4
        s_cbranch_scc0 L_nodelay
        """)
        late_params(a)
        for r in range(cfg["ldelay"]): a("s_nop 7")
        a("L_nodelay:")
    if cfg.get("premall"):
        nst = cfg["premall"]
        a(f"""
        s_cmp_eq_u32 s{S_WAVE}, 7
        s_cbranch_scc0 L_nopremall
        v_lshrrev_b32 v20, 1, v{V_LANE}
        v_min_u32 v20, {5*nst//2 - 1}, v20
        s_mul_i32 s{S_T0}, s2, {5*nst//2}
        v_add_u32 v20, s{S_T0}, v20
        v_lshrrev_b32 v21, 7, v20
        v_and_b32 v20, 127, v20
        v_lshrrev_b32 v22, 5, v20
        v_and_b32 v20, 31, v20
        v_lshlrev_b32 v20, 10, v20
        v_lshl_or_b32 v20, v22, 17, v20
        v_cmp_le_u32 vcc, 15, v21
        v_subrev_u32 v22, 15, v21
        s_nop 0
        v_cndmask_b32 v22, v21, v22, vcc             ; nl
        v_cndmask_b32 v23, 0, 1, vcc                 ; k-step
        v_lshl_or_b32 v20, v23, 15, v20
        v_lshlrev_b32 v23, 1, v22
        v_cmp_gt_u32 vcc, 8, v22
        v_subrev_u32 v21, 15, v23
        s_nop 0
        v_cndmask_b32 v23, v21, v23, vcc             ; tap
        v_lshl_or_b32 v20, v23, 19, v20
        v_and_b32 v21, 1, v{V_LANE}
        v_lshl_or_b32 v20, v21, 6, v20
        s_movk_i32 s{S_T0}, 384
        buffer_load_dword v134, v20, s[{S_W}:{S_W+3}], s{S_T0} offen
        L_nopremall:
        """)
    def first_x():
        for i in range(4):
            a(f"s_add_u32 m0, s56, {i * 4 * 1056}")
            a(f"s_add_u32 s{S_T0}, s57, {i * 65536}")
            a(f"buffer_load_dwordx4 v{V_OFFX}, s[{S_X}:{S_X+3}], s{S_T0} offen lds")
        a(f"""
        s_cmp_eq_u32 s{S_Q}, s55
        s_cbranch_scc0 L_skipx01
        s_mul_i32 s{S_T1}, s55, {XARR}
        s_add_u32 m0, s{S_T1}, {16 * 1056}
        s_lshl_b32 s{S_T1}, s55, 10
        s_add_u32 s{S_T1}, s{S_T1}, s{S_XO}
        s_add_u32 s{S_T0}, s{S_T1}, {16 * 16384}
        buffer_load_dwordx4 v{V_OFFX}, s[{S_X}:{S_X+3}], s{S_T0} offen lds
        L_skipx01:
        """)
    def first_w():
        for j in range(5):
            a(f"s_add_u32 m0, s60, {j * 4096}")
            a(f"s_add_u32 s{S_T0}, s{58 if j < 3 else 59}, {TAPS[j] * 524288}")
            a(f"buffer_load_dwordx4 v{V_OFFW}, s[{S_W}:{S_W+3}], s{S_T0} offen lds")
    if cfg.get("odefer"):
        first_w(); first_x()
    else:
        first_x(); first_w()

def late_params(a):
    srd(a, S_WS, S_KA + 14, 268435456)
    srd(a, S_OUT, S_KA + 10, 2 * 493 * 512 * 2)
    a(f"s_load_dwordx2 s[{S_RAW}:{S_RAW+1}], s[{S_KA+4}:{S_KA+5}], s{S_COL2}")
    a(f"s_load_dwordx2 s[{S_RAW+2}:{S_RAW+3}], s[{S_KA+6}:{S_KA+7}], s{S_COL2}")
    a(f"s_load_dwordx2 s[{S_RAW+4}:{S_RAW+5}], s[{S_KA+8}:{S_KA+9}], s{S_COL2}")
    a(f"s_lshl_b32 s{S_T1}, s{S_GRP}, 7")
    a(f"s_add_u32 s{S_T1}, s{S_T1}, {EPOCH}")
    a(f"s_load_dword s{S_E1}, s[{S_KA+14}:{S_KA+15}], s{S_T1}")

def mall_prefetch(a, cfg):
    a(f"""
    s_cmp_ge_u32 s{S_Q}, 2
    s_cbranch_scc1 L_mallx
    v_lshrrev_b32 v20, 1, v{V_LANE}
    v_min_u32 v20, 29, v20
    v_lshlrev_b32 v20, 10, v20
    v_and_b32 v21, 1, v{V_LANE}
    v_lshl_or_b32 v20, v21, 6, v20
    s_mul_i32 s{S_T0}, s2, 30720
    s_lshl_b32 s{S_T1}, s{S_Q}, 9
    s_add_u32 s{S_T0}, s{S_T0}, s{S_T1}
    s_add_u32 s{S_T0}, s{S_T0}, 384
    buffer_load_dword v134, v20, s[{S_W}:{S_W+3}], s{S_T0} offen
    s_branch L_nomallpf
    L_mallx:
    v_bfe_u32 v20, v{V_LANE}, 1, 3
    s_lshl_b32 s{S_T0}, s2, 3
    v_add_u32 v20, s{S_T0}, v20
    v_min_u32 v20, 1999, v20
    v_lshlrev_b32 v20, 10, v20
    v_and_b32 v21, 1, v{V_LANE}
    v_lshl_or_b32 v20, v21, 6, v20
    s_and_b32 s{S_T0}, s{S_Q}, 1
    s_lshl_b32 s{S_T0}, s{S_T0}, 9
    s_add_u32 s{S_T0}, s{S_T0}, 384
    v_add_u32 v20, s{S_T0}, v20
    global_load_dword v134, v20, s[{S_KA}:{S_KA+1}]
    L_nomallpf:
    """)

def setup_lanes(a):
    T = FT
    a(f"""
    v_and_b32 v{T}, 3, v{V_LANE}
    v_lshlrev_b32 v{FV_RR}, 5, v{T}
    v_add_u32 v{FV_RR}, {RED}, v{FV_RR}
    v_bfe_u32 v{T}, v{V_LANE}, 2, 2
    v_lshrrev_b32 v{T+1}, 4, v{V_LANE}
    v_cmp_eq_u32 vcc, v{T}, v{T+1}
    v_and_b32 v{T+2}, 1, v{V_LANE}
    v_lshlrev_b32 v{T+2}, 4, v{T+2}
    v_mov_b32 v{T+3}, 0x3f80
    v_lshlrev_b32 v{T+3}, v{T+2}, v{T+3}
    v_cndmask_b32 v{T+3}, 0, v{T+3}, vcc
    v_bfe_u32 v{T}, v{V_LANE}, 1, 1
    v_cmp_eq_u32 vcc, 0, v{T}
    v_mov_b32 v{FV_ZERO}, 0
    v_lshlrev_b32 v{FV_PAY}, 3, v{V_LANE}
    v_cndmask_b32 v{FV_A}, 0, v{T+3}, vcc
    v_cndmask_b32 v{FV_A+1}, v{T+3}, 0, vcc
    v_mov_b32 v{FV_A+2}, v{FV_A}
    v_mov_b32 v{FV_A+3}, v{FV_A+1}
    v_lshrrev_b32 v{T}, 4, v{V_LANE}
    v_and_b32 v{T+1}, 1, v{T}
    v_lshrrev_b32 v{T}, 1, v{T}
    v_lshl_or_b32 v{T}, v{T+1}, 1, v{T}
    v_lshlrev_b32 v{T}, 5, v{T}
    s_lshl_b32 s{S_T0}, s{S_WAVE}, 2
    s_add_u32 s{S_T0}, s{S_T0}, {RED}
    v_add_u32 v{FV_RW}, s{S_T0}, v{T}
    s_lshr_b32 s{S_T1}, s{S_WAVE}, 1
    s_and_b32 s{S_T2}, s{S_MEM}, 12
    s_add_u32 s{S_T2}, s{S_T2}, s{S_T1}
    s_lshl_b32 s{S_T2}, s{S_T2}, 7
    s_lshl_b32 s{S_T3}, s{S_GRP}, 11
    s_add_u32 s{S_T2}, s{S_T2}, s{S_T3}
    s_add_u32 s{S_POLL}, s{S_T2}, {FLAGS}
    s_lshl_b32 s{S_T0}, s{S_GRP}, 18
    s_lshl_b32 s{S_T2}, s{S_MEM}, 14
    s_add_u32 s{S_T0}, s{S_T0}, s{S_T2}
    s_lshl_b32 s{S_T2}, s{S_T1}, 12
    s_add_u32 s{S_T0}, s{S_T0}, s{S_T2}
    s_and_b32 s{S_T2}, s{S_WAVE}, 1
    s_lshl_b32 s{S_T3}, s{S_T2}, 9
    s_add_u32 s{S_PAY}, s{S_T0}, s{S_T3}
    s_lshl_b32 s{S_T1}, s{S_T1}, 7
    s_lshl_b32 s{S_T2}, s{S_T2}, 2
    s_add_u32 s{S_T1}, s{S_T1}, s{S_T2}
    v_bfe_u32 v{FV_L}, v{V_LANE}, 1, 4
    v_lshlrev_b32 v{FV_L}, 3, v{FV_L}
    v_lshrrev_b32 v{T+2}, 5, v{V_LANE}
    v_lshl_add_u32 v{FV_L}, v{T+2}, 1, v{FV_L}
    v_and_b32 v{T+2}, 1, v{V_LANE}
    v_add3_u32 v{FV_L}, v{FV_L}, v{T+2}, s{S_T1}
    s_movk_i32 s{S_T3}, 493
    v_cmp_gt_u32 s[{S_VALID}:{S_VALID+1}], s{S_T3}, v{FV_L}
    v_lshlrev_b32 v{FV_OUT}, 10, v{FV_L}
    s_mul_i32 s{S_OUTO}, s{S_BT}, {493*1024}
    s_add_u32 s{S_OUTO}, s{S_OUTO}, s{S_COL2}
    """)
    c1 = 2.302208198144325
    for r in range(2):
        a(f"v_mov_b32 v{FV_K1+r}, {f2h(c1)}")
        a(f"v_mov_b32 v{FV_K2+r}, {f2h(c1*0.044715)}")
        a(f"v_mov_b32 v{FV_ONE+r}, 1.0")

def setup_params(a):
    T = FT
    for c in range(4):
        src = S_RAW + (c >> 1)
        a(f"s_lshl_b32 s{S_T0}, s{src}, 16" if c % 2 == 0 else f"s_and_b32 s{S_T0}, s{src}, 0xffff0000")
        srcb = S_RAW + 4 + (c >> 1)
        a(f"s_lshl_b32 s{S_T1}, s{srcb}, 16" if c % 2 == 0 else f"s_and_b32 s{S_T1}, s{srcb}, 0xffff0000")
        a(f"v_mov_b32 v{FV_C+c}, s{S_T0}")
        a(f"v_mov_b32 v{FV_BETA+c}, s{S_T1}")
    a(f"""
    v_and_b32 v{T}, 3, v{V_LANE}
    v_mov_b32 v{T+1}, s{S_RAW+2}
    v_mov_b32 v{T+2}, s{S_RAW+3}
    v_cmp_gt_u32 vcc, 2, v{T}
    v_and_b32 v{T+3}, 1, v{V_LANE}
    v_lshlrev_b32 v{T+3}, 4, v{T+3}
    v_cndmask_b32 v{T+1}, v{T+2}, v{T+1}, vcc
    v_sub_u32 v{T+3}, 16, v{T+3}
    v_lshlrev_b32 v{T+1}, v{T+3}, v{T+1}
    v_and_b32 v{FV_GAM}, 0xffff0000, v{T+1}
    v_mov_b32 v{FV_E}, s{S_E1}
    """)

def loader(a, cfg):
    def xop(half, par, i): return ("x", half, par, i) if i < 4 else ("x16", half, par)
    def st(s): return [("w", n) for n in range(s * P, (s + 1) * P)]
    XS = cfg.get("xsched", 0)
    E = [xop(1, 0, i) for i in range(5)]; O = [xop(1, 1, i) for i in range(5)]
    if XS == 0:   xs = {2: ([], E[0:2]), 3: ([], E[2:4]), 4: (E[4:5], O[0:1]), 5: ([], O[1:3]), 6: (O[3:5], [])}
    elif XS == 1: xs = {1: ([], E[0:3]), 2: ([], E[3:5] + O[0:1]), 3: ([], O[1:3]), 4: ([], O[3:5])}
    elif XS == 2: xs = {1: ([], E + O)}
    elif XS == 3: xs = {1: ([], E), 2: ([], O[0:2]), 3: ([], O[2:4]), 4: ([], O[4:5])}
    elif XS == 4: xs = {2: ([], E), 3: ([], O)}
    elif XS == 5: xs = {2: ([], E[0:1]), 3: ([], E[1:3]), 4: (E[3:5], []), 5: ([], O[0:2]), 6: (O[2:5], [])}
    elif XS == 6: xs = {3: ([], E[0:3]), 4: (E[3:5], O[0:1]), 5: ([], O[1:3]), 6: (O[3:5], [])}
    def ph(m, mid):
        pre, post = xs.get(m, ([], []))
        return pre + mid + post
    MP = cfg.get("mallpos", 2)
    def mp(m): return [("mallpf",)] if MP == m + 2 and m >= 1 else []
    ST3 = cfg.get("st3late", 0)
    phases = [
        (([("done", op) for op in st(1)] + [("done", xop(0, 1, i)) for i in range(5)]) if cfg.get("odefer") else ([("done", xop(0, 1, i)) for i in range(5)] + [("done", op) for op in st(1)])) + ([("mallpf",)] if MP == 1 else []) + st(2) + [("params",)] + (st(3) if not ST3 else []) + ([("mallpf",)] if MP == 2 else []),
        ph(1, [("arrive",)]) + mp(1),
        (st(3) if ST3 else []) + ph(2, st(4)) + mp(2),
        ph(3, st(5)) + mp(3),
        ph(4, st(6)) + mp(4),
        ph(5, st(7)),
        ph(6, st(8)) + ([("touch",), ("nop_vm",)] if cfg.get("ctouch", 2) == 0 else []),
        st(9) + [("dbgload",)],
        st(10),
        st(11) + ([("touch",), ("nop_vm",)] if cfg.get("ctouch", 2) == 2 else []),
        [("setup",)],
        [("mode",)],
    ]
    PFD = cfg.get("pfd", 0)
    if PFD:
        newp = []
        for m, ph_ in enumerate(phases):
            extra = []
            if m == 0:
                extra = [("pfsetup",)] + [("pf", s_) for s_ in range(4, min(PFD, 12))]
            elif 4 <= m - 1 + PFD <= 11:
                extra = [("pf", m - 1 + PFD)]
            if m == 1: newp.append(extra + ph_)
            elif m >= 9: newp.append(ph_)
            else: newp.append(ph_ + extra)
        phases = newp
    optional = ("x16", "mode", "arrive", "params", "setup", "pfsetup", "pf")
    flat, marks = [], []
    for ph in phases:
        flat += [op[1] if op[0] == "done" else op for op in ph]; marks.append(len(flat))
    def last_required(m):
        req = -1
        for idx, op in enumerate(flat):
            if op[0] == "w" and op[1] // P <= m: req = idx
            if op[0] in ("x", "x16"):
                need = {(0, 1): (2 if cfg.get("odefer") else 1), (1, 0): 5, (1, 1): 7}[(op[1], op[2])]
                if need <= m: req = max(req, idx)
            if op[0] == "dbgload" and m >= 10: req = max(req, idx)
        return req
    for m, ph in enumerate(phases):
        for op in ph:
            if op[0] in ("done", "nop_vm"): continue
            if op[0] == "w": dma_w(a, op[1])
            elif op[0] == "x": dma_x(a, op[1], op[2], op[3])
            elif op[0] == "x16": dma_x16(a, op[1], op[2])
            elif op[0] == "mallpf": mall_prefetch(a, cfg)
            elif op[0] == "params": late_params(a)
            elif op[0] == "pfsetup":
                a(f"""
                s_mul_i32 s{S_T1}, s{S_MT}, 40
                s_mul_i32 s{S_T2}, s{S_Q}, 10
                s_add_u32 s{S_T1}, s{S_T1}, s{S_T2}
                v_min_u32 v20, 9, v{V_LANE}
                v_add_u32 v20, s{S_T1}, v20
                v_lshrrev_b32 v21, 5, v20
                v_and_b32 v20, 31, v20
                v_lshlrev_b32 v20, 10, v20
                s_lshl_b32 s61, s{S_KS}, 17
                s_lshl_b32 s{S_T2}, s{S_NG}, 7
                s_add_u32 s61, s61, s{S_T2}
                s_and_b32 s62, s{S_NG}, {cfg.get("pfmask", 7)}
                """)
                for c in range(3):
                    a(f"""
                    v_add_u32 v22, {5*c}, v21
                    v_lshlrev_b32 v23, 1, v22
                    v_cmp_gt_u32 vcc, 8, v22
                    v_subrev_u32 v25, 15, v23
                    s_nop 0
                    v_cndmask_b32 v23, v25, v23, vcc
                    v_lshl_or_b32 v{26+c}, v23, 19, v20
                    """)
            elif op[0] == "pf":
                s_ = op[1]
                a(f"s_cmp_eq_u32 s62, 3")
                a(f"s_cbranch_scc0 L_nopf{s_}")
                a(f"s_add_u32 s{S_T1}, s61, {(s_ // 3) * 32768}")
                a(f"buffer_load_dword v135, v{26 + s_ % 3}, s[{S_W}:{S_W+3}], s{S_T1} offen")
                a(f"L_nopf{s_}:")
            elif op[0] == "setup":
                setup_lanes(a)
                setup_params(a)
            elif op[0] == "arrive":
                a(f"""
                s_waitcnt lgkmcnt(0)
                s_add_u32 s{S_E1}, s{S_E1}, 1
                s_getreg_b32 s{S_XCC}, hwreg(HW_REG_XCC_ID, 0, 3)
                s_lshl_b32 s{S_ARW}, s{S_E1}, 3
                s_or_b32 s{S_ARW}, s{S_ARW}, s{S_XCC}
                s_lshl_b32 s{S_T2}, s{S_GRP}, 7
                s_add_u32 s{S_ARA}, s{S_T2}, {ARRIVE}
                s_cmp_eq_u32 s{S_Q}, 0
                s_cbranch_scc0 L_noarrive
                s_lshl_b32 s{S_T2}, s{S_MEM}, 2
                s_add_u32 s{S_T2}, s{S_T2}, s{S_ARA}
                v_mov_b32 v{V_T1}, s{S_ARW}
                v_mov_b32 v{V_T2}, 0
                s_mov_b64 exec, 1
                buffer_store_dword v{V_T1}, v{V_T2}, s[{S_WS}:{S_WS+3}], s{S_T2} offen sc1
                s_mov_b64 exec, -1
                L_noarrive:
                """)
            elif op[0] == "touch":
                a(f"""
                v_and_b32 v{V_T1}, 31, v{V_LANE}
                v_lshlrev_b32 v{V_T1}, 7, v{V_T1}
                s_lshl_b32 s{S_T1}, s{S_GRP}, 18
                s_lshl_b32 s{S_T2}, s{S_MEM}, 14
                s_add_u32 s{S_T1}, s{S_T1}, s{S_T2}
                s_lshl_b32 s{S_T2}, s{S_Q}, 12
                s_add_u32 s{S_T1}, s{S_T1}, s{S_T2}
                buffer_load_dword v{V_T0}, v{V_T1}, s[{S_WS}:{S_WS+3}], s{S_T1} offen sc1
                s_mul_i32 s{S_T1}, s{S_BT}, {493*1024}
                s_add_u32 s{S_T1}, s{S_T1}, s{S_COL2}
                v_mov_b32 v20, 0
                buffer_load_dword v21, v20, s[{S_OUT}:{S_OUT+3}], s{S_T1} offen
                """)
            elif op[0] == "dbgload":
                a(f"""
                v_and_b32 v{V_T2}, 15, v{V_LANE}
                v_lshlrev_b32 v{V_T2}, 2, v{V_T2}
                buffer_load_dword v24, v{V_T2}, s[{S_WS}:{S_WS+3}], s{S_ARA} offen sc1
                """)
            elif op[0] == "mode":
                a(f"""
                s_mov_b32 s{S_K}, 0
                s_lshr_b32 s{S_T3}, s{S_ARW}, 3
                L_cntpoll:
                v_lshrrev_b32 v25, 3, v24
                v_cmp_eq_u32 vcc, s{S_T3}, v25
                s_nop 4
                s_cmp_eq_u64 vcc, exec
                s_cbranch_scc1 L_cntok
                s_add_u32 s{S_K}, s{S_K}, 1
                s_cmp_ge_u32 s{S_K}, {POLL_MAX}
                s_cbranch_scc1 L_cntok
                s_sleep 2
                buffer_load_dword v24, v{V_T2}, s[{S_WS}:{S_WS+3}], s{S_ARA} offen sc1
                s_waitcnt vmcnt(0)
                s_branch L_cntpoll
                L_cntok:
                v_cmp_eq_u32 vcc, s{S_ARW}, v24
                s_nop 4
                s_cmp_eq_u64 vcc, exec
                s_cselect_b32 s{S_MODE}, {0 if cfg.get('forceslow') else 1}, 0
                v_mov_b32 v{V_T1}, s{S_MODE}
                v_mov_b32 v{V_T2}, {MODEW}
                s_mov_b64 exec, 1
                ds_write_b32 v{V_T2}, v{V_T1}
                s_mov_b64 exec, -1
                s_waitcnt lgkmcnt(0)
                """)
        pos = marks[m]
        req = last_required(m)
        if m == 0:
            stamp(a, cfg, 2)
            continue
        assert req < pos
        n_after = sum(1 for op in flat[req + 1:pos] if op[0] not in optional)
        a(f"s_waitcnt vmcnt({n_after})")
        if m in (1, 3, 6, 9, 11): stamp(a, cfg, {1: 4, 3: 5, 6: 6, 9: 7, 11: 8}[m])
        a("s_barrier")
        if m == 1 and cfg.get("odefer"):
            idx = max(i for i, op in enumerate(flat) if op[0] in ("x", "x16") and (op[1], op[2]) == (0, 1))
            n_o = sum(1 for op in flat[idx + 1:pos] if op[0] not in optional)
            a(f"s_waitcnt vmcnt({n_o})")
            a("s_barrier")

EXTRAS = {4: [(1, 0), (1, 1), (1, 2)], 5: [(1, 3), (1, 4), (1, 5)], 6: [(1, 6), (1, 7)],
          10: [(0, 0), (0, 1), (0, 2)], 11: [(0, 3), (0, 4), (0, 5)], 12: [(0, 6), (0, 7)]}

ODEFER = False
EXTRAS_D = {6: [(1, 0), (1, 1), (1, 2), (1, 3)], 7: [(1, 4), (1, 5), (1, 6), (1, 7)],
            10: [(0, 0), (0, 1), (0, 2)], 11: [(0, 3), (0, 4), (0, 5)], 12: [(0, 6), (0, 7)]}
def tap_code(a, n):
    EXTRAS = EXTRAS_D if ODEFER else globals()["EXTRAS"]
    par = 0 if n < 8 else 1
    p = n if n < 8 else n - 8
    bank = XE if par == 0 else XO
    wbuf = WB + 4 * (n % 3)
    wnext = WB + 4 * ((n + 1) % 3)
    prev_extras = len(EXTRAS.get(n - 1, []))
    pre = []
    if n in (4, 9, 14):
        pre = [f"s_add_u32 s{S_SG}, s{S_SG}, {STAGE}",
               f"s_cmp_eq_u32 s{S_SG}, {NSTG*STAGE}",
               f"s_cselect_b32 s{S_SG}, 0, s{S_SG}",
               f"v_add_u32 v{V_W}, s{S_SG}, v{V_WL}"]
    reads = []
    if n == 10: reads.append(f"ds_read_b32 v{V_MODE}, v{V_MW}")
    last_p = 6 if par == 0 else 5
    if p <= last_p:
        m = p + 8
        reads.append(f"ds_read_b128 {vr(bank + 4*(m % 9))}, v{V_XC} offset:{x_imm(par, m)}")
    toff = ((n + 1) % P) * 4096
    reads.append(f"ds_read_b64_tr_b16 {vr(wnext,2)}, v{V_W} offset:{toff}")
    reads.append(f"ds_read_b64_tr_b16 {vr(wnext+2,2)}, v{V_W} offset:{toff + 512}")
    for (epar, m) in EXTRAS.get(n, []):
        if epar == 1: reads.append(f"ds_read_b128 {vr(XO + 4*m)}, v{V_XC} offset:{x_imm(1, m)}")
        else: reads.append(f"ds_read_b128 {vr(XE + 4*m)}, v{V_XN} offset:{x_imm(0, m)}")
    post = []
    if n == 14:
        post = [f"s_add_u32 s{S_K}, s{S_K}, 1",
                f"v_mov_b32 v{V_XC}, v{V_XN}",
                f"s_add_u32 s{S_T1}, s{S_K}, 1",
                f"s_lshr_b32 s{S_T2}, s{S_T1}, 1",
                f"s_mul_i32 s{S_T2}, s{S_T2}, {2*XARR}",
                f"s_and_b32 s{S_T1}, s{S_T1}, 1",
                f"s_lshl_b32 s{S_T1}, s{S_T1}, 6",
                f"s_add_u32 s{S_T1}, s{S_T1}, s{S_T2}",
                f"v_add_u32 v{V_XN}, s{S_T1}, v{V_XL}"]
    for x in pre: a(x)
    a(f"s_waitcnt lgkmcnt({prev_extras})")
    ri = 0
    for t in range(8):
        m = p + t
        a(f"v_mfma_f32_16x16x32_bf16 {vr(ACC + 4*t)}, {vr(wbuf)}, {vr(bank + 4*(m % 9))}, {vr(ACC + 4*t)}")
        if t == 0 and n in (4, 9, 14): a("s_barrier")
        if t == 0 and n == 6 and ODEFER:
            a(f"s_cmp_eq_u32 s{S_K}, 0")
            a("s_cbranch_scc0 L_noob")
            a("s_barrier")
            a("L_noob:")
        if t == 3 and n == 8 and ODEFER:
            a("s_waitcnt lgkmcnt(3)")
        if t < 7 and ri < len(reads):
            a(reads[ri]); ri += 1
        if n == 14 and t >= 2:
            for x in post[(t - 2) * 2:(t - 2) * 2 + 2]: a(x)
        if n == 13 and t == 6: a(f"s_cmp_eq_u32 s{S_K}, 3")
    assert ri == len(reads)

def compute(a, cfg):
    late_params(a)
    a(f"""
    v_and_b32 v{V_T0}, 15, v{V_LANE}             ; i / j
    v_lshrrev_b32 v{V_T1}, 4, v{V_LANE}          ; g
    v_mul_u32_u24 v{V_XL}, 1056, v{V_T0}
    v_lshl_add_u32 v{V_XL}, v{V_T1}, 4, v{V_XL}
    v_lshrrev_b32 v{V_T2}, 2, v{V_T0}
    v_lshl_add_u32 v{V_T2}, v{V_T1}, 3, v{V_T2}
    v_lshlrev_b32 v{V_WL}, 7, v{V_T2}
    v_bfe_u32 v{V_T2}, v{V_T0}, 3, 1
    v_and_b32 v{V_T3}, 1, v{V_T1}
    v_lshl_or_b32 v{V_T2}, v{V_T3}, 1, v{V_T2}
    v_xor_b32 v{V_T2}, s{S_Q}, v{V_T2}
    v_lshl_add_u32 v{V_WL}, v{V_T2}, 5, v{V_WL}
    v_and_b32 v{V_T3}, 3, v{V_T0}
    v_lshl_add_u32 v{V_WL}, v{V_T3}, 3, v{V_WL}
    v_add_u32 v{V_WL}, {WRING}, v{V_WL}
    v_mov_b32 v{V_XC}, v{V_XL}
    v_add_u32 v{V_XN}, 64, v{V_XL}
    v_mov_b32 v{V_W}, v{V_WL}
    v_mov_b32 v{V_MW}, {MODEW}
    s_mov_b32 s{S_SG}, 0
    s_mov_b32 s{S_K}, 0
    v_lshlrev_b32 v{V_T1}, 14, v{V_T1}
    v_lshl_add_u32 v{V_STO}, v{V_T0}, 4, v{V_T1}
    s_lshl_b32 s{S_T0}, s{S_Q}, 16
    v_add_u32 v{V_STO}, s{S_T0}, v{V_STO}
    s_lshl_b32 s{S_T0}, s{S_GRP}, 18
    s_lshl_b32 s{S_T1}, s{S_MEM}, 10
    s_add_u32 s{S_STO}, s{S_T0}, s{S_T1}
    s_lshl_b32 s{S_T1}, s{S_Q}, 2
    s_add_u32 s{S_T1}, s{S_T1}, s{S_MT}
    s_lshl_b32 s{S_T1}, s{S_T1}, 7
    s_lshl_b32 s{S_T2}, s{S_KS}, 2
    s_add_u32 s{S_T1}, s{S_T1}, s{S_T2}
    s_lshl_b32 s{S_T2}, s{S_GRP}, 11
    s_add_u32 s{S_T1}, s{S_T1}, s{S_T2}
    s_add_u32 s{S_FLAG}, s{S_T1}, {FLAGS}
    """)
    for r in range(32): a(f"v_mov_b32 v{ACC + r}, 0")
    setup_lanes(a)
    a("s_waitcnt lgkmcnt(0)")
    a(f"s_add_u32 s{S_E1}, s{S_E1}, 1")
    setup_params(a)
    stamp(a, cfg, 2)
    a("s_waitcnt vmcnt(0)")
    stamp(a, cfg, 3)
    a(f"""
    v_mov_b32 v{V_T0}, {CNTW}
    v_mov_b32 v{V_T1}, 1
    s_mov_b64 exec, 1
    ds_add_u32 v{V_T0}, v{V_T1}
    s_mov_b64 exec, -1
    L_b0spin:
    ds_read_b32 v{V_T1}, v{V_T0}
    s_waitcnt lgkmcnt(0)
    v_readfirstlane_b32 s{S_T0}, v{V_T1}
    s_cmp_ge_u32 s{S_T0}, 4
    s_cbranch_scc0 L_b0spin
    """)
    if cfg.get("ctouch", 2) == 1:
        a(f"""
        v_and_b32 v{V_T1}, 31, v{V_LANE}
        v_lshlrev_b32 v{V_T1}, 7, v{V_T1}
        s_lshl_b32 s{S_T1}, s{S_GRP}, 18
        s_lshl_b32 s{S_T2}, s{S_MEM}, 14
        s_add_u32 s{S_T1}, s{S_T1}, s{S_T2}
        s_lshl_b32 s{S_T2}, s{S_Q}, 12
        s_add_u32 s{S_T1}, s{S_T1}, s{S_T2}
        buffer_load_dword v134, v{V_T1}, s[{S_WS}:{S_WS+3}], s{S_T1} offen sc1
        buffer_load_dword v135, v{FV_ZERO}, s[{S_OUT}:{S_OUT+3}], s{S_OUTO} offen
        """)
    if cfg.get("prio") == 1: a("s_setprio 0")
    stamp(a, cfg, 4)
    stamp(a, cfg, 8, True)
    a(f"ds_read_b64_tr_b16 {vr(WB,2)}, v{V_W}")
    a(f"ds_read_b64_tr_b16 {vr(WB+2,2)}, v{V_W} offset:512")
    for m in range(8):
        a(f"ds_read_b128 {vr(XE + 4*m)}, v{V_XC} offset:{x_imm(0, m)}")
    a("L_kloop:")
    for n in range(14): tap_code(a, n)
    a("s_cbranch_scc1 L_lasttap")
    tap_code(a, 14)
    if cfg.get("stamps") == 2:
        a(f"""
        s_memtime s[84:85]
        s_waitcnt lgkmcnt(0)
        s_cmp_eq_u32 s{S_K}, 1
        s_cselect_b32 s96, s84, s96
        s_cmp_eq_u32 s{S_K}, 2
        s_cselect_b32 s97, s84, s97
        s_cmp_eq_u32 s{S_K}, 3
        s_cselect_b32 s98, s84, s98
        """)
    a("s_branch L_kloop")
    a("L_lasttap:")
    n = 14; p = 6; bank = XO; wbuf = WB + 4 * (n % 3)
    T = XE
    def cvt(s):
        out = []
        for e in range(2):
            t = 2 * s + e
            out.append(f"v_cvt_pk_bf16_f32 v{T + 4*s + 2*e}, v{ACC + 4*t}, v{ACC + 4*t + 1}")
            out.append(f"v_cvt_pk_bf16_f32 v{T + 4*s + 2*e + 1}, v{ACC + 4*t + 2}, v{ACC + 4*t + 3}")
        return out
    def store(s, sc):
        if cfg.get("nopayload"): return "s_nop 0"
        return f"buffer_store_dwordx4 {vr(T + 4*s)}, v{V_STO}, s[{S_WS}:{S_WS+3}], s{S_STO} offen offset:{s*256}{sc}"
    a("s_waitcnt lgkmcnt(0)")
    a(f"v_readfirstlane_b32 s{S_MODE}, v{V_MODE}")
    mf = [f"v_mfma_f32_16x16x32_bf16 {vr(ACC + 4*t)}, {vr(wbuf)}, {vr(bank + 4*((p + t) % 9))}, {vr(ACC + 4*t)}" for t in range(8)]
    a(mf[0]); a("s_nop 0"); a(mf[1]); a("s_nop 0"); a(mf[2]); a(f"s_cmp_eq_u32 s{S_MODE}, 1"); a(mf[3])
    a("s_cbranch_scc1 L_fast")
    for lab, sc in (("", " sc1"), ("L_fast:", cfg.get("fastflavor", ""))):
        if lab: a(lab)
        a(mf[4]); a("s_nop 0"); a(mf[5]); a("s_nop 0"); a(mf[6]); a("s_nop 0")
        c0 = cvt(0); a(c0[0]); a(mf[7])
        for x in c0[1:]: a(x)
        a(store(0, sc))
        for x in cvt(1): a(x)
        a(store(1, sc))
        for x in cvt(2): a(x)
        a(store(2, sc))
        for x in cvt(3): a(x)
        a(store(3, sc))
        stamp(a, cfg, 9, True)
        stamp(a, cfg, 5)
        a("s_waitcnt vmcnt(0)")
        a("s_mov_b64 exec, 1")
        a(f"buffer_store_dword v{FV_E}, v{FV_ZERO}, s[{S_WS}:{S_WS+3}], s{S_FLAG} offen{' sc1' if sc == ' sc1' else ''}")
        a("s_mov_b64 exec, -1")
        stamp(a, cfg, 7)
        if not lab: a("s_branch L_final")

def fold_reduce(a, r, ldsoff):
    a(f"""
    s_nop 1
    v_permlane32_swap_b32 v{r}, v{r+1}
    v_permlane32_swap_b32 v{r+2}, v{r+3}
    v_add_f32 v{r}, v{r}, v{r+1}
    v_add_f32 v{r+2}, v{r+2}, v{r+3}
    s_nop 1
    v_permlane16_swap_b32 v{r}, v{r+2}
    v_add_f32 v{r}, v{r}, v{r+2}
    """)
    for sh in (8, 4, 2, 1):
        a("s_nop 1")
        a(f"v_add_f32_dpp v{r}, v{r}, v{r} row_ror:{sh} row_mask:0xf bank_mask:0xf")
    a(f"""
    s_mov_b32 exec_lo, 0x00010001
    s_mov_b32 exec_hi, 0x00010001
    ds_write_b32 v{FV_RW}, v{r} offset:{ldsoff}
    s_mov_b64 exec, -1
    s_waitcnt lgkmcnt(0)
    s_barrier
    ds_read_b128 {vr(r)}, v{FV_RR} offset:{ldsoff}
    ds_read_b128 {vr(r+4)}, v{FV_RR} offset:{ldsoff + 16}
    s_waitcnt lgkmcnt(0)
    v_pk_add_f32 {vr(r,2)}, {vr(r,2)}, {vr(r+2,2)}
    v_pk_add_f32 {vr(r+4,2)}, {vr(r+4,2)}, {vr(r+6,2)}
    v_pk_add_f32 {vr(r,2)}, {vr(r,2)}, {vr(r+4,2)}
    v_add_f32 v{r}, v{r}, v{r+1}
    """)

def final_phase(a, cfg):
    a("L_final:")
    if cfg.get("poll2"):
        def chk(r):
            return f"""
            v_xor_b32 v{r}, s{S_E1}, v{r}
            v_xor_b32 v{r+1}, s{S_E1}, v{r+1}
            v_xor_b32 v{r+2}, s{S_E1}, v{r+2}
            v_xor_b32 v{r+3}, s{S_E1}, v{r+3}
            v_or3_b32 v{r}, v{r}, v{r+1}, v{r+2}
            v_or_b32 v{r}, v{r}, v{r+3}
            s_add_u32 s{S_K}, s{S_K}, 1
            v_readfirstlane_b32 s{S_T1}, v{r}
            s_cmp_eq_u32 s{S_T1}, 0
            s_cbranch_scc1 L_flagok
            """
        ld = lambda r: f"buffer_load_dwordx4 v[{r}:{r+3}], v{FV_ZERO}, s[{S_WS}:{S_WS+3}], s{S_POLL} offen sc1"
        a(f"s_mov_b32 s{S_K}, 0")
        a(ld(20))
        a("L_flagpoll:")
        a(ld(24)); a("s_waitcnt vmcnt(1)"); a(chk(20))
        a(ld(20)); a("s_waitcnt vmcnt(1)"); a(chk(24))
        a(f"""
        s_cmp_ge_u32 s{S_K}, {POLL_MAX}
        s_cbranch_scc0 L_flagpoll
        L_flagok:
        """)
    else:
        a(f"""
        s_mov_b32 s{S_K}, 0
        L_flagpoll:
        buffer_load_dwordx4 v[20:23], v{FV_ZERO}, s[{S_WS}:{S_WS+3}], s{S_POLL} offen sc1
        s_waitcnt vmcnt(0)
        v_xor_b32 v20, s{S_E1}, v20
        v_xor_b32 v21, s{S_E1}, v21
        v_xor_b32 v22, s{S_E1}, v22
        v_xor_b32 v23, s{S_E1}, v23
        v_or3_b32 v20, v20, v21, v22
        v_or_b32 v20, v20, v23
        s_add_u32 s{S_K}, s{S_K}, 1
        v_readfirstlane_b32 s{S_T1}, v20
        s_cmp_eq_u32 s{S_T1}, 0
        s_cbranch_scc1 L_flagok
        s_cmp_ge_u32 s{S_K}, {POLL_MAX}
        s_cbranch_scc1 L_flagok
        s_branch L_flagpoll
        L_flagok:
        """)
    stamp(a, cfg, 10)
    for ks in range(4):
        a(f"buffer_load_dwordx2 {vr(F_IN + 2*ks, 2)}, v{FV_PAY}, s[{S_WS}:{S_WS+3}], s{S_PAY} offen offset:{ks*1024} sc1")
    a("s_waitcnt vmcnt(2)")
    a(f"v_mfma_f32_16x16x32_bf16 {vr(F_Y)}, {vr(FV_A)}, {vr(F_IN)}, {vr(FV_C)}")
    a("s_waitcnt vmcnt(0)")
    stamp(a, cfg, 11)
    a(f"v_mfma_f32_16x16x32_bf16 {vr(F_Y)}, {vr(FV_A)}, {vr(F_IN+4)}, {vr(F_Y)}")
    if cfg.get("wbl2"):
        mask = {1: 15, 2: 3, 3: 0}[cfg["wbl2"]]
        a(f"""
        s_and_b32 s{S_T0}, s{S_MEM}, {mask}
        s_or_b32 s{S_T0}, s{S_T0}, s{S_WAVE}
        s_cmp_eq_u32 s{S_T0}, 0
        s_cbranch_scc0 L_nowb
        buffer_wbl2 sc1
        L_nowb:
        """)
    R = F_T
    Q = FV_R2
    a("s_nop 7")
    if cfg.get("twopass"):
        for c in range(4): a(f"v_cndmask_b32 v{R+c}, 0, v{F_Y+c}, s[{S_VALID}:{S_VALID+1}]")
        fold_reduce(a, R, 0)
        a(f"v_mul_f32 v{R}, {f2h(1/493)}, v{R}")
        a("s_nop 1")
        for c in range(4):
            a(f"v_subrev_f32_dpp v{F_Y+c}, v{R}, v{F_Y+c} quad_perm:[{c},{c},{c},{c}] row_mask:0xf bank_mask:0xf")
        a(f"s_mov_b64 exec, s[{S_VALID}:{S_VALID+1}]")
        for c in range(4): a(f"v_mul_f32 v{FV_R2+c}, v{F_Y+c}, v{F_Y+c}")
        a("s_mov_b64 exec, -1")
        fold_reduce(a, FV_R2, 128)
        a(f"v_mov_b32 v{R+1}, {f2h(1e-5)}")
        a(f"v_fmac_f32 v{R+1}, {f2h(1/493)}, v{FV_R2}")
    else:
        for c in range(4): a(f"v_cndmask_b32 v{R+c}, 0, v{F_Y+c}, s[{S_VALID}:{S_VALID+1}]")
        for c in range(4): a(f"v_mul_f32 v{Q+c}, v{R+c}, v{R+c}")
        a(f"""
        v_permlane32_swap_b32 v{R}, v{R+1}
        v_permlane32_swap_b32 v{R+2}, v{R+3}
        v_permlane32_swap_b32 v{Q}, v{Q+1}
        v_permlane32_swap_b32 v{Q+2}, v{Q+3}
        v_add_f32 v{R}, v{R}, v{R+1}
        v_add_f32 v{R+2}, v{R+2}, v{R+3}
        v_add_f32 v{Q}, v{Q}, v{Q+1}
        v_add_f32 v{Q+2}, v{Q+2}, v{Q+3}
        s_nop 0
        v_permlane16_swap_b32 v{R}, v{R+2}
        v_permlane16_swap_b32 v{Q}, v{Q+2}
        v_add_f32 v{R}, v{R}, v{R+2}
        v_add_f32 v{Q}, v{Q}, v{Q+2}
        """)
        for sh in (8, 4, 2, 1):
            a("s_nop 0")
            a(f"v_add_f32_dpp v{R}, v{R}, v{R} row_ror:{sh} row_mask:0xf bank_mask:0xf")
            a(f"v_add_f32_dpp v{Q}, v{Q}, v{Q} row_ror:{sh} row_mask:0xf bank_mask:0xf")
        a(f"""
        s_mov_b32 exec_lo, 0x00010001
        s_mov_b32 exec_hi, 0x00010001
        ds_write_b32 v{FV_RW}, v{R}
        ds_write_b32 v{FV_RW}, v{Q} offset:128
        s_mov_b64 exec, -1
        s_waitcnt lgkmcnt(0)
        s_barrier
        ds_read_b128 {vr(R)}, v{FV_RR}
        ds_read_b128 {vr(R+4)}, v{FV_RR} offset:16
        ds_read_b128 {vr(Q)}, v{FV_RR} offset:128
        ds_read_b128 {vr(Q+4)}, v{FV_RR} offset:144
        s_waitcnt lgkmcnt(2)
        v_pk_add_f32 {vr(R,2)}, {vr(R,2)}, {vr(R+2,2)}
        v_pk_add_f32 {vr(R+4,2)}, {vr(R+4,2)}, {vr(R+6,2)}
        s_waitcnt lgkmcnt(0)
        v_pk_add_f32 {vr(Q,2)}, {vr(Q,2)}, {vr(Q+2,2)}
        v_pk_add_f32 {vr(Q+4,2)}, {vr(Q+4,2)}, {vr(Q+6,2)}
        v_pk_add_f32 {vr(R,2)}, {vr(R,2)}, {vr(R+4,2)}
        v_pk_add_f32 {vr(Q,2)}, {vr(Q,2)}, {vr(Q+4,2)}
        v_add_f32 v{R}, v{R}, v{R+1}
        v_add_f32 v{Q}, v{Q}, v{Q+1}
        v_mul_f32 v{R}, {f2h(1/493)}, v{R}                 ; mean
        v_mul_f32 v{Q}, {f2h(1/493)}, v{Q}                 ; E[y^2]
        v_mul_f32 v{R+2}, v{R}, v{R}                       ; mean^2
        v_sub_f32 v{Q}, v{Q}, v{R+2}                       ; variance
        v_mul_f32 v{R+3}, {f2h(256.0)}, v{Q}
        v_cmp_gt_f32 vcc, v{R+2}, v{R+3}
        """)
        for c in range(4):
            a(f"v_subrev_f32_dpp v{F_Y+c}, v{R}, v{F_Y+c} quad_perm:[{c},{c},{c},{c}] row_mask:0xf bank_mask:0xf")
        a(f"""
        s_cmp_lg_u64 vcc, 0
        s_cbranch_scc0 L_varok
        """)
        for c in range(4): a(f"v_mul_f32 v{Q+c}, v{F_Y+c}, v{F_Y+c}")
        for c in range(4): a(f"v_cndmask_b32 v{Q+c}, 0, v{Q+c}, s[{S_VALID}:{S_VALID+1}]")
        fold_reduce(a, Q, 384)
        a(f"v_mul_f32 v{Q}, {f2h(1/493)}, v{Q}")
        a("L_varok:")
        a(f"v_add_f32 v{R+1}, {f2h(1e-5)}, v{Q}")
    a(f"v_rsq_f32 v{R+1}, v{R+1}")
    a("s_nop 0")
    a(f"v_mul_f32 v{R+1}, v{R+1}, v{FV_GAM}")
    a("s_nop 1")
    for c in range(4):
        a(f"v_fmac_f32_dpp v{FV_BETA+c}, v{R+1}, v{F_Y+c} quad_perm:[{c},{c},{c},{c}] row_mask:0xf bank_mask:0xf")
    X = FV_BETA
    Z = R + 2
    for c in (0, 2): a(f"v_pk_mul_f32 {vr(Z+c,2)}, {vr(X+c,2)}, {vr(X+c,2)}")
    for c in (0, 2): a(f"v_pk_fma_f32 {vr(Z+c,2)}, {vr(Z+c,2)}, {vr(FV_K2,2)}, {vr(FV_K1,2)}")
    for c in (0, 2): a(f"v_pk_mul_f32 {vr(Z+c,2)}, {vr(X+c,2)}, {vr(Z+c,2)}")
    for c in range(4): a(f"v_exp_f32 v{Z+c}, -v{Z+c}")
    a("s_nop 0")
    for c in (0, 2): a(f"v_pk_add_f32 {vr(Z+c,2)}, {vr(Z+c,2)}, {vr(FV_ONE,2)}")
    for c in range(4): a(f"v_rcp_f32 v{Z+c}, v{Z+c}")
    a("s_nop 0")
    for c in (0, 2): a(f"v_pk_mul_f32 {vr(X+c,2)}, {vr(X+c,2)}, {vr(Z+c,2)}")
    a(f"v_cvt_pk_bf16_f32 v{Z}, v{X}, v{X+1}")
    a(f"v_cvt_pk_bf16_f32 v{Z+1}, v{X+2}, v{X+3}")
    a(f"s_mov_b64 exec, s[{S_VALID}:{S_VALID+1}]")
    a(f"buffer_store_dwordx2 {vr(Z,2)}, v{FV_OUT}, s[{S_OUT}:{S_OUT+3}], s{S_OUTO} offen")
    a(f"""
    s_or_b32 s{S_T0}, s{S_MEM}, s{S_WAVE}
    s_cmp_eq_u32 s{S_T0}, 0
    s_cbranch_scc0 L_noepoch
    s_lshl_b32 s{S_T1}, s{S_GRP}, 7
    s_add_u32 s{S_T1}, s{S_T1}, {EPOCH}
    s_mov_b64 exec, 1
    buffer_store_dword v{FV_E}, v{FV_ZERO}, s[{S_WS}:{S_WS+3}], s{S_T1} offen
    L_noepoch:
    """)
    stamp(a, cfg, 12)
    if cfg.get("stamps"): a("s_waitcnt vmcnt(0)")
    stamp(a, cfg, 13)
    stamp_flush(a, cfg)

HEADER = open("cdna_kernels/" + NAME + ".s.ref").read().split("; Override")[0]

def gen(cfg):
    global ODEFER
    ODEFER = bool(cfg.get("odefer"))
    a = A()
    out = HEADER
    out += """;
;  * y[b,l,:] = sum_{tap,c} x[b,2l+tap,c] w[tap,c,:] as an implicit GEMM.  Workgroup = (batch, 64 output columns,
;    partials go through that XCD's L2 (plain stores, L1-bypassing loads), otherwise write-through (sc1) stores.
"""
    out += f"; @launch grid=(256,1,1) block=(512,1,1) lds={LDS_BYTES}\n"
    a('.amdgcn_target "amdgcn-amd-amdhsa--gfx950"')
    a(".text")
    a(f".globl {KNAME}\n.p2align 8\n.type {KNAME},@function\n{KNAME}:")
    prologue(a, cfg)
    a(f"s_cmp_ge_u32 s{S_WAVE}, 4")
    a("s_cbranch_scc1 L_loader")
    compute(a, cfg)
    final_phase(a, cfg)
    if cfg.get("probe"):
        idx = cfg["probe"]
        a(f"""
        s_cmp_ge_u32 s{S_WAVE}, 4
        s_cbranch_scc1 L_noprobe
        {"s_sub_u32 s84, s95, s94" if idx == 89 else f"s_sub_u32 s84, s{86+idx}, s86"}
        {"s_lshr_b32 s84, s84, 2" if idx == 89 else "s_mul_i32 s84, s84, 4"}
        s_memrealtime s[96:97]
        s_waitcnt lgkmcnt(0)
        s_add_u32 s84, s84, s96
        L_probe:
        s_memrealtime s[96:97]
        s_waitcnt lgkmcnt(0)
        s_sub_u32 s96, s96, s84
        s_cmp_lt_i32 s96, 0
        s_cbranch_scc1 L_probe
        L_noprobe:
        """)
    if cfg.get("pad"):
        a(f"""
        s_waitcnt vmcnt(0) lgkmcnt(0)
        L_pad:
        s_memrealtime s[96:97]
        s_waitcnt lgkmcnt(0)
        s_sub_u32 s96, s96, s98
        s_cmp_lt_u32 s96, {cfg['pad']}
        s_cbranch_scc1 L_pad
        """)
    a("s_endpgm")
    a("L_loader:")
    loader(a, cfg)
    stamp(a, cfg, 9)
    a("s_branch L_final")
    a("L_end:")
    a("s_endpgm")
    out += a.text()
    out += f""".section .rodata,"a"
.p2align 6
.amdhsa_kernel {KNAME}
  .amdhsa_next_free_vgpr {NVGPR}
  .amdhsa_next_free_sgpr 102
  .amdhsa_accum_offset {NVGPR}
  .amdhsa_group_segment_fixed_size 0
  .amdhsa_kernarg_size 64
  .amdhsa_user_sgpr_count 2
  .amdhsa_user_sgpr_kernarg_segment_ptr 1
  .amdhsa_system_sgpr_workgroup_id_x 1
.end_amdhsa_kernel
"""
    return out

if __name__ == "__main__":
    ap = argparse.ArgumentParser()
    ap.add_argument("-o", default="/dev/stdout")
    ap.add_argument("--stamps", type=int, nargs="?", const=1, default=0)
    ap.add_argument("--map", type=int, default=1)
    ap.add_argument("--forceslow", action="store_true")
    ap.add_argument("--pad", type=int, default=0)
    ap.add_argument("--probe", type=int, default=0)
    ap.add_argument("--fastflavor", type=str, default="")
    ap.add_argument("--nopayload", action="store_true")
    ap.add_argument("--wbl2", type=int, default=0)
    ap.add_argument("--mallw", type=int, default=2)
    ap.add_argument("--mallx", type=int, default=1)
    ap.add_argument("--mallpos", type=int, default=2)
    ap.add_argument("--xsched", type=int, default=0)
    ap.add_argument("--st3late", type=int, default=0)
    ap.add_argument("--ctouch", type=int, default=2)
    ap.add_argument("--twopass", type=int, default=0)
    ap.add_argument("--prio", type=int, default=0)
    ap.add_argument("--odefer", type=int, default=1)
    ap.add_argument("--nocodepf", type=int, default=0)
    ap.add_argument("--pfd", type=int, default=0)
    ap.add_argument("--pfmask", type=int, default=7)
    ap.add_argument("--poll2", type=int, default=1)
    ap.add_argument("--pkgelu", type=int, default=1)
    ap.add_argument("--ldelay", type=int, default=0)
    ap.add_argument("--premall", type=int, default=4)
    args = ap.parse_args()
    if args.probe: args.stamps = 1
    cfg = vars(args)
    open(args.o, "w").write(gen(cfg))
```

```python
import sys, argparse, struct

NAME = "standalone__self_sup_conv_stem_hubert__speech"
KNAME = NAME + "_kernel"

XARR = 17 * 1056
WRING = 4 * XARR
P = 5
NSTG = 4
STAGE = P * 4096
RED = WRING + NSTG * STAGE
MODEW = RED + 256
CNTW = RED + 260
LDS_BYTES = RED + 512
TAPS = [0, 2, 4, 6, 8, 10, 12, 14, 1, 3, 5, 7, 9, 11, 13]
INBOX_GROUP = 16 * 16 * 1024
FLAGS = 16 * INBOX_GROUP
EPOCH = FLAGS + 16 * 2048
ARRIVE = EPOCH + 16 * 128
STAMPS = 8 << 20
POLL_MAX = 200000

def f2h(x): return hex(struct.unpack('<I', struct.pack('<f', x))[0])

class A:
    def __init__(self): self.l = []
    def __call__(self, s):
        for x in s.strip("\n").split("\n"):
            x = x.strip()
            if x: self.l.append(x)
    def text(self):
        out = []
        for x in self.l:
            if x.endswith(":") or x.startswith(".") or x.startswith(";"): out.append(x)
            else: out.append("    " + x)
        return "\n".join(out) + "\n"

S_RAW = 4
S_POLL, S_PAY, S_FLAG = 3, 10, 11
S_X, S_W, S_WS, S_OUT = 12, 16, 20, 48
S_OUTO, S_STO = 24, 25
S_BT, S_NG, S_MT, S_KS, S_MEM, S_GRP, S_WAVE, S_Q = 26, 27, 28, 29, 30, 31, 32, 33
S_XO, S_XQ, S_XM, S_WO, S_WM = 34, 35, 36, 37, 38
S_COL2 = 39
S_T0, S_T1, S_T2, S_T3 = 40, 41, 42, 43
S_SG, S_K, S_MODE, S_XCC = 44, 45, 46, 47
S_E1, S_ARW, S_ARA = 52, 53, 54
S_KA = 64
S_VALID = 80
V_LANE, V_OFFX, V_OFFW = 1, 2, 3
V_XL, V_WL, V_XC, V_XN, V_W, V_MODE = 4, 5, 6, 7, 8, 9
V_T0, V_T1, V_T2, V_T3 = 10, 11, 12, 13
V_STO, V_MW = 14, 15
ACC = 16
XE = 48
XO = 84
WB = 120
V_PF0, V_PF1 = 132, 133
FV_A, FV_C, FV_BETA, FV_R2 = 136, 140, 144, 148
FV_GAM, FV_PAY, FV_ZERO, FV_OUT, FV_RW, FV_RR, FV_L, FV_E = 156, 157, 158, 159, 160, 161, 162, 163
FT = 164
FV_K1, FV_K2, FV_ONE = 168, 170, 172
NVGPR = 176
F_Y, F_IN, F_T = 16, 40, 28

def stamp(a, cfg, idx, clk=False):
    if not cfg.get("stamps"): return
    if cfg.get("stamps") == 2 and idx >= 10: return
    a(f"{'s_memtime' if clk else 's_memrealtime'} s[84:85]")
    a("s_waitcnt lgkmcnt(0)")
    a(f"s_mov_b32 s{86+idx}, s84")
def stamp_flush(a, cfg):
    if not cfg.get("stamps") or cfg.get("probe"): return
    a("s_mov_b64 exec, -1")
    a(f"s_lshl_b32 s84, s2, 3")
    a(f"s_add_u32 s84, s84, s{S_WAVE}")
    a(f"s_lshl_b32 s84, s84, 6")
    a(f"s_add_u32 s84, s84, {STAMPS}")
    a(f"v_mov_b32 v0, 0")
    for i in range(16): a(f"v_mov_b32 v{100+i}, s{86+i}")
    for i in range(4):
        a(f"buffer_store_dwordx4 v[{100+4*i}:{103+4*i}], v0, s[{S_WS}:{S_WS+3}], s84 offen offset:{16*i}")

def vr(b, n=4): return f"v[{b}:{b+n-1}]"

def srd(a, base, ptr, nbytes):
    a(f"s_mov_b32 s{base}, s{ptr}")
    a(f"s_and_b32 s{base+1}, s{ptr+1}, 0xffff")
    if isinstance(nbytes, int): a(f"s_mov_b32 s{base+2}, {nbytes}")
    else: a(nbytes)
    a(f"s_mov_b32 s{base+3}, 0x20000")

def dma_x(a, half, par, i):
    arr = (2 * half + par) * XARR
    if i < 4:
        a(f"s_add_u32 m0, s{S_XM}, {arr + i * 4 * 1056}")
        a(f"s_add_u32 s{S_T0}, s{S_XQ}, {i * 65536 + par * 1024 + half * 128}")
    else:
        a(f"s_mov_b32 m0, {arr + 16 * 1056}")
        a(f"s_add_u32 s{S_T0}, s{S_XO}, {16 * 16384 + par * 1024 + half * 128}")
    a(f"buffer_load_dwordx4 v{V_OFFX}, s[{S_X}:{S_X+3}], s{S_T0} offen lds")

def dma_x16(a, half, par):
    arr = 2 * half + par
    lab = f"L_skipx{arr}"
    a(f"s_cmp_eq_u32 s{S_Q}, {arr}")
    a(f"s_cbranch_scc0 {lab}")
    dma_x(a, half, par, 4)
    a(f"{lab}:")

def dma_w(a, n):
    k, nl = divmod(n, 15)
    tap = TAPS[nl]
    slot = ((n // P) % NSTG) * STAGE + (n % P) * 4096
    a(f"s_add_u32 m0, s{S_WM}, {slot}")
    a(f"s_add_u32 s{S_T0}, s{S_WO}, {(tap * 512 + k * 32) * 1024}")
    a(f"buffer_load_dwordx4 v{V_OFFW}, s[{S_W}:{S_W+3}], s{S_T0} offen lds")

def x_imm(par, m): return par * XARR + (m >> 3) * 1056 + (m & 7) * 128

def prologue(a, cfg):
    a(f"""
    s_cmp_ge_u32 s2, 256
    s_cbranch_scc1 L_end
    """)
    stamp(a, cfg, 0)
    if cfg.get("pad"): a("s_memrealtime s[98:99]")
    a(f"s_load_dwordx16 s[{S_KA}:{S_KA+15}], s[0:1], 0")
    if not cfg.get("nocodepf"):
        a(f"""
        s_getpc_b64 s[4:5]
        L_pc:
        v_lshrrev_b32 v{V_PF0}, 6, v0
        v_and_b32 v{V_PF1}, 7, v0
        v_lshl_add_u32 v{V_PF0}, v{V_PF0}, 3, v{V_PF1}
        v_lshlrev_b32 v{V_PF0}, 7, v{V_PF0}
        s_sub_u32 s4, s4, L_pc-{KNAME}
        s_subb_u32 s5, s5, 0
        v_min_u32 v{V_PF0}, L_end-{KNAME}, v{V_PF0}
        global_load_dword v{V_PF1}, v{V_PF0}, s[4:5]
        """)
    a(f"""
    v_mov_b32 v{V_T0}, {CNTW}
    v_mov_b32 v{V_T1}, 0
    ds_write_b32 v{V_T0}, v{V_T1}
    """)
    if cfg.get("map", 1) == 1:
        a(f"""
        s_and_b32 s24, s2, 7
        s_lshr_b32 s25, s2, 3
        s_and_b32 s{S_BT}, s24, 1
        s_and_b32 s{S_NG}, s24, 6
        s_lshr_b32 s{S_T0}, s25, 4
        s_add_u32 s{S_NG}, s{S_NG}, s{S_T0}
        """)
    elif cfg.get("map") == 3:
        a(f"""
        s_lshr_b32 s24, s2, 3
        s_and_b32 s{S_NG}, s2, 4
        s_and_b32 s{S_T0}, s24, 3
        s_add_u32 s{S_NG}, s{S_NG}, s{S_T0}
        s_lshr_b32 s{S_BT}, s24, 4
        s_and_b32 s25, s24, 12
        s_and_b32 s{S_T0}, s2, 3
        s_or_b32 s25, s25, s{S_T0}
        """)
    else:
        a(f"""
        s_lshr_b32 s24, s2, 4
        s_and_b32 s25, s2, 15
        s_and_b32 s{S_BT}, s24, 1
        s_lshr_b32 s{S_NG}, s24, 1
        """)
    a(f"""
    s_lshr_b32 s{S_MT}, s25, 2
    s_and_b32 s{S_MT}, s{S_MT}, 3
    s_and_b32 s{S_KS}, s25, 3
    s_and_b32 s{S_MEM}, s25, 15
    s_lshl_b32 s{S_GRP}, s{S_BT}, 3
    s_add_u32 s{S_GRP}, s{S_GRP}, s{S_NG}
    v_lshrrev_b32 v{V_T0}, 6, v0
    v_and_b32 v{V_LANE}, 63, v0
    v_readfirstlane_b32 s{S_WAVE}, v{V_T0}
    v_lshrrev_b32 v{V_T0}, 3, v{V_LANE}          ; lane>>3
    v_and_b32 v{V_T1}, 7, v{V_LANE}              ; lane&7
    v_lshlrev_b32 v{V_OFFX}, 11, v{V_T0}
    v_lshl_add_u32 v{V_OFFX}, v{V_T1}, 4, v{V_OFFX}
    s_and_b32 s{S_Q}, s{S_WAVE}, 3
    s_mul_i32 s{S_XO}, s{S_BT}, 1024000
    s_add_u32 s{S_T2}, s{S_XO}, 1024000
    s_lshl_b32 s{S_T0}, s{S_MT}, 18
    s_add_u32 s{S_XO}, s{S_XO}, s{S_T0}
    s_lshl_b32 s{S_T0}, s{S_KS}, 8
    s_add_u32 s{S_XO}, s{S_XO}, s{S_T0}
    s_lshl_b32 s{S_T0}, s{S_Q}, 14
    s_add_u32 s{S_XQ}, s{S_XO}, s{S_T0}
    s_mul_i32 s{S_XM}, s{S_Q}, 1056
    s_lshl_b32 s{S_WO}, s{S_KS}, 17
    s_lshl_b32 s{S_T0}, s{S_Q}, 13
    s_add_u32 s{S_WO}, s{S_WO}, s{S_T0}
    s_lshl_b32 s{S_T0}, s{S_NG}, 7
    s_add_u32 s{S_WO}, s{S_WO}, s{S_T0}
    s_lshl_b32 s{S_WM}, s{S_Q}, 10
    s_add_u32 s{S_WM}, s{S_WM}, {WRING}
    s_lshl_b32 s{S_T1}, s{S_MEM}, 3
    s_add_u32 s{S_COL2}, s{S_T0}, s{S_T1}
    v_bfe_u32 v{V_T2}, v{V_LANE}, 4, 1
    s_and_b32 s{S_T1}, s{S_Q}, 1
    s_lshl_b32 s{S_T1}, s{S_T1}, 1
    v_or_b32 v{V_T2}, s{S_T1}, v{V_T2}
    v_lshrrev_b32 v{V_T3}, 1, v{V_T1}
    v_xor_b32 v{V_T2}, v{V_T3}, v{V_T2}
    v_lshlrev_b32 v{V_OFFW}, 10, v{V_T0}
    v_lshl_add_u32 v{V_OFFW}, v{V_T2}, 5, v{V_OFFW}
    v_and_b32 v{V_T3}, 1, v{V_LANE}
    v_lshl_add_u32 v{V_OFFW}, v{V_T3}, 4, v{V_OFFW}
    s_lshr_b32 s55, s{S_WAVE}, 2
    s_mul_i32 s56, s55, {XARR}
    s_add_u32 s56, s56, s{S_XM}
    s_lshl_b32 s57, s55, 10
    s_add_u32 s57, s57, s{S_XQ}
    s_mul_i32 s58, s55, {10 * 524288}
    s_add_u32 s58, s58, s{S_WO}
    s_mul_i32 s59, s55, {5 * 524288}
    s_sub_u32 s59, s{S_WO}, s59
    s_mul_i32 s60, s55, {STAGE}
    s_add_u32 s60, s60, s{S_WM}
    s_mov_b32 s{S_X+2}, s{S_T2}
    s_mov_b32 s{S_X+3}, 0x20000
    s_mov_b32 s{S_W+2}, 7864320
    s_mov_b32 s{S_W+3}, 0x20000
    """)
    if cfg.get("premall"):
        nst = cfg["premall"]
        a(f"""
        v_mov_b32 v20, 0
        s_cmp_eq_u32 s{S_WAVE}, 7
        s_cbranch_scc0 L_nopremall
        v_lshrrev_b32 v20, 1, v{V_LANE}
        v_min_u32 v20, {5*nst//2 - 1}, v20
        s_mul_i32 s{S_T0}, s2, {5*nst//2}
        v_add_u32 v20, s{S_T0}, v20
        v_lshrrev_b32 v21, 7, v20
        v_and_b32 v20, 127, v20
        v_lshrrev_b32 v22, 5, v20
        v_and_b32 v20, 31, v20
        v_lshlrev_b32 v20, 10, v20
        v_lshl_or_b32 v20, v22, 17, v20
        v_cmp_le_u32 vcc, 15, v21
        v_subrev_u32 v22, 15, v21
        s_nop 0
        v_cndmask_b32 v22, v21, v22, vcc             ; nl
        v_cndmask_b32 v23, 0, 1, vcc                 ; k-step
        v_lshl_or_b32 v20, v23, 15, v20
        v_lshlrev_b32 v23, 1, v22
        v_cmp_gt_u32 vcc, 8, v22
        v_subrev_u32 v21, 15, v23
        s_nop 0
        v_cndmask_b32 v23, v21, v23, vcc             ; tap
        v_lshl_or_b32 v20, v23, 19, v20
        v_and_b32 v21, 1, v{V_LANE}
        v_lshl_or_b32 v20, v21, 6, v20
        L_nopremall:
        """)
    a(f"""
    s_waitcnt lgkmcnt(0)
    s_barrier
    s_mov_b32 s{S_X}, s{S_KA}
    s_and_b32 s{S_X+1}, s{S_KA+1}, 0xffff
    s_mov_b32 s{S_W}, s{S_KA+2}
    s_and_b32 s{S_W+1}, s{S_KA+3}, 0xffff
    """)
    stamp(a, cfg, 1)
    if cfg.get("prio"):
        a(f"""
        s_cmp_lt_u32 s{S_WAVE}, 4
        s_cbranch_scc0 L_noprio
        s_setprio 2
        L_noprio:
        """)
    if cfg.get("ldelay"):
        a(f"""
        s_cmp_ge_u32 s{S_WAVE}, 4
        s_cbranch_scc0 L_nodelay
        """)
        late_params(a)
        for r in range(cfg["ldelay"]): a("s_nop 7")
        a("L_nodelay:")
    if cfg.get("premall"):
        a(f"""
        s_cmp_eq_u32 s{S_WAVE}, 7
        s_cbranch_scc0 L_nopremall2
        s_movk_i32 s{S_T0}, 384
        buffer_load_dword v134, v20, s[{S_W}:{S_W+3}], s{S_T0} offen
        L_nopremall2:
        """)
    def first_x():
        for i in range(4):
            a(f"s_add_u32 m0, s56, {i * 4 * 1056}")
            a(f"s_add_u32 s{S_T0}, s57, {i * 65536}")
            a(f"buffer_load_dwordx4 v{V_OFFX}, s[{S_X}:{S_X+3}], s{S_T0} offen lds")
        a(f"""
        s_cmp_eq_u32 s{S_Q}, s55
        s_cbranch_scc0 L_skipx01
        s_mul_i32 s{S_T1}, s55, {XARR}
        s_add_u32 m0, s{S_T1}, {16 * 1056}
        s_lshl_b32 s{S_T1}, s55, 10
        s_add_u32 s{S_T1}, s{S_T1}, s{S_XO}
        s_add_u32 s{S_T0}, s{S_T1}, {16 * 16384}
        buffer_load_dwordx4 v{V_OFFX}, s[{S_X}:{S_X+3}], s{S_T0} offen lds
        L_skipx01:
        """)
    def first_w():
        for j in range(5):
            a(f"s_add_u32 m0, s60, {j * 4096}")
            a(f"s_add_u32 s{S_T0}, s{58 if j < 3 else 59}, {TAPS[j] * 524288}")
            a(f"buffer_load_dwordx4 v{V_OFFW}, s[{S_W}:{S_W+3}], s{S_T0} offen lds")
    if cfg.get("odefer"):
        first_w(); first_x()
    else:
        first_x(); first_w()

def late_params(a):
    srd(a, S_WS, S_KA + 14, 268435456)
    srd(a, S_OUT, S_KA + 10, 2 * 493 * 512 * 2)
    a(f"s_load_dwordx2 s[{S_RAW}:{S_RAW+1}], s[{S_KA+4}:{S_KA+5}], s{S_COL2}")
    a(f"s_load_dwordx2 s[{S_RAW+2}:{S_RAW+3}], s[{S_KA+6}:{S_KA+7}], s{S_COL2}")
    a(f"s_load_dwordx2 s[{S_RAW+4}:{S_RAW+5}], s[{S_KA+8}:{S_KA+9}], s{S_COL2}")
    a(f"s_lshl_b32 s{S_T1}, s{S_GRP}, 7")
    a(f"s_add_u32 s{S_T1}, s{S_T1}, {EPOCH}")
    a(f"s_load_dword s{S_E1}, s[{S_KA+14}:{S_KA+15}], s{S_T1}")

def mall_prefetch(a, cfg):
    a(f"""
    s_cmp_ge_u32 s{S_Q}, 2
    s_cbranch_scc1 L_mallx
    v_lshrrev_b32 v20, 1, v{V_LANE}
    v_min_u32 v20, 29, v20
    v_lshlrev_b32 v20, 10, v20
    v_and_b32 v21, 1, v{V_LANE}
    v_lshl_or_b32 v20, v21, 6, v20
    s_mul_i32 s{S_T0}, s2, 30720
    s_lshl_b32 s{S_T1}, s{S_Q}, 9
    s_add_u32 s{S_T0}, s{S_T0}, s{S_T1}
    s_add_u32 s{S_T0}, s{S_T0}, 384
    buffer_load_dword v134, v20, s[{S_W}:{S_W+3}], s{S_T0} offen
    s_branch L_nomallpf
    L_mallx:
    v_bfe_u32 v20, v{V_LANE}, 1, 3
    s_lshl_b32 s{S_T0}, s2, 3
    v_add_u32 v20, s{S_T0}, v20
    v_min_u32 v20, 1999, v20
    v_lshlrev_b32 v20, 10, v20
    v_and_b32 v21, 1, v{V_LANE}
    v_lshl_or_b32 v20, v21, 6, v20
    s_and_b32 s{S_T0}, s{S_Q}, 1
    s_lshl_b32 s{S_T0}, s{S_T0}, 9
    s_add_u32 s{S_T0}, s{S_T0}, 384
    v_add_u32 v20, s{S_T0}, v20
    global_load_dword v134, v20, s[{S_KA}:{S_KA+1}]
    L_nomallpf:
    """)

def setup_lanes(a):
    T = FT
    a(f"""
    v_and_b32 v{T}, 3, v{V_LANE}
    v_lshlrev_b32 v{FV_RR}, 5, v{T}
    v_add_u32 v{FV_RR}, {RED}, v{FV_RR}
    v_bfe_u32 v{T}, v{V_LANE}, 2, 2
    v_lshrrev_b32 v{T+1}, 4, v{V_LANE}
    v_cmp_eq_u32 vcc, v{T}, v{T+1}
    v_and_b32 v{T+2}, 1, v{V_LANE}
    v_lshlrev_b32 v{T+2}, 4, v{T+2}
    v_mov_b32 v{T+3}, 0x3f80
    v_lshlrev_b32 v{T+3}, v{T+2}, v{T+3}
    v_cndmask_b32 v{T+3}, 0, v{T+3}, vcc
    v_bfe_u32 v{T}, v{V_LANE}, 1, 1
    v_cmp_eq_u32 vcc, 0, v{T}
    v_mov_b32 v{FV_ZERO}, 0
    v_lshlrev_b32 v{FV_PAY}, 3, v{V_LANE}
    v_cndmask_b32 v{FV_A}, 0, v{T+3}, vcc
    v_cndmask_b32 v{FV_A+1}, v{T+3}, 0, vcc
    v_mov_b32 v{FV_A+2}, v{FV_A}
    v_mov_b32 v{FV_A+3}, v{FV_A+1}
    v_lshrrev_b32 v{T}, 4, v{V_LANE}
    v_and_b32 v{T+1}, 1, v{T}
    v_lshrrev_b32 v{T}, 1, v{T}
    v_lshl_or_b32 v{T}, v{T+1}, 1, v{T}
    v_lshlrev_b32 v{T}, 5, v{T}
    s_lshl_b32 s{S_T0}, s{S_WAVE}, 2
    s_add_u32 s{S_T0}, s{S_T0}, {RED}
    v_add_u32 v{FV_RW}, s{S_T0}, v{T}
    s_lshr_b32 s{S_T1}, s{S_WAVE}, 1
    s_and_b32 s{S_T2}, s{S_MEM}, 12
    s_add_u32 s{S_T2}, s{S_T2}, s{S_T1}
    s_lshl_b32 s{S_T2}, s{S_T2}, 7
    s_lshl_b32 s{S_T3}, s{S_GRP}, 11
    s_add_u32 s{S_T2}, s{S_T2}, s{S_T3}
    s_add_u32 s{S_POLL}, s{S_T2}, {FLAGS}
    s_lshl_b32 s{S_T0}, s{S_GRP}, 18
    s_lshl_b32 s{S_T2}, s{S_MEM}, 14
    s_add_u32 s{S_T0}, s{S_T0}, s{S_T2}
    s_lshl_b32 s{S_T2}, s{S_T1}, 12
    s_add_u32 s{S_T0}, s{S_T0}, s{S_T2}
    s_and_b32 s{S_T2}, s{S_WAVE}, 1
    s_lshl_b32 s{S_T3}, s{S_T2}, 9
    s_add_u32 s{S_PAY}, s{S_T0}, s{S_T3}
    s_lshl_b32 s{S_T1}, s{S_T1}, 7
    s_lshl_b32 s{S_T2}, s{S_T2}, 2
    s_add_u32 s{S_T1}, s{S_T1}, s{S_T2}
    v_bfe_u32 v{FV_L}, v{V_LANE}, 1, 4
    v_lshlrev_b32 v{FV_L}, 3, v{FV_L}
    v_lshrrev_b32 v{T+2}, 5, v{V_LANE}
    v_lshl_add_u32 v{FV_L}, v{T+2}, 1, v{FV_L}
    v_and_b32 v{T+2}, 1, v{V_LANE}
    v_add3_u32 v{FV_L}, v{FV_L}, v{T+2}, s{S_T1}
    s_movk_i32 s{S_T3}, 493
    v_cmp_gt_u32 s[{S_VALID}:{S_VALID+1}], s{S_T3}, v{FV_L}
    v_lshlrev_b32 v{FV_OUT}, 10, v{FV_L}
    s_mul_i32 s{S_OUTO}, s{S_BT}, {493*1024}
    s_add_u32 s{S_OUTO}, s{S_OUTO}, s{S_COL2}
    """)
    c1 = 2.302208198144325
    for r in range(2):
        a(f"v_mov_b32 v{FV_K1+r}, {f2h(c1)}")
        a(f"v_mov_b32 v{FV_K2+r}, {f2h(c1*0.044715)}")
        a(f"v_mov_b32 v{FV_ONE+r}, 1.0")

def setup_params(a):
    T = FT
    for c in range(4):
        src = S_RAW + (c >> 1)
        a(f"s_lshl_b32 s{S_T0}, s{src}, 16" if c % 2 == 0 else f"s_and_b32 s{S_T0}, s{src}, 0xffff0000")
        srcb = S_RAW + 4 + (c >> 1)
        a(f"s_lshl_b32 s{S_T1}, s{srcb}, 16" if c % 2 == 0 else f"s_and_b32 s{S_T1}, s{srcb}, 0xffff0000")
        a(f"v_mov_b32 v{FV_C+c}, s{S_T0}")
        a(f"v_mov_b32 v{FV_BETA+c}, s{S_T1}")
    a(f"""
    v_and_b32 v{T}, 3, v{V_LANE}
    v_mov_b32 v{T+1}, s{S_RAW+2}
    v_mov_b32 v{T+2}, s{S_RAW+3}
    v_cmp_gt_u32 vcc, 2, v{T}
    v_and_b32 v{T+3}, 1, v{V_LANE}
    v_lshlrev_b32 v{T+3}, 4, v{T+3}
    v_cndmask_b32 v{T+1}, v{T+2}, v{T+1}, vcc
    v_sub_u32 v{T+3}, 16, v{T+3}
    v_lshlrev_b32 v{T+1}, v{T+3}, v{T+1}
    v_and_b32 v{FV_GAM}, 0xffff0000, v{T+1}
    v_mov_b32 v{FV_E}, s{S_E1}
    """)

def loader(a, cfg):
    def xop(half, par, i): return ("x", half, par, i) if i < 4 else ("x16", half, par)
    def st(s): return [("w", n) for n in range(s * P, (s + 1) * P)]
    XS = cfg.get("xsched", 0)
    E = [xop(1, 0, i) for i in range(5)]; O = [xop(1, 1, i) for i in range(5)]
    if XS == 0:   xs = {2: ([], E[0:2]), 3: ([], E[2:4]), 4: (E[4:5], O[0:1]), 5: ([], O[1:3]), 6: (O[3:5], [])}
    elif XS == 1: xs = {1: ([], E[0:3]), 2: ([], E[3:5] + O[0:1]), 3: ([], O[1:3]), 4: ([], O[3:5])}
    elif XS == 2: xs = {1: ([], E + O)}
    elif XS == 3: xs = {1: ([], E), 2: ([], O[0:2]), 3: ([], O[2:4]), 4: ([], O[4:5])}
    elif XS == 4: xs = {2: ([], E), 3: ([], O)}
    elif XS == 5: xs = {2: ([], E[0:1]), 3: ([], E[1:3]), 4: (E[3:5], []), 5: ([], O[0:2]), 6: (O[2:5], [])}
    elif XS == 6: xs = {3: ([], E[0:3]), 4: (E[3:5], O[0:1]), 5: ([], O[1:3]), 6: (O[3:5], [])}
    def ph(m, mid):
        pre, post = xs.get(m, ([], []))
        return pre + mid + post
    MP = cfg.get("mallpos", 2)
    def mp(m): return [("mallpf",)] if MP == m + 2 and m >= 1 else []
    ST3 = cfg.get("st3late", 0)
    phases = [
        (([("done", op) for op in st(1)] + [("done", xop(0, 1, i)) for i in range(5)]) if cfg.get("odefer") else ([("done", xop(0, 1, i)) for i in range(5)] + [("done", op) for op in st(1)])) + ([("mallpf",)] if MP == 1 else []) + st(2) + [("params",)] + (st(3) if not ST3 else []) + ([("mallpf",)] if MP == 2 else []),
        ph(1, [("arrive",)]) + mp(1),
        (st(3) if ST3 else []) + ph(2, st(4)) + mp(2),
        ph(3, st(5)) + mp(3),
        ph(4, st(6)) + mp(4),
        ph(5, st(7)),
        ph(6, st(8)) + ([("touch",), ("nop_vm",)] if cfg.get("ctouch", 2) == 0 else []),
        st(9) + [("dbgload",)],
        st(10),
        st(11) + ([("touch",), ("nop_vm",)] if cfg.get("ctouch", 2) == 2 else []),
        [("setup",)],
        [("mode",)],
    ]
    PFD = cfg.get("pfd", 0)
    if PFD:
        newp = []
        for m, ph_ in enumerate(phases):
            extra = []
            if m == 0:
                extra = [("pfsetup",)] + [("pf", s_) for s_ in range(4, min(PFD, 12))]
            elif 4 <= m - 1 + PFD <= 11:
                extra = [("pf", m - 1 + PFD)]
            if m == 1: newp.append(extra + ph_)
            elif m >= 9: newp.append(ph_)
            else: newp.append(ph_ + extra)
        phases = newp
    optional = ("x16", "mode", "arrive", "params", "setup", "pfsetup", "pf")
    flat, marks = [], []
    for ph in phases:
        flat += [op[1] if op[0] == "done" else op for op in ph]; marks.append(len(flat))
    def last_required(m):
        req = -1
        for idx, op in enumerate(flat):
            if op[0] == "w" and op[1] // P <= m: req = idx
            if op[0] in ("x", "x16"):
                need = {(0, 1): (2 if cfg.get("odefer") else 1), (1, 0): 5, (1, 1): 7}[(op[1], op[2])]
                if need <= m: req = max(req, idx)
            if op[0] == "dbgload" and m >= 10: req = max(req, idx)
        return req
    for m, ph in enumerate(phases):
        for op in ph:
            if op[0] in ("done", "nop_vm"): continue
            if op[0] == "w": dma_w(a, op[1])
            elif op[0] == "x": dma_x(a, op[1], op[2], op[3])
            elif op[0] == "x16": dma_x16(a, op[1], op[2])
            elif op[0] == "mallpf": mall_prefetch(a, cfg)
            elif op[0] == "params": late_params(a)
            elif op[0] == "pfsetup":
                a(f"""
                s_mul_i32 s{S_T1}, s{S_MT}, 40
                s_mul_i32 s{S_T2}, s{S_Q}, 10
                s_add_u32 s{S_T1}, s{S_T1}, s{S_T2}
                v_min_u32 v20, 9, v{V_LANE}
                v_add_u32 v20, s{S_T1}, v20
                v_lshrrev_b32 v21, 5, v20
                v_and_b32 v20, 31, v20
                v_lshlrev_b32 v20, 10, v20
                s_lshl_b32 s61, s{S_KS}, 17
                s_lshl_b32 s{S_T2}, s{S_NG}, 7
                s_add_u32 s61, s61, s{S_T2}
                s_and_b32 s62, s{S_NG}, {cfg.get("pfmask", 7)}
                """)
                for c in range(3):
                    a(f"""
                    v_add_u32 v22, {5*c}, v21
                    v_lshlrev_b32 v23, 1, v22
                    v_cmp_gt_u32 vcc, 8, v22
                    v_subrev_u32 v25, 15, v23
                    s_nop 0
                    v_cndmask_b32 v23, v25, v23, vcc
                    v_lshl_or_b32 v{26+c}, v23, 19, v20
                    """)
            elif op[0] == "pf":
                s_ = op[1]
                a(f"s_cmp_eq_u32 s62, 3")
                a(f"s_cbranch_scc0 L_nopf{s_}")
                a(f"s_add_u32 s{S_T1}, s61, {(s_ // 3) * 32768}")
                a(f"buffer_load_dword v135, v{26 + s_ % 3}, s[{S_W}:{S_W+3}], s{S_T1} offen")
                a(f"L_nopf{s_}:")
            elif op[0] == "setup":
                setup_lanes(a)
                setup_params(a)
            elif op[0] == "arrive":
                a(f"""
                s_waitcnt lgkmcnt(0)
                s_add_u32 s{S_E1}, s{S_E1}, 1
                s_getreg_b32 s{S_XCC}, hwreg(HW_REG_XCC_ID, 0, 3)
                s_lshl_b32 s{S_ARW}, s{S_E1}, 3
                s_or_b32 s{S_ARW}, s{S_ARW}, s{S_XCC}
                s_lshl_b32 s{S_T2}, s{S_GRP}, 7
                s_add_u32 s{S_ARA}, s{S_T2}, {ARRIVE}
                s_cmp_eq_u32 s{S_Q}, 0
                s_cbranch_scc0 L_noarrive
                s_lshl_b32 s{S_T2}, s{S_MEM}, 2
                s_add_u32 s{S_T2}, s{S_T2}, s{S_ARA}
                v_mov_b32 v{V_T1}, s{S_ARW}
                v_mov_b32 v{V_T2}, 0
                s_mov_b64 exec, 1
                buffer_store_dword v{V_T1}, v{V_T2}, s[{S_WS}:{S_WS+3}], s{S_T2} offen sc1
                s_mov_b64 exec, -1
                L_noarrive:
                """)
            elif op[0] == "touch":
                a(f"""
                v_and_b32 v{V_T1}, 31, v{V_LANE}
                v_lshlrev_b32 v{V_T1}, 7, v{V_T1}
                s_lshl_b32 s{S_T1}, s{S_GRP}, 18
                s_lshl_b32 s{S_T2}, s{S_MEM}, 14
                s_add_u32 s{S_T1}, s{S_T1}, s{S_T2}
                s_lshl_b32 s{S_T2}, s{S_Q}, 12
                s_add_u32 s{S_T1}, s{S_T1}, s{S_T2}
                buffer_load_dword v{V_T0}, v{V_T1}, s[{S_WS}:{S_WS+3}], s{S_T1} offen sc1
                s_mul_i32 s{S_T1}, s{S_BT}, {493*1024}
                s_add_u32 s{S_T1}, s{S_T1}, s{S_COL2}
                v_mov_b32 v20, 0
                buffer_load_dword v21, v20, s[{S_OUT}:{S_OUT+3}], s{S_T1} offen
                """)
            elif op[0] == "dbgload":
                a(f"""
                v_and_b32 v{V_T2}, 15, v{V_LANE}
                v_lshlrev_b32 v{V_T2}, 2, v{V_T2}
                buffer_load_dword v24, v{V_T2}, s[{S_WS}:{S_WS+3}], s{S_ARA} offen sc1
                """)
            elif op[0] == "mode":
                a(f"""
                s_mov_b32 s{S_K}, 0
                s_lshr_b32 s{S_T3}, s{S_ARW}, 3
                L_cntpoll:
                v_lshrrev_b32 v25, 3, v24
                v_cmp_eq_u32 vcc, s{S_T3}, v25
                s_nop 4
                s_cmp_eq_u64 vcc, exec
                s_cbranch_scc1 L_cntok
                s_add_u32 s{S_K}, s{S_K}, 1
                s_cmp_ge_u32 s{S_K}, {POLL_MAX}
                s_cbranch_scc1 L_cntok
                s_sleep 2
                buffer_load_dword v24, v{V_T2}, s[{S_WS}:{S_WS+3}], s{S_ARA} offen sc1
                s_waitcnt vmcnt(0)
                s_branch L_cntpoll
                L_cntok:
                v_cmp_eq_u32 vcc, s{S_ARW}, v24
                s_nop 4
                s_cmp_eq_u64 vcc, exec
                s_cselect_b32 s{S_MODE}, {0 if cfg.get('forceslow') else 1}, 0
                v_mov_b32 v{V_T1}, s{S_MODE}
                v_mov_b32 v{V_T2}, {MODEW}
                s_mov_b64 exec, 1
                ds_write_b32 v{V_T2}, v{V_T1}
                s_mov_b64 exec, -1
                s_waitcnt lgkmcnt(0)
                """)
        pos = marks[m]
        req = last_required(m)
        if m == 0:
            stamp(a, cfg, 2)
            continue
        assert req < pos
        n_after = sum(1 for op in flat[req + 1:pos] if op[0] not in optional)
        a(f"s_waitcnt vmcnt({n_after})")
        if m in (1, 3, 6, 9, 11): stamp(a, cfg, {1: 4, 3: 5, 6: 6, 9: 7, 11: 8}[m])
        a("s_barrier")
        if m == 1 and cfg.get("odefer"):
            idx = max(i for i, op in enumerate(flat) if op[0] in ("x", "x16") and (op[1], op[2]) == (0, 1))
            n_o = sum(1 for op in flat[idx + 1:pos] if op[0] not in optional)
            a(f"s_waitcnt vmcnt({n_o})")
            a("s_barrier")

EXTRAS = {4: [(1, 0), (1, 1), (1, 2)], 5: [(1, 3), (1, 4), (1, 5)], 6: [(1, 6), (1, 7)],
          10: [(0, 0), (0, 1), (0, 2)], 11: [(0, 3), (0, 4), (0, 5)], 12: [(0, 6), (0, 7)]}

ODEFER = False
EXTRAS_D = {6: [(1, 0), (1, 1), (1, 2), (1, 3)], 7: [(1, 4), (1, 5), (1, 6), (1, 7)],
            10: [(0, 0), (0, 1), (0, 2)], 11: [(0, 3), (0, 4), (0, 5)], 12: [(0, 6), (0, 7)]}
def tap_code(a, n):
    EXTRAS = EXTRAS_D if ODEFER else globals()["EXTRAS"]
    par = 0 if n < 8 else 1
    p = n if n < 8 else n - 8
    bank = XE if par == 0 else XO
    wbuf = WB + 4 * (n % 3)
    wnext = WB + 4 * ((n + 1) % 3)
    prev_extras = len(EXTRAS.get(n - 1, []))
    pre = []
    if n in (4, 9, 14):
        pre = [f"s_add_u32 s{S_SG}, s{S_SG}, {STAGE}",
               f"s_cmp_eq_u32 s{S_SG}, {NSTG*STAGE}",
               f"s_cselect_b32 s{S_SG}, 0, s{S_SG}",
               f"v_add_u32 v{V_W}, s{S_SG}, v{V_WL}"]
    reads = []
    if n == 10: reads.append(f"ds_read_b32 v{V_MODE}, v{V_MW}")
    last_p = 6 if par == 0 else 5
    if p <= last_p:
        m = p + 8
        reads.append(f"ds_read_b128 {vr(bank + 4*(m % 9))}, v{V_XC} offset:{x_imm(par, m)}")
    toff = ((n + 1) % P) * 4096
    reads.append(f"ds_read_b64_tr_b16 {vr(wnext,2)}, v{V_W} offset:{toff}")
    reads.append(f"ds_read_b64_tr_b16 {vr(wnext+2,2)}, v{V_W} offset:{toff + 512}")
    for (epar, m) in EXTRAS.get(n, []):
        if epar == 1: reads.append(f"ds_read_b128 {vr(XO + 4*m)}, v{V_XC} offset:{x_imm(1, m)}")
        else: reads.append(f"ds_read_b128 {vr(XE + 4*m)}, v{V_XN} offset:{x_imm(0, m)}")
    post = []
    if n == 14:
        post = [f"s_add_u32 s{S_K}, s{S_K}, 1",
                f"v_mov_b32 v{V_XC}, v{V_XN}",
                f"s_add_u32 s{S_T1}, s{S_K}, 1",
                f"s_lshr_b32 s{S_T2}, s{S_T1}, 1",
                f"s_mul_i32 s{S_T2}, s{S_T2}, {2*XARR}",
                f"s_and_b32 s{S_T1}, s{S_T1}, 1",
                f"s_lshl_b32 s{S_T1}, s{S_T1}, 6",
                f"s_add_u32 s{S_T1}, s{S_T1}, s{S_T2}",
                f"v_add_u32 v{V_XN}, s{S_T1}, v{V_XL}"]
    for x in pre: a(x)
    a(f"s_waitcnt lgkmcnt({prev_extras})")
    ri = 0
    for t in range(8):
        m = p + t
        a(f"v_mfma_f32_16x16x32_bf16 {vr(ACC + 4*t)}, {vr(wbuf)}, {vr(bank + 4*(m % 9))}, {vr(ACC + 4*t)}")
        if t == 0 and n in (4, 9, 14): a("s_barrier")
        if t == 0 and n == 6 and ODEFER:
            a(f"s_cmp_eq_u32 s{S_K}, 0")
            a("s_cbranch_scc0 L_noob")
            a("s_barrier")
            a("L_noob:")
        if t == 3 and n == 8 and ODEFER:
            a("s_waitcnt lgkmcnt(3)")
        if t < 7 and ri < len(reads):
            a(reads[ri]); ri += 1
        if n == 14 and t >= 2:
            for x in post[(t - 2) * 2:(t - 2) * 2 + 2]: a(x)
        if n == 13 and t == 6: a(f"s_cmp_eq_u32 s{S_K}, 3")
    assert ri == len(reads)

def compute(a, cfg):
    late_params(a)
    a(f"""
    v_and_b32 v{V_T0}, 15, v{V_LANE}             ; i / j
    v_lshrrev_b32 v{V_T1}, 4, v{V_LANE}          ; g
    v_mul_u32_u24 v{V_XL}, 1056, v{V_T0}
    v_lshl_add_u32 v{V_XL}, v{V_T1}, 4, v{V_XL}
    v_lshrrev_b32 v{V_T2}, 2, v{V_T0}
    v_lshl_add_u32 v{V_T2}, v{V_T1}, 3, v{V_T2}
    v_lshlrev_b32 v{V_WL}, 7, v{V_T2}
    v_bfe_u32 v{V_T2}, v{V_T0}, 3, 1
    v_and_b32 v{V_T3}, 1, v{V_T1}
    v_lshl_or_b32 v{V_T2}, v{V_T3}, 1, v{V_T2}
    v_xor_b32 v{V_T2}, s{S_Q}, v{V_T2}
    v_lshl_add_u32 v{V_WL}, v{V_T2}, 5, v{V_WL}
    v_and_b32 v{V_T3}, 3, v{V_T0}
    v_lshl_add_u32 v{V_WL}, v{V_T3}, 3, v{V_WL}
    v_add_u32 v{V_WL}, {WRING}, v{V_WL}
    v_mov_b32 v{V_XC}, v{V_XL}
    v_add_u32 v{V_XN}, 64, v{V_XL}
    v_mov_b32 v{V_W}, v{V_WL}
    v_mov_b32 v{V_MW}, {MODEW}
    s_mov_b32 s{S_SG}, 0
    s_mov_b32 s{S_K}, 0
    v_lshlrev_b32 v{V_T1}, 14, v{V_T1}
    v_lshl_add_u32 v{V_STO}, v{V_T0}, 4, v{V_T1}
    s_lshl_b32 s{S_T0}, s{S_Q}, 16
    v_add_u32 v{V_STO}, s{S_T0}, v{V_STO}
    s_lshl_b32 s{S_T0}, s{S_GRP}, 18
    s_lshl_b32 s{S_T1}, s{S_MEM}, 10
    s_add_u32 s{S_STO}, s{S_T0}, s{S_T1}
    s_lshl_b32 s{S_T1}, s{S_Q}, 2
    s_add_u32 s{S_T1}, s{S_T1}, s{S_MT}
    s_lshl_b32 s{S_T1}, s{S_T1}, 7
    s_lshl_b32 s{S_T2}, s{S_KS}, 2
    s_add_u32 s{S_T1}, s{S_T1}, s{S_T2}
    s_lshl_b32 s{S_T2}, s{S_GRP}, 11
    s_add_u32 s{S_T1}, s{S_T1}, s{S_T2}
    s_add_u32 s{S_FLAG}, s{S_T1}, {FLAGS}
    """)
    for r in range(32): a(f"v_mov_b32 v{ACC + r}, 0")
    setup_lanes(a)
    a("s_waitcnt lgkmcnt(0)")
    a(f"s_add_u32 s{S_E1}, s{S_E1}, 1")
    setup_params(a)
    stamp(a, cfg, 2)
    a("s_waitcnt vmcnt(0)")
    stamp(a, cfg, 3)
    a(f"""
    v_mov_b32 v{V_T0}, {CNTW}
    v_mov_b32 v{V_T1}, 1
    s_mov_b64 exec, 1
    ds_add_u32 v{V_T0}, v{V_T1}
    s_mov_b64 exec, -1
    L_b0spin:
    ds_read_b32 v{V_T1}, v{V_T0}
    s_waitcnt lgkmcnt(0)
    v_readfirstlane_b32 s{S_T0}, v{V_T1}
    s_cmp_ge_u32 s{S_T0}, 4
    s_cbranch_scc0 L_b0spin
    """)
    if cfg.get("ctouch", 2) == 1:
        a(f"""
        v_and_b32 v{V_T1}, 31, v{V_LANE}
        v_lshlrev_b32 v{V_T1}, 7, v{V_T1}
        s_lshl_b32 s{S_T1}, s{S_GRP}, 18
        s_lshl_b32 s{S_T2}, s{S_MEM}, 14
        s_add_u32 s{S_T1}, s{S_T1}, s{S_T2}
        s_lshl_b32 s{S_T2}, s{S_Q}, 12
        s_add_u32 s{S_T1}, s{S_T1}, s{S_T2}
        buffer_load_dword v134, v{V_T1}, s[{S_WS}:{S_WS+3}], s{S_T1} offen sc1
        buffer_load_dword v135, v{FV_ZERO}, s[{S_OUT}:{S_OUT+3}], s{S_OUTO} offen
        """)
    if cfg.get("prio") == 1: a("s_setprio 0")
    stamp(a, cfg, 4)
    stamp(a, cfg, 8, True)
    a(f"ds_read_b64_tr_b16 {vr(WB,2)}, v{V_W}")
    a(f"ds_read_b64_tr_b16 {vr(WB+2,2)}, v{V_W} offset:512")
    for m in range(8):
        a(f"ds_read_b128 {vr(XE + 4*m)}, v{V_XC} offset:{x_imm(0, m)}")
    a("L_kloop:")
    for n in range(14): tap_code(a, n)
    a("s_cbranch_scc1 L_lasttap")
    tap_code(a, 14)
    if cfg.get("stamps") == 2:
        a(f"""
        s_memtime s[84:85]
        s_waitcnt lgkmcnt(0)
        s_cmp_eq_u32 s{S_K}, 1
        s_cselect_b32 s96, s84, s96
        s_cmp_eq_u32 s{S_K}, 2
        s_cselect_b32 s97, s84, s97
        s_cmp_eq_u32 s{S_K}, 3
        s_cselect_b32 s98, s84, s98
        """)
    a("s_branch L_kloop")
    a("L_lasttap:")
    n = 14; p = 6; bank = XO; wbuf = WB + 4 * (n % 3)
    T = XE
    def cvt(s):
        out = []
        for e in range(2):
            t = 2 * s + e
            out.append(f"v_cvt_pk_bf16_f32 v{T + 4*s + 2*e}, v{ACC + 4*t}, v{ACC + 4*t + 1}")
            out.append(f"v_cvt_pk_bf16_f32 v{T + 4*s + 2*e + 1}, v{ACC + 4*t + 2}, v{ACC + 4*t + 3}")
        return out
    def store(s, sc):
        if cfg.get("nopayload"): return "s_nop 0"
        return f"buffer_store_dwordx4 {vr(T + 4*s)}, v{V_STO}, s[{S_WS}:{S_WS+3}], s{S_STO} offen offset:{s*256}{sc}"
    a("s_waitcnt lgkmcnt(0)")
    a(f"v_readfirstlane_b32 s{S_MODE}, v{V_MODE}")
    mf = [f"v_mfma_f32_16x16x32_bf16 {vr(ACC + 4*t)}, {vr(wbuf)}, {vr(bank + 4*((p + t) % 9))}, {vr(ACC + 4*t)}" for t in range(8)]
    a(mf[0]); a("s_nop 0"); a(mf[1]); a("s_nop 0"); a(mf[2]); a(f"s_cmp_eq_u32 s{S_MODE}, 1"); a(mf[3])
    a("s_cbranch_scc1 L_fast")
    for lab, sc in (("", " sc1"), ("L_fast:", cfg.get("fastflavor", ""))):
        if lab: a(lab)
        a(mf[4]); a("s_nop 0"); a(mf[5]); a("s_nop 0"); a(mf[6]); a("s_nop 0")
        c0 = cvt(0); a(c0[0]); a(mf[7])
        for x in c0[1:]: a(x)
        a(store(0, sc))
        for x in cvt(1): a(x)
        a(store(1, sc))
        for x in cvt(2): a(x)
        a(store(2, sc))
        for x in cvt(3): a(x)
        a(store(3, sc))
        stamp(a, cfg, 9, True)
        stamp(a, cfg, 5)
        a("s_waitcnt vmcnt(0)")
        a("s_mov_b64 exec, 1")
        a(f"buffer_store_dword v{FV_E}, v{FV_ZERO}, s[{S_WS}:{S_WS+3}], s{S_FLAG} offen{' sc1' if sc == ' sc1' else ''}")
        a("s_mov_b64 exec, -1")
        stamp(a, cfg, 7)
        if not lab: a("s_branch L_final")

def fold_reduce(a, r, ldsoff):
    a(f"""
    s_nop 1
    v_permlane32_swap_b32 v{r}, v{r+1}
    v_permlane32_swap_b32 v{r+2}, v{r+3}
    v_add_f32 v{r}, v{r}, v{r+1}
    v_add_f32 v{r+2}, v{r+2}, v{r+3}
    s_nop 1
    v_permlane16_swap_b32 v{r}, v{r+2}
    v_add_f32 v{r}, v{r}, v{r+2}
    """)
    for sh in (8, 4, 2, 1):
        a("s_nop 1")
        a(f"v_add_f32_dpp v{r}, v{r}, v{r} row_ror:{sh} row_mask:0xf bank_mask:0xf")
    a(f"""
    s_mov_b32 exec_lo, 0x00010001
    s_mov_b32 exec_hi, 0x00010001
    ds_write_b32 v{FV_RW}, v{r} offset:{ldsoff}
    s_mov_b64 exec, -1
    s_waitcnt lgkmcnt(0)
    s_barrier
    ds_read_b128 {vr(r)}, v{FV_RR} offset:{ldsoff}
    ds_read_b128 {vr(r+4)}, v{FV_RR} offset:{ldsoff + 16}
    s_waitcnt lgkmcnt(0)
    v_pk_add_f32 {vr(r,2)}, {vr(r,2)}, {vr(r+2,2)}
    v_pk_add_f32 {vr(r+4,2)}, {vr(r+4,2)}, {vr(r+6,2)}
    v_pk_add_f32 {vr(r,2)}, {vr(r,2)}, {vr(r+4,2)}
    v_add_f32 v{r}, v{r}, v{r+1}
    """)

def final_phase(a, cfg):
    a("L_final:")
    if cfg.get("poll2"):
        def chk(r):
            return f"""
            v_xor_b32 v{r}, s{S_E1}, v{r}
            v_xor_b32 v{r+1}, s{S_E1}, v{r+1}
            v_xor_b32 v{r+2}, s{S_E1}, v{r+2}
            v_xor_b32 v{r+3}, s{S_E1}, v{r+3}
            v_or3_b32 v{r}, v{r}, v{r+1}, v{r+2}
            v_or_b32 v{r}, v{r}, v{r+3}
            s_add_u32 s{S_K}, s{S_K}, 1
            v_readfirstlane_b32 s{S_T1}, v{r}
            s_cmp_eq_u32 s{S_T1}, 0
            s_cbranch_scc1 L_flagok
            """
        ld = lambda r: f"buffer_load_dwordx4 v[{r}:{r+3}], v{FV_ZERO}, s[{S_WS}:{S_WS+3}], s{S_POLL} offen sc1"
        a(f"s_mov_b32 s{S_K}, 0")
        a(ld(20))
        a("L_flagpoll:")
        a(ld(24)); a("s_waitcnt vmcnt(1)"); a(chk(20))
        a(ld(20)); a("s_waitcnt vmcnt(1)"); a(chk(24))
        a(f"""
        s_cmp_ge_u32 s{S_K}, {POLL_MAX}
        s_cbranch_scc0 L_flagpoll
        L_flagok:
        """)
    else:
        a(f"""
        s_mov_b32 s{S_K}, 0
        L_flagpoll:
        buffer_load_dwordx4 v[20:23], v{FV_ZERO}, s[{S_WS}:{S_WS+3}], s{S_POLL} offen sc1
        s_waitcnt vmcnt(0)
        v_xor_b32 v20, s{S_E1}, v20
        v_xor_b32 v21, s{S_E1}, v21
        v_xor_b32 v22, s{S_E1}, v22
        v_xor_b32 v23, s{S_E1}, v23
        v_or3_b32 v20, v20, v21, v22
        v_or_b32 v20, v20, v23
        s_add_u32 s{S_K}, s{S_K}, 1
        v_readfirstlane_b32 s{S_T1}, v20
        s_cmp_eq_u32 s{S_T1}, 0
        s_cbranch_scc1 L_flagok
        s_cmp_ge_u32 s{S_K}, {POLL_MAX}
        s_cbranch_scc1 L_flagok
        s_branch L_flagpoll
        L_flagok:
        """)
    stamp(a, cfg, 10)
    for ks in range(4):
        a(f"buffer_load_dwordx2 {vr(F_IN + 2*ks, 2)}, v{FV_PAY}, s[{S_WS}:{S_WS+3}], s{S_PAY} offen offset:{ks*1024} sc1")
    a("s_waitcnt vmcnt(2)")
    a(f"v_mfma_f32_16x16x32_bf16 {vr(F_Y)}, {vr(FV_A)}, {vr(F_IN)}, {vr(FV_C)}")
    a("s_waitcnt vmcnt(0)")
    stamp(a, cfg, 11)
    a(f"v_mfma_f32_16x16x32_bf16 {vr(F_Y)}, {vr(FV_A)}, {vr(F_IN+4)}, {vr(F_Y)}")
    if cfg.get("wbl2"):
        mask = {1: 15, 2: 3, 3: 0}[cfg["wbl2"]]
        a(f"""
        s_and_b32 s{S_T0}, s{S_MEM}, {mask}
        s_or_b32 s{S_T0}, s{S_T0}, s{S_WAVE}
        s_cmp_eq_u32 s{S_T0}, 0
        s_cbranch_scc0 L_nowb
        buffer_wbl2 sc1
        L_nowb:
        """)
    R = F_T
    Q = FV_R2
    a("s_nop 7")
    if cfg.get("twopass"):
        for c in range(4): a(f"v_cndmask_b32 v{R+c}, 0, v{F_Y+c}, s[{S_VALID}:{S_VALID+1}]")
        fold_reduce(a, R, 0)
        a(f"v_mul_f32 v{R}, {f2h(1/493)}, v{R}")
        a("s_nop 1")
        for c in range(4):
            a(f"v_subrev_f32_dpp v{F_Y+c}, v{R}, v{F_Y+c} quad_perm:[{c},{c},{c},{c}] row_mask:0xf bank_mask:0xf")
        a(f"s_mov_b64 exec, s[{S_VALID}:{S_VALID+1}]")
        for c in range(4): a(f"v_mul_f32 v{FV_R2+c}, v{F_Y+c}, v{F_Y+c}")
        a("s_mov_b64 exec, -1")
        fold_reduce(a, FV_R2, 128)
        a(f"v_mov_b32 v{R+1}, {f2h(1e-5)}")
        a(f"v_fmac_f32 v{R+1}, {f2h(1/493)}, v{FV_R2}")
    else:
        for c in range(4): a(f"v_cndmask_b32 v{R+c}, 0, v{F_Y+c}, s[{S_VALID}:{S_VALID+1}]")
        for c in range(4): a(f"v_mul_f32 v{Q+c}, v{R+c}, v{R+c}")
        a(f"""
        v_permlane32_swap_b32 v{R}, v{R+1}
        v_permlane32_swap_b32 v{R+2}, v{R+3}
        v_permlane32_swap_b32 v{Q}, v{Q+1}
        v_permlane32_swap_b32 v{Q+2}, v{Q+3}
        v_add_f32 v{R}, v{R}, v{R+1}
        v_add_f32 v{R+2}, v{R+2}, v{R+3}
        v_add_f32 v{Q}, v{Q}, v{Q+1}
        v_add_f32 v{Q+2}, v{Q+2}, v{Q+3}
        s_nop 0
        v_permlane16_swap_b32 v{R}, v{R+2}
        v_permlane16_swap_b32 v{Q}, v{Q+2}
        v_add_f32 v{R}, v{R}, v{R+2}
        v_add_f32 v{Q}, v{Q}, v{Q+2}
        """)
        for sh in (8, 4, 2, 1):
            a("s_nop 0")
            a(f"v_add_f32_dpp v{R}, v{R}, v{R} row_ror:{sh} row_mask:0xf bank_mask:0xf")
            a(f"v_add_f32_dpp v{Q}, v{Q}, v{Q} row_ror:{sh} row_mask:0xf bank_mask:0xf")
        a(f"""
        s_mov_b32 exec_lo, 0x00010001
        s_mov_b32 exec_hi, 0x00010001
        ds_write_b32 v{FV_RW}, v{R}
        ds_write_b32 v{FV_RW}, v{Q} offset:128
        s_mov_b64 exec, -1
        s_waitcnt lgkmcnt(0)
        s_barrier
        ds_read_b128 {vr(R)}, v{FV_RR}
        ds_read_b128 {vr(R+4)}, v{FV_RR} offset:16
        ds_read_b128 {vr(Q)}, v{FV_RR} offset:128
        ds_read_b128 {vr(Q+4)}, v{FV_RR} offset:144
        s_waitcnt lgkmcnt(2)
        v_pk_add_f32 {vr(R,2)}, {vr(R,2)}, {vr(R+2,2)}
        v_pk_add_f32 {vr(R+4,2)}, {vr(R+4,2)}, {vr(R+6,2)}
        s_waitcnt lgkmcnt(0)
        v_pk_add_f32 {vr(Q,2)}, {vr(Q,2)}, {vr(Q+2,2)}
        v_pk_add_f32 {vr(Q+4,2)}, {vr(Q+4,2)}, {vr(Q+6,2)}
        v_pk_add_f32 {vr(R,2)}, {vr(R,2)}, {vr(R+4,2)}
        v_pk_add_f32 {vr(Q,2)}, {vr(Q,2)}, {vr(Q+4,2)}
        v_add_f32 v{R}, v{R}, v{R+1}
        v_add_f32 v{Q}, v{Q}, v{Q+1}
        v_mul_f32 v{R}, {f2h(1/493)}, v{R}                 ; mean
        v_mul_f32 v{Q}, {f2h(1/493)}, v{Q}                 ; E[y^2]
        v_mul_f32 v{R+2}, v{R}, v{R}                       ; mean^2
        v_sub_f32 v{Q}, v{Q}, v{R+2}                       ; variance
        v_mul_f32 v{R+3}, {f2h(256.0)}, v{Q}
        v_cmp_gt_f32 vcc, v{R+2}, v{R+3}
        """)
        for c in range(4):
            a(f"v_subrev_f32_dpp v{F_Y+c}, v{R}, v{F_Y+c} quad_perm:[{c},{c},{c},{c}] row_mask:0xf bank_mask:0xf")
        a(f"""
        s_cmp_lg_u64 vcc, 0
        s_cbranch_scc0 L_varok
        """)
        for c in range(4): a(f"v_mul_f32 v{Q+c}, v{F_Y+c}, v{F_Y+c}")
        for c in range(4): a(f"v_cndmask_b32 v{Q+c}, 0, v{Q+c}, s[{S_VALID}:{S_VALID+1}]")
        fold_reduce(a, Q, 384)
        a(f"v_mul_f32 v{Q}, {f2h(1/493)}, v{Q}")
        a("L_varok:")
        a(f"v_add_f32 v{R+1}, {f2h(1e-5)}, v{Q}")
    a(f"v_rsq_f32 v{R+1}, v{R+1}")
    a("s_nop 0")
    a(f"v_mul_f32 v{R+1}, v{R+1}, v{FV_GAM}")
    a("s_nop 1")
    for c in range(4):
        a(f"v_fmac_f32_dpp v{FV_BETA+c}, v{R+1}, v{F_Y+c} quad_perm:[{c},{c},{c},{c}] row_mask:0xf bank_mask:0xf")
    X = FV_BETA
    Z = R + 2
    for c in (0, 2): a(f"v_pk_mul_f32 {vr(Z+c,2)}, {vr(X+c,2)}, {vr(X+c,2)}")
    for c in (0, 2): a(f"v_pk_fma_f32 {vr(Z+c,2)}, {vr(Z+c,2)}, {vr(FV_K2,2)}, {vr(FV_K1,2)}")
    for c in (0, 2): a(f"v_pk_mul_f32 {vr(Z+c,2)}, {vr(X+c,2)}, {vr(Z+c,2)}")
    for c in range(4): a(f"v_exp_f32 v{Z+c}, -v{Z+c}")
    a("s_nop 0")
    for c in (0, 2): a(f"v_pk_add_f32 {vr(Z+c,2)}, {vr(Z+c,2)}, {vr(FV_ONE,2)}")
    for c in range(4): a(f"v_rcp_f32 v{Z+c}, v{Z+c}")
    a("s_nop 0")
    for c in (0, 2): a(f"v_pk_mul_f32 {vr(X+c,2)}, {vr(X+c,2)}, {vr(Z+c,2)}")
    a(f"v_cvt_pk_bf16_f32 v{Z}, v{X}, v{X+1}")
    a(f"v_cvt_pk_bf16_f32 v{Z+1}, v{X+2}, v{X+3}")
    a(f"s_mov_b64 exec, s[{S_VALID}:{S_VALID+1}]")
    a(f"buffer_store_dwordx2 {vr(Z,2)}, v{FV_OUT}, s[{S_OUT}:{S_OUT+3}], s{S_OUTO} offen")
    a(f"""
    s_or_b32 s{S_T0}, s{S_MEM}, s{S_WAVE}
    s_cmp_eq_u32 s{S_T0}, 0
    s_cbranch_scc0 L_noepoch
    s_lshl_b32 s{S_T1}, s{S_GRP}, 7
    s_add_u32 s{S_T1}, s{S_T1}, {EPOCH}
    s_mov_b64 exec, 1
    buffer_store_dword v{FV_E}, v{FV_ZERO}, s[{S_WS}:{S_WS+3}], s{S_T1} offen
    L_noepoch:
    """)
    stamp(a, cfg, 12)
    if cfg.get("stamps"): a("s_waitcnt vmcnt(0)")
    stamp(a, cfg, 13)
    stamp_flush(a, cfg)

HEADER = open("cdna_kernels/" + NAME + ".s.ref").read().split("; Override")[0]

def gen(cfg):
    global ODEFER
    ODEFER = bool(cfg.get("odefer"))
    a = A()
    out = HEADER
    out += """;
;  * y[b,l,:] = sum_{tap,c} x[b,2l+tap,c] w[tap,c,:] as an implicit GEMM.  Workgroup = (batch, 64 output columns,
;    partials go through that XCD's L2 (plain stores, L1-bypassing loads), otherwise write-through (sc1) stores.
"""
    out += f"; @launch grid=(256,1,1) block=(512,1,1) lds={LDS_BYTES}\n"
    a('.amdgcn_target "amdgcn-amd-amdhsa--gfx950"')
    a(".text")
    a(f".globl {KNAME}\n.p2align 8\n.type {KNAME},@function\n{KNAME}:")
    prologue(a, cfg)
    a(f"s_cmp_ge_u32 s{S_WAVE}, 4")
    a("s_cbranch_scc1 L_loader")
    compute(a, cfg)
    final_phase(a, cfg)
    if cfg.get("probe"):
        idx = cfg["probe"]
        a(f"""
        s_cmp_ge_u32 s{S_WAVE}, 4
        s_cbranch_scc1 L_noprobe
        {"s_sub_u32 s84, s95, s94" if idx == 89 else f"s_sub_u32 s84, s{86+idx}, s86"}
        {"s_lshr_b32 s84, s84, 2" if idx == 89 else "s_mul_i32 s84, s84, 4"}
        s_memrealtime s[96:97]
        s_waitcnt lgkmcnt(0)
        s_add_u32 s84, s84, s96
        L_probe:
        s_memrealtime s[96:97]
        s_waitcnt lgkmcnt(0)
        s_sub_u32 s96, s96, s84
        s_cmp_lt_i32 s96, 0
        s_cbranch_scc1 L_probe
        L_noprobe:
        """)
    if cfg.get("pad"):
        a(f"""
        s_waitcnt vmcnt(0) lgkmcnt(0)
        L_pad:
        s_memrealtime s[96:97]
        s_waitcnt lgkmcnt(0)
        s_sub_u32 s96, s96, s98
        s_cmp_lt_u32 s96, {cfg['pad']}
        s_cbranch_scc1 L_pad
        """)
    a("s_endpgm")
    a("L_loader:")
    loader(a, cfg)
    stamp(a, cfg, 9)
    a("s_branch L_final")
    a("L_end:")
    a("s_endpgm")
    out += a.text()
    out += f""".section .rodata,"a"
.p2align 6
.amdhsa_kernel {KNAME}
  .amdhsa_next_free_vgpr {NVGPR}
  .amdhsa_next_free_sgpr 102
  .amdhsa_accum_offset {NVGPR}
  .amdhsa_group_segment_fixed_size 0
  .amdhsa_kernarg_size 64
  .amdhsa_user_sgpr_count 2
  .amdhsa_user_sgpr_kernarg_segment_ptr 1
  .amdhsa_system_sgpr_workgroup_id_x 1
.end_amdhsa_kernel
"""
    return out

if __name__ == "__main__":
    ap = argparse.ArgumentParser()
    ap.add_argument("-o", default="/dev/stdout")
    ap.add_argument("--stamps", type=int, nargs="?", const=1, default=0)
    ap.add_argument("--map", type=int, default=1)
    ap.add_argument("--forceslow", action="store_true")
    ap.add_argument("--pad", type=int, default=0)
    ap.add_argument("--probe", type=int, default=0)
    ap.add_argument("--fastflavor", type=str, default="")
    ap.add_argument("--nopayload", action="store_true")
    ap.add_argument("--wbl2", type=int, default=0)
    ap.add_argument("--mallw", type=int, default=2)
    ap.add_argument("--mallx", type=int, default=1)
    ap.add_argument("--mallpos", type=int, default=2)
    ap.add_argument("--xsched", type=int, default=0)
    ap.add_argument("--st3late", type=int, default=0)
    ap.add_argument("--ctouch", type=int, default=2)
    ap.add_argument("--twopass", type=int, default=0)
    ap.add_argument("--prio", type=int, default=0)
    ap.add_argument("--odefer", type=int, default=1)
    ap.add_argument("--nocodepf", type=int, default=0)
    ap.add_argument("--pfd", type=int, default=0)
    ap.add_argument("--pfmask", type=int, default=7)
    ap.add_argument("--poll2", type=int, default=1)
    ap.add_argument("--pkgelu", type=int, default=1)
    ap.add_argument("--ldelay", type=int, default=0)
    ap.add_argument("--premall", type=int, default=4)
    args = ap.parse_args()
    if args.probe: args.stamps = 1
    cfg = vars(args)
    open(args.o, "w").write(gen(cfg))
```
